```python
import torch

def _softmax(x, axis=-1):
    return torch.softmax(x, dim=axis)
def _gelu(x):
    return torch.nn.functional.gelu(x, approximate="tanh")
def _silu(x):
    return torch.nn.functional.silu(x)
def _sigmoid(x):
    return torch.sigmoid(x)
def _layernorm(x, axis=-1, eps=1e-5):
    m = x.mean(dim=axis, keepdim=True)
    v = x.var(dim=axis, keepdim=True, unbiased=False)
    return (x - m) / torch.sqrt(v + eps)
def _scatter_add(tgt, idx, src, axis=0):
    return tgt.clone().index_add_(axis, idx, src)
def _segment_sum(src, seg, n):
    out = torch.zeros((n,) + src.shape[1:], dtype=src.dtype)
    return out.index_add_(0, seg, src)
def _pad(x, pw):
    flat = tuple(v for pair in reversed(pw) for v in pair)
    return torch.nn.functional.pad(x, flat)

kernel_name = 'gated_mix__mha_block__linear_attn_block__prompt'

def setup_inputs():

    _w = (lambda a: (lambda t: t.to(torch.bfloat16) if t.is_floating_point() else t)(torch.as_tensor(a)))
    def _A_setup():
        B, S, D, H = 1, 2048, 448, 16
        return {
            "x": _w((lambda *s: torch.randn(*s, dtype=torch.bfloat16) * 0.05)(B, S, D)),
            "wqkv": _w((lambda *s: torch.randn(*s, dtype=torch.bfloat16) * 0.8)(D, 3 * D)),
            "wo": _w((lambda *s: torch.randn(*s, dtype=torch.bfloat16) * 0.05)(D, D)),
        }
    _A_in = _A_setup()

    def _B_setup():
        B, S, D = 1, 2048, 448
        return {
            "x": _w((lambda *s: torch.randn(*s, dtype=torch.bfloat16) * 0.05)(B, S, D)),
            "wqkv": _w((lambda *s: torch.randn(*s, dtype=torch.bfloat16) * 0.8)(D, 3 * D)),
            "wo": _w((lambda *s: torch.randn(*s, dtype=torch.bfloat16) * 0.1)(D, D)),
        }
    _B_in = _B_setup()

    return {
        "A_x": _A_in["x"],
        "A_wqkv": _A_in["wqkv"],
        "A_wo": _A_in["wo"],
        "B_x": _B_in["x"],
        "B_wqkv": _B_in["wqkv"],
        "B_wo": _B_in["wo"],
        "gate_w": _w((lambda *s: torch.randn(*s, dtype=torch.bfloat16) * 0.05)(448) * 16.0),
    }

def reference(A_x, A_wqkv, A_wo, B_x, B_wqkv, B_wo, gate_w):
    def _A_ref(x, wqkv, wo):
        B, S, D = x.shape
        H = 16
        Dh = D // H
        qkv = (lambda x, *d: x.permute(*d))((x @ wqkv).reshape(B, S, 3, H, Dh), 2, 0, 3, 1, 4)
        q, k, v = qkv[0], qkv[1], qkv[2]
        scores = torch.einsum("bhqd,bhkd->bhqk", q, k) * (Dh ** -0.5)
        p = _softmax(scores, axis=-1)
        o = torch.einsum("bhqk,bhkd->bhqd", p, v)
        return (lambda x, *d: x.permute(*d))(o, 0, 2, 1, 3).reshape(B, S, D) @ wo

    def _B_ref(x, wqkv, wo):
        B, S, D = x.shape
        H = 16; Dh = D // H
        qkv = (lambda x, *d: x.permute(*d))((x @ wqkv).reshape(B, S, 3, H, Dh), 2, 0, 3, 1, 4)
        q, k, v = qkv[0], qkv[1], qkv[2]
        phi = lambda t: torch.where(t > 0, t + 1, torch.exp(t)) + 1e-6
        pq, pk = phi(q), phi(k)
        kv = torch.einsum("bhsd,bhse->bhde", pk, v)
        z = torch.einsum("bhsd->bhd", pk)
        num = torch.einsum("bhqd,bhde->bhqe", pq, kv)
        den = torch.einsum("bhqd,bhd->bhq", pq, z)[..., None] + 1e-6
        o = num / den
        return (lambda x, *d: x.permute(*d))(o, 0, 2, 1, 3).reshape(B, S, D) @ wo

    x = A_x
    g = _sigmoid((x * gate_w).sum(-1, keepdims=True))
    a = _A_ref(x, A_wqkv, A_wo)
    b = _B_ref(x, B_wqkv, B_wo)
    return g * a + (1 - g) * b
```

```python
import re

class Asm:
    def __init__(self):
        self.lines = []
        self.vmq = []
        self.lgq = []
        self.uid = 0
    def __call__(self, s):
        for l in s.strip("\n").split("\n"):
            l = l.strip()
            if l: self.lines.append(l)
    def label(self, name): self.lines.append(name + ":")
    def newlabel(self, base):
        self.uid += 1
        return "L_%s_%d" % (base, self.uid)
    def comment(self, s): self.lines.append("; " + s)
    def vm(self, s, tag=None):
        self(s); self.vmq.append(tag)
    def vmwait(self, tag):
        idx = [i for i, t in enumerate(self.vmq) if t == tag]
        if not idx: return
        n = len(self.vmq) - 1 - idx[-1]
        assert n <= 63, n
        self("s_waitcnt vmcnt(%d)" % n)
        self.vmq = self.vmq[idx[-1] + 1:]
    def vmwait_all(self):
        self("s_waitcnt vmcnt(0)"); self.vmq = []
    def vm_forget(self): self.vmq = []
    def ds(self, s, tag=None):
        self(s); self.lgq.append(tag)
    def dswait(self, tag):
        idx = [i for i, t in enumerate(self.lgq) if t == tag]
        if not idx: return
        n = len(self.lgq) - 1 - idx[-1]
        if n > 15: n = 15
        self("s_waitcnt lgkmcnt(%d)" % n)
        self.lgq = self.lgq[len(self.lgq) - n:] if n else []
    def dswait_all(self):
        self("s_waitcnt lgkmcnt(0)"); self.lgq = []
    def nop(self, n):
        while n > 0:
            k = min(n, 16); self("s_nop %d" % (k - 1)); n -= k
    def text(self):
        out = []
        for l in self.lines:
            out.append(l if (l.endswith(":") or l.startswith(".") or l.startswith(";")) else "    " + l)
        return "\n".join(out) + "\n"

_reg = re.compile(r"^(-|\|)?([vas])(?:(\d+)|\[(\d+):(\d+)\])\|?$")
def regs(op):
    op = op.strip()
    op = re.sub(r"^-", "", op)
    m = re.match(r"^abs\((.*)\)$", op)
    if m: op = m.group(1)
    if op == "vcc": return {("s", 106), ("s", 107)}
    if op == "exec": return {("s", 126), ("s", 127)}
    if op == "m0": return {("s", 124)}
    m = _reg.match(op)
    if not m: return set()
    k = m.group(2)
    if m.group(3) is not None: return {(k, int(m.group(3)))}
    return {(k, i) for i in range(int(m.group(4)), int(m.group(5)) + 1)}

TRANS = ("v_exp_", "v_log_", "v_rcp_", "v_rsq_", "v_sqrt_", "v_sin_", "v_cos_")
class I: pass
def parse(line):
    i = I(); i.text = line
    body = line.split(";")[0].strip()
    parts = body.split(None, 1)
    i.mn = parts[0]
    rest = parts[1] if len(parts) > 1 else ""
    ops = [o.strip() for o in rest.split(",")] if rest else []
    mods = ""
    if ops:
        last = ops[-1].split()
        ops[-1] = last[0] if last else ""
        mods = " ".join(last[1:])
    i.ops = ops; i.mods = mods
    mn = i.mn
    i.mfma = mn.startswith("v_mfma") or mn.startswith("v_smfmac")
    i.valu = mn.startswith("v_") and not i.mfma
    i.trans = mn.startswith(TRANS)
    i.vmem = mn.startswith(("buffer_", "global_"))
    i.dsop = mn.startswith("ds_")
    i.salu = mn.startswith("s_")
    i.dpp = any(k in mods for k in ("quad_perm", "row_", "wave_"))
    R = [regs(o) for o in ops]
    w = set(); r = set()
    if i.mfma:
        w = R[0]; i.A = R[1]; i.B = R[2]
        if mn.startswith("v_smfmac"):
            i.C = R[0]; i.idx = R[3]
        else:
            i.C = R[3]; i.idx = set()
        r = i.A | i.B | i.C | i.idx
        i.passes = 8 if "32x32" in mn else 4
    elif i.valu:
        if mn.startswith("v_cmp"):
            w = R[0]; r = set().union(*R[1:])
        elif mn.startswith("v_permlane") and "swap" in mn:
            w = R[0] | R[1]; r = R[0] | R[1]
        elif mn.startswith(("v_fmac", "v_dot2c", "v_pk_fmac")):
            w = R[0]; r = set().union(*R)
        elif "_co_" in mn:
            w = R[0] | R[1]; r = set().union(*R[2:])
        else:
            w = R[0]; r = set().union(*R[1:]) if len(R) > 1 else set()
            if mn.startswith("v_cndmask") and len(R) == 3: r |= regs("vcc")
    elif i.vmem:
        lds = " lds" in (" " + mods)
        i.lds = lds
        if "store" in mn or ("atomic" in mn and "sc0" not in mods):
            r = set().union(*R); i.data = R[0] if mn.startswith("buffer") else R[1]
        elif mn in ("buffer_wbl2", "buffer_inv"):
            pass
        elif lds:
            r = set().union(*R) | regs("m0")
        else:
            w = R[0]; r = set().union(*R[1:])
    elif i.dsop:
        if "write" in mn:
            r = set().union(*R)
        else:
            w = R[0]; r = set().union(*R[1:])
    elif i.salu:
        if mn.startswith(("s_cmp", "s_cbranch", "s_branch", "s_waitcnt", "s_nop", "s_barrier", "s_endpgm", "s_setprio", "s_sleep")):
            r = set().union(*R) if R else set()
        else:
            w = R[0] if R else set(); r = set().union(*R[1:]) if len(R) > 1 else set()
            if "saveexec" in mn: w |= regs("exec")
    i.w = w; i.r = r
    i.states = int(ops[0]) + 1 if mn == "s_nop" else 1
    return i

def need(p, c):
    n = 0
    vw = {x for x in p.w if x[0] in "va"}; sw = {x for x in p.w if x[0] == "s"}
    if p.valu:
        if c.mfma and vw & c.r: n = max(n, 2)
        if c.mn.startswith(("v_readfirstlane", "v_readlane")) and vw & c.r: n = max(n, 1)
        if c.mn.startswith("v_permlane") and vw & c.r: n = max(n, 2)
        if c.valu and c.dpp and vw & c.r: n = max(n, 2)
        if p.trans and (c.valu and not c.trans) and vw & c.r: n = max(n, 1)
        if p.trans and (c.vmem or c.dsop) and vw & c.r: n = max(n, 1)
        if sw:
            if c.vmem and sw & c.r: n = max(n, 5)
            if c.valu and sw & c.r: n = max(n, 2)
            if c.mn.startswith(("v_readlane", "v_writelane")) and sw & c.r: n = max(n, 4)
    if p.mfma:
        t = {4: (6, 8, 3), 8: (10, 12, 7)}[p.passes]
        if c.mfma:
            if p.w & (c.A | c.B | c.idx): n = max(n, t[1])
            if p.w & c.C and not (p.w == c.C and p.passes == c.passes): n = max(n, t[0])
            if p.w & c.w and not (p.w == c.C and p.passes == c.passes): n = max(n, t[0])
        elif c.valu or c.vmem or c.dsop:
            if p.w & (c.r | c.w): n = max(n, t[1])
        if c.valu and p.C & c.w: n = max(n, t[2])
    if p.salu and ("s", 124) in p.w and c.vmem and getattr(c, "lds", False): n = max(n, 1)
    if p.vmem and hasattr(p, "data") and len(p.data) >= 3:
        if c.valu and p.data & c.w: n = max(n, 2)
        elif p.data & c.w: n = max(n, 1)
    return n

def check(lines):
    ins = []; labels = {}
    for l in lines:
        if l.startswith(";") or l.startswith("."): continue
        if l.endswith(":"): labels[l[:-1]] = len(ins); continue
        ins.append(parse(l))
    probs = []
    W = 24
    def succ(k):
        i = ins[k]; s = []
        if i.mn == "s_endpgm": return s
        if i.mn == "s_branch": return [labels[i.ops[0]]]
        if i.mn.startswith("s_cbranch"): s.append(labels[i.ops[0]])
        if k + 1 < len(ins): s.append(k + 1)
        return s
    for k, p in enumerate(ins):
        if not (p.valu or p.mfma or p.vmem or (p.salu and ("s", 124) in p.w)): continue
        stack = [(s, 0) for s in succ(k)]; seen = {}
        while stack:
            q, d = stack.pop()
            if q >= len(ins) or d > 20 or seen.get(q, 99) <= d: continue
            seen[q] = d
            c = ins[q]
            n = need(p, c)
            if n > d: probs.append("hazard: need %d have %d: [%s] -> [%s]" % (n, d, p.text, c.text))
            for s in succ(q): stack.append((s, d + c.states))
    return probs
```

```python
import sys, struct
from asmlib import Asm, check

NAME = "gated_mix__mha_block__linear_attn_block__prompt"
STAMP = "--stamp" in sys.argv
FORCE_FB = "--force-fallback" in sys.argv

T_OFF, T_TILE = 0, 21 * 4096
N_OFF, N_KIND = 0x540000, 0x200000
O_OFF, O_TILE = 0xB40000, 112 * 512
SLAB_OFF = 0xEC0000
G_OFF = 0xFC0000
F1, F2, F3, F4, F5 = [0xFC8000 + i * 0x8000 for i in range(5)]
EPOCH_OFF = 0xFF0000
STAMP_OFF = 0x1000000
WS_SIZE = 0x1100000
OOB = 0x40000000
RED = 114688
LDS_BYTES = 163840
SPIN = 1 << 18

def f32(x): return struct.unpack("<I", struct.pack("<f", x))[0]
LOG2E = 1.4426950408889634
QSCALE = 28 ** -0.5 * LOG2E

sW = "s3"
X, W0, W1, W2, WS, OUT, WOA, WOB = ["s[%d:%d]" % (4 + 4 * i, 7 + 4 * i) for i in range(8)]
GW = W0
sTAG, sRB, sJ, sH, sQB, sU0, sODD, sRB2, sCC, sP3 = ["s%d" % i for i in range(60, 70)]
sC0, sC1, sRTL2 = "s70", "s71", "s72"
sT0, sT1, sT2, sT3, sT4, sT5 = ["s%d" % i for i in range(73, 79)]
sCNT, sFB = "s79", "s80"
sMX, sMWc = "s81", "s82"
sSCL = "s[84:85]"
sMA, sMB, sMZ = "s[86:87]", "s[88:89]", "s[90:91]"
sSK, sSV = "s92", "s93"
STAMPS = []

a = Asm()
def stamp(name):
    if STAMP:
        k = len(STAMPS); STAMPS.append(name)
        a("s_memtime s[98:99]")
        a("s_waitcnt lgkmcnt(0)")
        a.lgq = []
        a("v_writelane_b32 v255, s98, %d" % k)

def vr(b, n=1): return "v%d" % b if n == 1 else "v[%d:%d]" % (b, b + n - 1)
def ar(b, n=1): return "a%d" % b if n == 1 else "a[%d:%d]" % (b, b + n - 1)
def mfma(d, A, B, zero=False): a("v_mfma_f32_32x32x16_bf16 %s, %s, %s, %s" % (d, A, B, "0" if zero else d))
def srd(reg, lo, hi, size):
    n = int(reg[2:].split(":")[0])
    a("s_mov_b32 s%d, %s\ns_mov_b32 s%d, %s\ns_mov_b32 s%d, %d\ns_mov_b32 s%d, 0x20000" % (n, lo, n + 1, hi, n + 2, size, n + 3))
def swap23(dst, src, t):
    a("v_and_b32 %s, 0x13, %s" % (dst, src))
    a("v_and_b32 %s, 4, %s" % (t, src))
    a("v_lshl_or_b32 %s, %s, 1, %s" % (dst, t, dst))
    a("v_lshrrev_b32 %s, 1, %s" % (t, src))
    a("v_and_or_b32 %s, %s, 4, %s" % (dst, t, dst))
def lane_select(dst, items, t):
    a("v_mov_b32 %s, %s" % (dst, items[0][1]))
    for lo, s in items[1:]:
        a("v_cmp_le_u32 vcc, %d, v1" % lo)
        a("v_mov_b32 %s, %s" % (t, s))
        a("s_nop 0")
        a("v_cndmask_b32 %s, %s, %s, vcc" % (dst, dst, t))

def poll_issue(vdata, n, vaddr, tag):
    a.vm("buffer_load_dword%s %s, %s, %s, 0 offen sc1" % ("x4" if n == 4 else "", vr(vdata, n), vaddr, WS), tag)
def poll_check(vdata, n, vaddr, tag):
    top, done = a.newlabel("poll"), a.newlabel("polled")
    a.vmwait(tag)
    a.label(top)
    a("v_cmp_ne_u32 vcc, %s, %s" % (sTAG, vr(vdata)))
    for k in range(1, n):
        a("v_cmp_ne_u32 s[94:95], %s, %s" % (sTAG, vr(vdata + k)))
        a("s_or_b64 vcc, vcc, s[94:95]")
    a("s_cmp_eq_u64 vcc, 0")
    a("s_cbranch_scc1 %s" % done)
    a("s_sub_u32 %s, %s, 1" % (sCNT, sCNT))
    a("s_cbranch_scc1 %s" % (done + "_to"))
    a("buffer_load_dword%s %s, %s, %s, 0 offen sc1" % ("x4" if n == 4 else "", vr(vdata, n), vaddr, WS))
    a("s_waitcnt vmcnt(0)")
    a("s_branch %s" % top)
    a.label(done + "_to")
    a("s_mov_b32 %s, 0" % sCNT)
    a.label(done)

a("s_cmp_ge_u32 s2, 256")
a("s_cbranch_scc1 L_end")
a("s_load_dwordx16 s[40:55], s[0:1], 0")
a("s_load_dwordx4 s[56:59], s[0:1], 64")
if STAMP: a("v_mov_b32 v255, 0")
stamp("entry")
a("""
v_lshrrev_b32 v48, 6, v0
v_and_b32 v1, 63, v0
v_readfirstlane_b32 s3, v48
v_lshlrev_b32 v2, 4, v1
s_and_b32 s73, s2, 7
s_lshr_b32 s74, s2, 3
""")
a("""
s_and_b32 s75, s73, 1
s_lshl_b32 s75, s75, 3
s_and_b32 s76, s74, 7
s_add_u32 %s, s75, s76
s_lshr_b32 s75, s73, 1
s_lshl_b32 s75, s75, 2
s_lshr_b32 s76, s74, 3
s_add_u32 %s, s75, s76
""" % (sRB, sJ))
a("""
s_and_b32 %s, s74, 1
s_lshl_b32 s75, s73, 1
s_add_u32 %s, s75, %s
s_lshr_b32 %s, s74, 1
s_mul_i32 s75, %s, 7
s_lshr_b32 %s, s75, 1
s_mul_i32 s75, s74, 37
s_lshr_b32 s75, s75, 8
s_mul_i32 s76, s75, 7
s_sub_u32 %s, s74, s76
s_lshl_b32 s76, s73, 2
s_add_u32 %s, s76, s75
s_cmp_lt_u32 s74, 28
s_cselect_b32 %s, 1, 0
s_cselect_b32 %s, %s, 0
s_mul_i32 s75, %s, 28
s_lshr_b32 %s, s75, 6
s_add_u32 s75, s75, 27
s_lshr_b32 %s, s75, 6
s_mov_b32 %s, %d
s_mov_b32 %s, 0
s_lshl_b32 %s, s3, 12
s_lshl_b32 %s, s3, 11
""" % (sODD, sH, sODD, sQB, sH, sU0, sCC, sRB2, sP3, sRB2, sRB2, sH, sC0, sC1, sCNT, SPIN, sFB, sMX, sMWc))
a("v_lshrrev_b32 v48, 3, v1")
a("v_and_b32 v49, 7, v1")
a("v_lshrrev_b32 v50, 4, v1")
a("s_lshl_b32 s75, %s, 7\ns_lshl_b32 s76, s3, 5\ns_add_u32 s75, s75, s76\ns_mul_i32 s75, s75, 896" % sRB)
a("v_mul_u32_u24 v51, 896, v48\nv_add_u32 v51, s75, v51")
for i in range(4):
    a("v_add_u32 v52, %d, v50\nv_and_b32 v52, 7, v52\nv_xor_b32 v52, v52, v49" % (4 * i))
    a("v_lshl_add_u32 v%d, v52, 4, v51" % (3 + i))
    if i: a("v_add_u32 v%d, %d, v%d" % (3 + i, i * (8 * 896 - 1024), 3 + i))
a("v_and_b32 v52, 1, v50\nv_lshlrev_b32 v52, 2, v52\nv_xor_b32 v52, v52, v49")
a("s_mul_i32 s76, s3, %d" % (16 * 2688))
a("v_mul_u32_u24 v53, 2688, v48\nv_add_u32 v53, s76, v53\nv_lshl_add_u32 v7, v52, 4, v53\nv_add_u32 v8, %d, v7" % (8 * 2688 - 1024))
a("s_mul_i32 s76, s3, %d\ns_lshl_b32 s77, %s, 7\ns_add_u32 s76, s76, s77" % (112 * 896, sCC))
a("v_mul_u32_u24 v53, 896, v48\nv_add_u32 v53, s76, v53\nv_lshl_add_u32 v241, v52, 4, v53")
a("s_waitcnt lgkmcnt(0)")
stamp("kernarg")
pX, pWA, pWoA, pWB, pWoB, pG, pOut, pWs = [("s%d" % i, "s%d" % (i + 1)) for i in (40, 42, 44, 48, 50, 52, 54, 58)]
a("s_mov_b32 s73, %d\ns_load_dword %s, s[58:59], s73" % (EPOCH_OFF, sTAG))
srd(X, pX[0], pX[1], 2048 * 896)
WBYTES = 448 * 2688
for c, reg in ((0, W0), (1, W1)):
    n = int(reg[2:].split(":")[0])
    a("""
s_lshl_b32 s75, %s, 1
s_add_u32 s75, s75, %d
s_sub_u32 s76, s75, 7
s_cmp_lt_u32 s75, 21
s_cselect_b32 s75, s75, s76
s_cselect_b32 s%d, %s, %s
s_cselect_b32 s%d, %s, %s
s_min_u32 s75, s75, 20
s_lshl_b32 s75, s75, 7
s_add_u32 s%d, s%d, s75
s_addc_u32 s%d, s%d, 0
s_sub_u32 s%d, %d, s75
s_mov_b32 s%d, 0x20000
""" % (sJ, c, n, pWA[0], pWB[0], n + 1, pWA[1], pWB[1], n, n, n + 1, n + 1, n + 2, WBYTES, n + 3))
a("""
s_lshl_b32 s75, %s, 7
s_add_u32 s16, %s, s75
s_addc_u32 s17, %s, 0
s_sub_u32 s18, %d, s75
s_mov_b32 s19, 0x20000
""" % (sJ, pWB[0], pWB[1], WBYTES))
srd(WS, pWs[0], pWs[1], WS_SIZE)
a("s_cmp_ge_u32 %s, 14" % sJ)
a("s_cbranch_scc1 L_gate")

def dma_slab(s, slot):
    th = []
    th.append(lambda: a("s_add_u32 m0, %s, %d\ns_mov_b32 %s, %d" % (sMX, slot * 32768, sT0, s * 128)))
    for i in range(4):
        th.append(lambda i=i: a.vm("buffer_load_dwordx4 v%d, %s, %s offen offset:%d lds" % (3 + i, X, sT0, 1024 * i), "slab%d" % s))
    for c, reg in ((0, W0), (1, W1)):
        th.append(lambda c=c: a("s_add_u32 m0, %s, %d\ns_mov_b32 %s, %d" % (sMWc, slot * 32768 + 16384 + c * 8192, sT0, s * 64 * 2688)))
        for i in range(2):
            th.append(lambda i=i, reg=reg: a.vm("buffer_load_dwordx4 v%d, %s, %s offen offset:%d lds" % (7 + i, reg, sT0, 1024 * i), "slab%d" % s))
    return th
def dma_w2(s2):
    th = [lambda: a("s_add_u32 m0, %s, %d\ns_mov_b32 %s, %d" % (sMWc, 65536 + s2 * 8192, sT0, s2 * 64 * 2688))]
    for i in range(2):
        th.append(lambda i=i: a.vm("buffer_load_dwordx4 v%d, %s, %s offen offset:%d lds" % (7 + i, W2, sT0, 1024 * i), "w2"))
    return th
for s in range(5):
    for t in dma_slab(s, s): t()
stamp("dma_issued")
srd(OUT, pOut[0], pOut[1], 2048 * 896)
srd(WOA, pWoA[0], pWoA[1], 448 * 896)
srd(WOB, pWoB[0], pWoB[1], 448 * 896)
vmq_entry = list(a.vmq)
a("s_cmp_ge_u32 %s, 7" % sJ)
a("s_cbranch_scc1 L_p1N")

SLOT = [0, 1, 2, 3, 4, 0, 1]
def Xf(rtl, g): return ar(32 + 112 * rtl + 4 * g, 4)
def Wf(buf, ct, e=None):
    b = 32 + 8 * buf + 4 * ct
    return vr(b, 4) if e is None else vr(b + 2 * e, 2)
def W4(g, e=None):
    b = 32 + 4 * (g & 3)
    return vr(b, 4) if e is None else vr(b + 2 * e, 2)
def acc1(rtl, ct): return 64 + 32 * rtl + 16 * ct
def acc2(rtl): return 128 + 16 * rtl

def p1(T):
    a.vmq = list(vmq_entry); a.lgq = []
    a("s_and_b32 s73, s3, 1\ns_lshr_b32 s74, s3, 1")
    a("v_and_b32 v48, 31, v1")
    if T: a("v_mov_b32 v49, v48")
    else: swap23("v49", "v48", "v50")
    a("v_lshrrev_b32 v50, 5, v1")
    a("v_lshrrev_b32 v51, 1, v49\nv_and_b32 v51, 7, v51")
    a("s_lshl_b32 s75, s73, 13")
    a("v_lshlrev_b32 v52, 7, v49\nv_add_u32 v52, s75, v52")
    for t in range(4):
        a("v_add_u32 v53, %d, v50\nv_xor_b32 v53, v53, v51\nv_lshl_add_u32 v%d, v53, 4, v52" % (2 * t, 9 + t))
        for hi in (1, 2): a("v_add_u32 v%d, %d, v%d" % (9 + 4 * hi + t, 65536 * hi, 9 + t))
    a("v_and_b32 v51, 3, v1")
    if T: a("v_and_b32 v52, 1, v51\nv_lshrrev_b32 v51, 1, v51\nv_lshl_or_b32 v51, v52, 1, v51")
    a("v_bfe_u32 v52, v1, 4, 1\nv_lshl_or_b32 v51, v52, 2, v51")
    a("v_bfe_u32 v52, v1, 2, 2\nv_lshl_add_u32 v53, v50, 3, v52")
    a("v_lshlrev_b32 v53, 7, v53\nv_lshl_add_u32 v53, v51, 3, v53")
    a("v_bfe_u32 v52, v1, 3, 1\nv_lshlrev_b32 v52, 6, v52")
    a("v_or_b32 v54, v53, v52\nv_xor_b32 v55, 64, v54")
    a("s_lshl_b32 s75, s74, 13\ns_add_u32 s75, s75, 16384")
    for ct in range(2):
        a("v_add_u32 v%d, s75, v%d" % (21 + ct, 54 + ct))
        for hi in (1, 2): a("v_add_u32 v%d, %d, v%d" % (21 + 2 * hi + ct, 65536 * hi, 21 + ct))
    a("s_lshl_b32 s75, s74, 6\nv_xor_b32 v27, s75, v54\nv_add_u32 v27, 65536, v27")
    a("s_lshl_b32 s75, %s, 2\ns_lshl_b32 s76, s73, 1\ns_add_u32 s75, s75, s76" % sRB)
    a("s_lshl_b32 s76, %s, 1\ns_add_u32 s76, s76, s74" % sJ)
    if T:
        a("s_mul_i32 s77, s75, %d" % T_TILE)
        a("s_lshl_b32 s78, s76, 12\ns_add_u32 s78, s78, s77\nv_add_u32 v28, s78, v2")
        a("s_add_u32 s78, %s, 14\ns_lshl_b32 s78, s78, 12\ns_add_u32 s78, s78, s77\ns_lshl_b32 s77, s74, 11\ns_add_u32 s78, s78, s77\nv_add_u32 v30, s78, v2" % sJ)
        a("s_cmp_lt_u32 s76, 7\ns_cselect_b32 s84, 0x%x, 1.0\ns_mov_b32 s85, s84\ns_mov_b32 %s, %d" % (f32(QSCALE), sRTL2, T_TILE))
    else:
        a("s_lshl_b32 s75, s75, 11\ns_add_u32 s75, s75, %d" % N_OFF)
        a("s_sub_u32 s76, s76, 14\ns_sub_u32 s77, s76, 7\ns_cmp_lt_u32 s76, 7\ns_cselect_b32 s76, s76, s77\ns_cselect_b32 s77, 0, %d\ns_add_u32 s77, s77, s75" % N_KIND)
        a("s_mov_b32 s78, 2341")
        def naddr(dst, sbase, vf, isV):
            a("v_mul_lo_u32 v52, s78, %s\nv_lshrrev_b32 v52, 16, v52" % vf)
            a("v_mul_u32_u24 v53, 28, v52\nv_sub_u32 v53, %s, v53" % vf)
            a("v_and_b32 v54, 1, v52\nv_lshlrev_b32 v54, 2, v54")
            if isV:
                a("v_sub_u32 v53, v53, v54\nv_add_u32 v55, 28, v53\nv_min_u32 v53, v53, v55")
            else:
                a("v_add_u32 v53, v53, v54")
            swap23("v55", "v53", "v54")
            a("v_lshlrev_b32 v52, 17, v52\nv_lshl_add_u32 v52, v55, 4, v52\nv_lshl_add_u32 v52, v50, 9, v52\nv_add_u32 %s, %s, v52" % (dst, sbase))
        for ct in range(2):
            a("s_lshl_b32 s83, s76, 6\ns_add_u32 s83, s83, %d\nv_add_u32 v51, s83, v48" % (32 * ct))
            naddr("v%d" % (28 + ct), "s77", "v51", True)
        a("s_lshl_b32 s83, s76, 6\ns_add_u32 s96, s83, 27\ns_mul_i32 s96, s96, 2341\ns_lshr_b32 s96, s96, 16\ns_add_u32 s83, s83, 64")
        a("v_lshrrev_b32 v51, 4, v1\nv_add_u32 v51, s96, v51\nv_mul_u32_u24 v52, 28, v51\nv_cmp_gt_u32 vcc, s83, v52")
        a("v_lshlrev_b32 v51, 17, v51\nv_bfe_u32 v52, v1, 2, 2\nv_lshl_add_u32 v51, v52, 9, v51\nv_and_b32 v52, 3, v1\nv_lshl_add_u32 v51, v52, 4, v51")
        a("v_add_u32 v51, s77, v51\nv_add_u32 v51, %d, v51\nv_mov_b32 v53, %d\nv_cndmask_b32 v31, v53, v51, vcc" % (28 * 16, OOB))
        a("v_cmp_eq_u32 vcc, 0, v52\nv_mov_b32 v53, 0x3f803f80\nv_mov_b32 v54, 0\nv_cndmask_b32 v56, v54, v53, vcc")
        a("v_mov_b32 v57, v56\nv_mov_b32 v58, v56\nv_mov_b32 v59, v56")
        a("s_sub_u32 s83, %s, 7\ns_lshl_b32 s83, s83, 6\ns_lshl_b32 s96, s74, 5\ns_add_u32 s83, s83, s96\nv_add_u32 v51, s83, v48\ns_add_u32 s77, s75, %d" % (sJ, 2 * N_KIND))
        naddr("v30", "s77", "v51", False)
        a("s_mov_b32 %s, 2048" % sRTL2)
    a("s_lshl_b32 s75, %s, 4\ns_add_u32 s75, s75, %s\ns_lshl_b32 s75, s75, 7\ns_lshl_b32 s76, s3, 2\ns_add_u32 s75, s75, s76\ns_mov_b32 s97, s75" % (sJ, sRB))
    def mm(d, rtl, g, wf, zero):
        if T: mfma(vr(d, 16), wf, Xf(rtl, g), zero)
        else: mfma(vr(d, 16), Xf(rtl, g), wf, zero)
    def reads1(g):
        s, t = g >> 2, g & 3; slot = SLOT[s]; hi, lo = slot >> 1, (slot & 1) * 32768
        r = []
        for rtl in range(2):
            r.append(lambda rtl=rtl: a.ds("ds_read_b128 %s, v%d offset:%d" % (Xf(rtl, g), 9 + 4 * hi + t, lo + rtl * 4096), g))
        for ct in range(2):
            for e in range(2):
                r.append(lambda ct=ct, e=e: a.ds("ds_read_b64_tr_b16 %s, v%d offset:%d" % (Wf(g & 1, ct, e), 21 + 2 * hi + ct, lo + t * 2048 + e * 512), g))
        return [r[0], r[2], r[3], r[1], r[4], r[5]]
    def reads2(g):
        return [lambda e=e: a.ds("ds_read_b64_tr_b16 %s, v27 offset:%d" % (W4(g, e), (g >> 2) * 8192 + (g & 3) * 2048 + e * 512), 100 + g) for e in range(2)]
    a.vmwait("slab0")
    a("s_barrier")
    stamp("slab0")
    for r in reads1(0): r()
    pend = []
    for g in range(28):
        s, t = g >> 2, g & 3
        a.dswait(g)
        order = [(0, 0), (0, 1), (1, 0), (1, 1)]
        mm(acc1(0, 0), 0, g, Wf(g & 1, 0), g == 0)
        nxt = []
        if t == 3:
            if s < 6: a.vmwait("slab%d" % (s + 1))
            else: a.vmwait("w2")
            a("s_barrier")
            if s < 2: pend += dma_slab(s + 5, SLOT[s + 5])
            elif s == 2: pend += sum([dma_w2(k) for k in range(4)], [])
            elif s == 3: pend += sum([dma_w2(k) for k in range(4, 7)], [])
        nxt = reads1(g + 1) if g < 27 else reads2(0) + [lambda: None] + reads2(1)
        for r in nxt[:3]: r()
        mm(acc1(0, 1), 0, g, Wf(g & 1, 1), g == 0)
        for r in nxt[3:]: r()
        mm(acc1(1, 0), 1, g, Wf(g & 1, 0), g == 0)
        for _ in range(2):
            if pend: pend.pop(0)()
        mm(acc1(1, 1), 1, g, Wf(g & 1, 1), g == 0)
        for _ in range(2):
            if pend: pend.pop(0)()
    assert not pend
    stamp("r1_mfma")
    a.nop(8)
    for rtl in range(2):
        for ct in range(2):
            b = acc1(rtl, ct); o = 160 + 8 * (2 * rtl + ct)
            if (rtl, ct) == (1, 1): a.nop(0)
            for q in range(8):
                if T: a("v_pk_mul_f32 %s, %s, %s" % (vr(b + 2 * q, 2), vr(b + 2 * q, 2), sSCL))
            for q in range(8):
                a("v_cvt_pk_bf16_f32 v%d, v%d, v%d" % (o + q, b + 2 * q, b + 2 * q + 1))
            for m in range(2):
                if T:
                    a.vm("buffer_store_dwordx4 %s, v28, %s, %s offen offset:%d sc1" % (vr(o + 4 * m, 4), WS, sRTL2 if rtl else "0", ct * 2048 + m * 1024), "st1")
                else:
                    a.vm("buffer_store_dwordx4 %s, v%d, %s, 0 offen offset:%d sc1" % (vr(o + 4 * m, 4), 28 + ct, WS, rtl * 2048 + m * 1024), "st1")
    if not T:
        for rtl in range(2):
            a.vm("buffer_store_dwordx4 v[56:59], v31, %s, 0 offen offset:%d sc1" % (WS, rtl * 2048), "st1")
    stamp("r1_stored")
    a("s_waitcnt lgkmcnt(0)")
    a.lgq = []
    a("s_add_u32 %s, %s, 0x9e3779b1" % (sTAG, sTAG))
    a("v_mov_b32 v242, %s" % sTAG)
    a("v_cmp_eq_u32 vcc, 0, v1\nv_mov_b32 v48, %d\ns_add_u32 s75, s97, %d\nv_mov_b32 v49, s75\nv_cndmask_b32 v243, v48, v49, vcc" % (OOB, F1))
    FLAG_AT = 17
    for g in range(28):
        a.dswait(100 + g)
        mm(acc2(0), 0, g, W4(g), g == 0)
        if g < 26:
            for r in reads2(g + 2): r()
        mm(acc2(1), 1, g, W4(g), g == 0)
        if g == FLAG_AT:
            a.vmwait("st1")
            a.vm("buffer_store_dword v242, v243, %s, 0 offen sc1" % WS, "flag")
    stamp("r2_mfma")

nst = len(STAMPS)
p1(True)
a("s_branch L_join")
a.label("L_p1N")
del STAMPS[nst:]
p1(False)
a("s_branch L_join")

a.label("L_gate")
srd(OUT, pOut[0], pOut[1], 2048 * 896)
srd(WOA, pWoA[0], pWoA[1], 448 * 896)
srd(WOB, pWoB[0], pWoB[1], 448 * 896)
srd(GW, pG[0], pG[1], 896)
a.vmq = []
a("s_lshl_b32 s75, %s, 7\ns_sub_u32 s76, %s, 14\ns_lshl_b32 s76, s76, 6\ns_add_u32 s75, s75, s76\ns_lshl_b32 s76, s3, 4\ns_add_u32 s75, s75, s76" % (sRB, sJ))
a("v_lshrrev_b32 v48, 3, v1\nv_add_u32 v48, s75, v48\nv_and_b32 v49, 7, v1\nv_lshlrev_b32 v49, 4, v49")
a("v_mul_u32_u24 v50, 896, v48\nv_add_u32 v50, v50, v49\nv_add_u32 v51, %d, v50" % (8 * 896))
for i in range(7):
    a.vm("buffer_load_dwordx4 %s, v49, %s, 0 offen offset:%d" % (vr(64 + 4 * i, 4), GW, 128 * i))
    a.vm("buffer_load_dwordx4 %s, v50, %s, 0 offen offset:%d" % (vr(96 + 4 * i, 4), X, 128 * i))
    a.vm("buffer_load_dwordx4 %s, v51, %s, 0 offen offset:%d" % (vr(128 + 4 * i, 4), X, 128 * i))
a("v_mov_b32 v52, 0\nv_mov_b32 v53, 0")
a("v_lshlrev_b32 v48, 2, v48\nv_add_u32 v48, %d, v48\nv_mov_b32 v54, %d\nv_cmp_eq_u32 vcc, 0, v49\ns_nop 1\nv_cndmask_b32 v48, v54, v48, vcc" % (G_OFF, OOB))
a.vmwait_all()
for i in range(28):
    a("v_dot2_f32_bf16 v52, v%d, v%d, v52" % (64 + i, 96 + i))
    a("v_dot2_f32_bf16 v53, v%d, v%d, v53" % (64 + i, 128 + i))
a.nop(3)
for dpp in ("quad_perm:[1,0,3,2]", "quad_perm:[2,3,0,1]", "row_half_mirror"):
    a("v_add_f32_dpp v52, v52, v52 %s row_mask:0xf bank_mask:0xf" % dpp)
    a("v_add_f32_dpp v53, v53, v53 %s row_mask:0xf bank_mask:0xf" % dpp)
    a.nop(2)
for r in (52, 53):
    a("v_mul_f32 v%d, 0x%x, v%d\nv_exp_f32 v%d, v%d\ns_nop 0\nv_add_f32 v%d, 1.0, v%d\nv_rcp_f32 v%d, v%d\ns_nop 0" % (r, f32(-LOG2E), r, r, r, r, r, r, r))
a.vm("buffer_store_dword v52, v48, %s, 0 offen sc1" % WS)
a.vm("buffer_store_dword v53, v48, %s, 0 offen offset:32 sc1" % WS)
a("s_waitcnt lgkmcnt(0)")
a("s_add_u32 %s, %s, 0x9e3779b1" % (sTAG, sTAG))
a("v_mov_b32 v242, %s" % sTAG)
a("s_lshl_b32 s75, %s, 4\ns_add_u32 s75, s75, %s\ns_lshl_b32 s75, s75, 7\ns_lshl_b32 s76, s3, 2\ns_add_u32 s97, s75, s76" % (sJ, sRB))
a("v_cmp_eq_u32 vcc, 0, v1\nv_mov_b32 v48, %d\ns_add_u32 s75, s97, %d\nv_mov_b32 v49, s75\nv_cndmask_b32 v243, v48, v49, vcc" % (OOB, F1))
a("v_mov_b32 v30, %d\ns_mov_b32 %s, 0" % (OOB, sRTL2))
a.vmwait_all()
a.vm("buffer_store_dword v242, v243, %s, 0 offen sc1" % WS)

a.label("L_join")
a.vmq = []; a.lgq = []
vPOLL, vK, vV, vTMP, vG = "v244", "v245", "v246", "v247", "v248"
vIDX = "v240"
a("""
s_add_u32 s73, %s, 7
s_lshr_b32 s73, s73, 1
s_add_u32 s74, %s, 7
s_lshr_b32 s74, s74, 1
s_add_u32 s75, %s, 14
s_lshr_b32 s75, s75, 1
s_add_u32 s76, %s, 14
s_lshr_b32 s76, s76, 1
s_lshr_b32 s77, %s, 1
s_lshr_b32 s78, %s, 1
s_lshr_b32 s83, s3, 1
s_add_u32 s83, s83, 14
""" % (sC0, sC1, sC0, sC1, sC0, sC1))
lane_select("v48", [(0, "s73"), (4, "s74"), (8, "s75"), (12, "s76"), (16, "s77"), (17, "s78"), (18, "s83")], "v49")
a("s_lshl_b32 s73, s3, 2\nv_and_b32 v49, 3, v1\nv_add_u32 v49, s73, v49\nv_mov_b32 v50, %s\nv_cmp_le_u32 vcc, 16, v1\ns_nop 1\nv_cndmask_b32 v49, v49, v50, vcc" % sQB)
a("v_lshl_add_u32 v48, v48, 4, v49\nv_lshlrev_b32 v48, 7, v48\nv_add_u32 %s, %d, v48" % (vPOLL, F1))
poll_issue(52, 4, vPOLL, "poll")
a("s_lshl_b32 s73, %s, 9" % sU0)
a("s_mul_i32 s74, s3, %d\ns_add_u32 s74, s74, s73\ns_add_u32 s74, s74, %d\nv_add_u32 %s, s74, v2" % (16 * T_TILE, T_OFF + 7 * 4096, vK))
a("s_lshl_b32 s74, %s, 17\ns_lshl_b32 s75, s3, 15\ns_add_u32 s74, s74, s75\ns_add_u32 s74, s74, %d\nv_add_u32 %s, s74, v2" % (sH, N_OFF, vV))
a("s_mul_i32 s74, %s, %d\ns_add_u32 s74, s74, s73\nv_add_u32 %s, s74, v2" % (sQB, 4 * T_TILE, vTMP))
a("s_mov_b32 s84, 0x%x\ns_mov_b32 s85, s84\ns_mov_b32 s94, 0x%x\ns_mov_b32 s95, s94" % (f32(LOG2E), f32(1e-6)))
a.nop(4)
for rtl in range(2):
    b = acc2(rtl)
    for q in range(8):
        a("v_pk_mul_f32 %s, %s, %s" % (vr(64 + 2 * q, 2), vr(b + 2 * q, 2), sSCL))
    for q in range(16):
        a("v_exp_f32_e64 v%d, v%d clamp" % (64 + q, 64 + q))
    for q in range(16):
        a("v_max_f32 v%d, 0, v%d" % (b + q, b + q))
    for q in range(8):
        a("v_pk_add_f32 %s, %s, %s" % (vr(b + 2 * q, 2), vr(b + 2 * q, 2), vr(64 + 2 * q, 2)))
    for q in range(8):
        a("v_pk_add_f32 %s, %s, s[94:95]" % (vr(b + 2 * q, 2), vr(b + 2 * q, 2)))
    for q in range(8):
        a("v_cvt_pk_bf16_f32 v%d, v%d, v%d" % (160 + 8 * rtl + q, b + 2 * q, b + 2 * q + 1))
stamp("phi")
poll_check(52, 4, vPOLL, "poll")
stamp("f1_seen")
def Qf(tau, m): return 192 + 8 * tau + 4 * m
def KV(b, k): return ar(80 + 16 * b + 4 * k, 4)
def Oacc(tau): return vr(224, 16) if tau == 3 else ar(16 * tau, 16)
def Sb(tau): return 64 + 16 * tau
def load_q():
    for tau in range(4):
        a("s_add_u32 s73, s3, %d\ns_and_b32 s73, s73, 3\ns_mul_i32 s73, s73, %d" % (1 + tau, T_TILE))
        for m in range(2):
            a.vm("buffer_load_dwordx4 %s, %s, %s, s73 offen offset:%d sc1" % (vr(Qf(tau, m), 4), vTMP, WS, 1024 * m), "q")
def kv_offsets(kt): return ["s_mov_b32 %s, %d" % (sSK, kt * T_TILE), "s_mov_b32 %s, %d" % (sSV, kt * 2048)]
def load_kv(kt):
    for m in range(2):
        a.vm("buffer_load_dwordx4 %s, %s, %s, %s offen offset:%d sc1" % (KV(kt & 3, m), vK, WS, sSK, 1024 * m), "kv%d" % kt)
    for m in range(2):
        a.vm("buffer_load_dwordx4 %s, %s, %s, %s offen offset:%d sc1" % (KV(kt & 3, 2 + m), vV, WS, sSV, 1024 * m), "kv%d" % kt)
load_q()
for kt in range(4):
    for x in kv_offsets(kt): a(x)
    load_kv(kt)
a("s_lshl_b32 s73, %s, 2\ns_add_u32 s73, s73, s3\ns_lshl_b32 s73, s73, 7\ns_add_u32 s73, s73, %d\nv_and_b32 v48, 31, v1\nv_lshlrev_b32 v48, 2, v48" % (sQB, G_OFF))
a.vm("buffer_load_dword %s, v48, %s, s73 offen sc1" % (vG, WS), "g")
for rtl in range(2):
    for m in range(2):
        a.vm("buffer_store_dwordx4 %s, v30, %s, %s offen offset:%d sc1" % (vr(160 + 8 * rtl + 4 * m, 4), WS, sRTL2 if rtl else "0", 1024 * m), "st2")
a("s_barrier")
a("s_mul_i32 s73, s3, %d" % (14 * 1024))
for half, reg in ((0, WOB), (1, WOA)):
    for i in range(14):
        a("s_add_u32 m0, s73, %d\ns_mov_b32 s74, %d" % (half * 57344 + i * 1024, i * 8 * 896))
        a.vm("buffer_load_dwordx4 v241, %s, s74 offen lds" % reg, "wo")
a("s_cmp_eq_u32 %s, 0\ns_mov_b32 s86, 0\ns_cselect_b32 s87, -1, 0\ns_cselect_b32 s88, 0, -1\ns_mov_b32 s89, 0" % sODD)
a("v_mov_b32 %s, 0xdddddddd\nv_mov_b32 v249, 0" % vIDX)
def zero_o():
    for i in range(48): a("v_accvgpr_write_b32 a%d, 0" % i)
    for i in range(16): a("v_mov_b32 v%d, 0" % (224 + i))
zero_o()
vFL, vP2, vB1a, vB1b, vSL, vOS = "v250", "v251", "v252", "v253", "v254", "v31"
a("v_cmp_eq_u32 s[90:91], 0, v1")
a("s_lshl_b32 s96, %s, 4\ns_add_u32 s96, s96, %s\ns_lshl_b32 s96, s96, 7\ns_lshl_b32 s73, s3, 2\ns_add_u32 s96, s96, s73" % (sH, sQB))
def flag_store(soff, base):
    a("s_add_u32 s73, %s, %d\nv_mov_b32 v48, %d\nv_mov_b32 v49, s73\nv_cndmask_b32 %s, v48, v49, %s" % (soff, base, OOB, vFL, sMZ))
    a.vm("buffer_store_dword v242, %s, %s, 0 offen sc1" % (vFL, WS), "flag")
a("""
s_add_u32 s73, %s, 23
s_add_u32 s74, %s, 23
s_add_u32 s75, %s, 16
s_add_u32 s76, %s, 16
s_add_u32 s77, %s, 21
s_lshr_b32 s77, s77, 1
s_add_u32 s78, %s, 21
s_lshr_b32 s78, s78, 1
""" % (sC0, sC1, sC0, sC1, sC0, sC1))
lane_select("v48", [(0, "s73"), (1, "s74"), (2, "s75"), (3, "s76"), (4, "s77"), (5, "s78")], "v49")
a("s_lshl_b32 s73, %s, 7\ns_add_u32 s73, s73, %d\nv_lshlrev_b32 v48, 11, v48\nv_add_u32 %s, s73, v48" % (sQB, F1, vP2))
a("s_lshl_b32 s73, %s, 17\ns_lshl_b32 s74, %s, 13\ns_add_u32 s73, s73, s74\ns_add_u32 s73, s73, %d" % (sH, sQB, N_OFF + N_KIND))
a("v_lshrrev_b32 v48, 4, v1\nv_and_b32 v49, 15, v1\nv_lshlrev_b32 v49, 4, v49\nv_lshl_add_u32 v48, v48, 9, v49")
a("s_and_b32 s74, s3, 1\ns_lshl_b32 s74, s74, 8\ns_add_u32 s74, s74, s73\nv_add_u32 %s, s74, v48" % vB1b)
a("s_lshr_b32 s74, s3, 1\ns_lshl_b32 s74, s74, 8\ns_add_u32 s74, s74, s73\ns_add_u32 s74, s74, %d\nv_add_u32 %s, s74, v48" % (N_KIND, vB1a))
a("s_lshl_b32 s73, %s, 16\ns_lshl_b32 s74, s3, 10\ns_add_u32 s73, s73, s74\ns_add_u32 s73, s73, %d\nv_add_u32 %s, s73, v2" % (sH, SLAB_OFF, vSL))
a("s_lshl_b32 s73, %s, 2\ns_add_u32 s73, s73, s3\ns_mul_i32 s73, s73, %d\ns_add_u32 s73, s73, %d" % (sQB, O_TILE, O_OFF))
a("s_add_u32 s74, %s, %s\ns_lshl_b32 s74, s74, 9\ns_add_u32 s74, s74, s73\nv_add_u32 v28, s74, v2" % (sU0, sODD))
a("v_cmp_gt_u32 vcc, 32, v1\nv_mov_b32 v48, %d\nv_add_u32 v49, 1024, v28\nv_cndmask_b32 v29, v48, v49, vcc" % OOB)
a("s_cmp_eq_u32 %s, 0\ns_cselect_b32 s74, %d, 8\ns_lshl_b32 s75, %s, 9\ns_add_u32 s74, s74, s75\ns_add_u32 s74, s74, s73\ns_sub_u32 s74, s74, 512" % (sODD, 3 * 512, sU0))
a("v_add_u32 v49, s74, v2\nv_cndmask_b32 v31, v49, v48, vcc")
a.vmwait("q")
for tau in range(4):
    for k in (2, 3): a("v_cndmask_b32 v%d, v%d, v249, %s" % (Qf(tau, 1) + k, Qf(tau, 1) + k, sMA))
    for k in (0, 1): a("v_cndmask_b32 v%d, v%d, v249, %s" % (Qf(tau, 0) + k, Qf(tau, 0) + k, sMB))
a.vmwait("kv0")
stamp("attn_start")

def store_o(c, half, tag):
    a("s_mov_b32 s73, %d" % (half * 56 * 512))
    a.vm("buffer_store_dwordx4 %s, v28, %s, s73 offen sc1" % (vr(c, 4), WS), tag)
    a.vm("buffer_store_dwordx4 %s, v29, %s, s73 offen sc1" % (vr(c + 4, 4), WS), tag)
    a.vm("buffer_store_dwordx2 %s, v31, %s, s73 offen sc1" % (vr(c + 4, 2), WS), tag)
def bcast_hi(dst, src, t):
    a("v_mov_b32 %s, %s\nv_mov_b32 %s, %s\ns_nop 1\nv_permlane32_swap_b32 %s, %s" % (t, src, dst, src, t, dst))

def hook_f2():
    a.vmwait("st2")
    flag_store("s97", F2)
def hook_poll2(): poll_issue(52, 4, vP2, "poll")
def hook_b1_load():
    poll_check(52, 4, vP2, "poll")
    for k in range(4):
        a("s_mov_b32 s73, %d" % (2048 * k))
        a.vm("buffer_load_dwordx4 %s, %s, %s, s73 offen sc1" % (vr(128 + 8 * k, 4), vB1a, WS), "b1")
        a.vm("buffer_load_dwordx4 %s, %s, %s, s73 offen sc1" % (vr(132 + 8 * k, 4), vB1b, WS), "b1")
    a("s_mul_i32 s73, s3, %d\ns_add_u32 s73, s73, %d" % (T_TILE, 14 * 4096))
    for m in range(2):
        a.vm("buffer_load_dwordx4 %s, %s, %s, s73 offen offset:%d sc1" % (vr(40 + 4 * m, 4), vTMP, WS, 1024 * m), "b1")
def hook_b1():
    a.vmwait("b1")
    for k in range(4):
        a("v_mfma_f32_16x16x32_bf16 v[160:163], %s, %s, %s" % (vr(128 + 8 * k, 4), vr(132 + 8 * k, 4), "v[160:163]" if k else "0"))
def hook_b1_store():
    a("s_lshl_b32 s73, %s, 12" % sQB)
    a.vm("buffer_store_dwordx4 v[160:163], %s, %s, s73 offen sc1" % (vSL, WS), "slab")
def hook_f3():
    a.vmwait("slab")
    flag_store("s96", F3)
    a("s_lshl_b32 s73, %s, 11\ns_lshl_b32 s74, s3, 2\ns_add_u32 s73, s73, s74\ns_add_u32 s73, s73, %d\nv_and_b32 v48, 15, v1\nv_lshlrev_b32 v48, 7, v48\nv_add_u32 %s, s73, v48" % (sH, F3, vP2))
def hook_poll3(): poll_issue(52, 1, vP2, "poll")
def hook_b2_load():
    poll_check(52, 1, vP2, "poll")
    for k in range(16):
        a("s_mov_b32 s73, %d" % (4096 * k))
        a.vm("buffer_load_dwordx4 %s, %s, %s, s73 offen sc1" % (vr(128 + 4 * k, 4), vSL, WS), "b2")
def hook_b2_sum():
    a.vmwait("b2")
    for step in (32, 16, 8, 4):
        for k in range(0, step, 2):
            a("v_pk_add_f32 %s, %s, %s" % (vr(128 + k, 2), vr(128 + k, 2), vr(128 + step + k, 2)))
    a("s_lshr_b32 s73, s3, 1\ns_lshl_b32 s73, s73, 2\ns_cmp_eq_u32 %s, 0\ns_cselect_b32 s74, 7, 0\ns_sub_u32 s74, s74, s73" % sODD)
    a("v_lshrrev_b32 v48, 4, v1\nv_cmp_eq_u32 vcc, s74, v48")
    a("v_cvt_pk_bf16_f32 v50, v128, v129\nv_cvt_pk_bf16_f32 v51, v130, v131")
    a("v_cndmask_b32 v50, v50, v249, vcc\nv_cndmask_b32 v51, v51, v249, vcc")
    a("s_lshl_b32 s73, s73, 8\ns_and_b32 s74, s3, 1\ns_lshl_b32 s74, s74, 8\ns_add_u32 s73, s73, s74\ns_add_u32 s73, s73, %d" % RED)
    a("v_and_b32 v49, 15, v1\nv_lshlrev_b32 v49, 4, v49\nv_and_b32 v53, 1, v48\nv_lshl_add_u32 v49, v53, 9, v49\nv_lshrrev_b32 v53, 1, v48\nv_lshl_add_u32 v49, v53, 3, v49\nv_add_u32 v49, s73, v49")
    a.ds("ds_write_b64 v49, v[50:51]", "kvw")
def hook_b2_read():
    a.dswait_all()
    a("s_barrier")
    a("v_add_u32 v48, %d, v2" % RED)
    a.ds("ds_read_b128 v[128:131], v48", "kvr")
    a.ds("ds_read_b128 v[132:135], v48 offset:1024", "kvr")
def hook_b2_mfma():
    a.dswait_all()
    mfma("v[144:159]", "v[128:131]", "v[40:43]", True)
    mfma("v[144:159]", "v[132:135]", "v[44:47]")
def hook_b2_out():
    bcast_hi("v48", "v156", "v49")
    a("v_add_f32 v48, 0x%x, v48\nv_rcp_f32 v48, v48\nv_sub_f32 v49, 1.0, %s\nv_mul_f32 v48, v48, v49\nv_mov_b32 v49, v48" % (f32(1e-6), vG))
    for q in range(8):
        a("v_pk_mul_f32 %s, %s, v[48:49]" % (vr(144 + 2 * q, 2), vr(144 + 2 * q, 2)))
    for q in range(8):
        a("v_cvt_pk_bf16_f32 v%d, v%d, v%d" % (128 + q, 144 + 2 * q, 145 + 2 * q))
    store_o(128, 1, "ob")
def hook_f4():
    a.vmwait("ob")
    flag_store("s96", F4)
    a("s_lshl_b32 s73, %s, 1\ns_and_b32 s74, s3, 1\ns_add_u32 s73, s73, s74\ns_lshr_b32 s74, s73, 2\ns_lshl_b32 s74, s74, 7\ns_and_b32 s75, s73, 3\ns_lshl_b32 s75, s75, 2\ns_add_u32 s74, s74, s75\ns_add_u32 s74, s74, %d" % (sRB2, F4))
    a("v_and_b32 v48, 15, v1\nv_lshlrev_b32 v48, 11, v48\nv_add_u32 %s, s74, v48" % vP2)
    a("s_mul_i32 s73, s73, %d\ns_add_u32 s73, s73, %d\nv_add_u32 %s, s73, v2" % (O_TILE, O_OFF, vB1a))
def hook_poll4(): poll_issue(52, 1, vP2, "poll")
HOOKS = {7: hook_f2, 12: hook_poll2, 16: hook_b1_load, 21: hook_b1, 22: hook_b1_store, 29: hook_f3, 34: hook_poll3,
         38: hook_b2_load, 43: hook_b2_sum, 44: hook_b2_read, 45: hook_b2_mfma, 46: hook_b2_out, 54: hook_f4, 60: hook_poll4}

def M(n, m):
    kt, tau = n >> 2, n & 3
    mfma(vr(Sb(tau), 16), KV(kt & 3, m), vr(Qf(tau, m), 4), m == 0)
def P(n, m):
    kt, tau = n >> 2, n & 3
    a("v_smfmac_f32_32x32x32_bf16 %s, %s, %s, %s" % (Oacc(tau), KV(kt & 3, 2 + m), vr(Sb(tau) + 8 * m, 8), vIDX))
def E(n, q):
    for k in range(4 * q, 4 * q + 4): a("v_exp_f32 v%d, v%d" % (Sb(n & 3) + k, Sb(n & 3) + k))
a.nop(1)
M(0, 0); M(0, 1)
a.nop(11)
for n in range(64):
    ld = (n & 3) == 0 and n >= 4 and n // 4 + 3 < 16
    if n < 63: M(n + 1, 0)
    if ld: a(kv_offsets(n // 4 + 3)[0])
    E(n, 0)
    if n < 63: M(n + 1, 1)
    if ld: a(kv_offsets(n // 4 + 3)[1])
    E(n, 1)
    if n > 0: P(n - 1, 1)
    if ld: load_kv(n // 4 + 3)
    E(n, 2)
    P(n, 0)
    if (n & 3) == 2 and n + 2 < 64: a.vmwait("kv%d" % ((n + 2) // 4))
    E(n, 3)
    if n in HOOKS: HOOKS[n]()
a.nop(2)
P(63, 1)
stamp("attn_end")

a.label("L_reduce")
vmq_red = list(a.vmq)
a("s_barrier")
for tau in range(3):
    a("s_add_u32 s73, s3, %d\ns_and_b32 s73, s73, 3\ns_mul_i32 s73, s73, 12288\ns_add_u32 s73, s73, %d\nv_add_u32 v48, s73, v2" % (1 + tau, RED + tau * 4096))
    if tau == 2: a.nop(4)
    for i in range(4):
        a.ds("ds_write_b128 v48, %s offset:%d" % (ar(16 * tau + 4 * i, 4), 1024 * i))
a("s_mul_i32 s73, s3, 12288\ns_add_u32 s73, s73, %d\nv_add_u32 v48, s73, v2" % RED)
a.dswait_all()
a("s_barrier")
for k in range(12):
    a.ds("ds_read_b128 %s, v48 offset:%d" % (vr(64 + 4 * k, 4), 1024 * k), k // 4)
for s in range(3):
    a.dswait(s)
    for q in range(8):
        a("v_pk_add_f32 %s, %s, %s" % (vr(224 + 2 * q, 2), vr(224 + 2 * q, 2), vr(64 + 16 * s + 2 * q, 2)))
bcast_hi("v48", "v236", "v49")
a("v_rcp_f32 v50, v48\nv_mov_b32 v128, 0\nv_mov_b32 v129, 0\nv_mul_f32 v50, v50, %s\nv_mov_b32 v51, v50" % vG)
for q in range(8):
    a("v_pk_mul_f32 %s, %s, v[50:51]" % (vr(64 + 2 * q, 2), vr(224 + 2 * q, 2)))
for q in range(8):
    a("v_cvt_pk_bf16_f32 v%d, v%d, v%d" % (80 + q, 64 + 2 * q, 65 + 2 * q))
store_o(80, 0, "oa")
stamp("oa_stored")
for q in range(8):
    a("v_pk_fma_f32 v[128:129], %s, 0, v[128:129] op_sel_hi:[1,0,1]" % vr(224 + 2 * q, 2))
a("v_add_f32 v128, v128, v129\nv_add_f32 v48, v48, v128")
a("v_cmp_nle_f32 vcc, 0x%x, v48\ns_mov_b64 s[94:95], vcc\nv_cmp_nge_f32 vcc, 0x%x, v48\ns_or_b64 vcc, vcc, s[94:95]" % (f32(2.0 ** -64), f32(2.0 ** 64)))
a("s_cmp_lg_u64 vcc, 0\ns_cselect_b32 s74, 1, %d" % (1 if FORCE_FB else 0))
a("s_mul_i32 s73, s3, 12288\ns_add_u32 s73, s73, %d\nv_mov_b32 v48, s73\nv_mov_b32 v49, s74" % RED)
a.ds("ds_write_b32 v48, v49")
a("v_and_b32 v48, 3, v1\nv_mul_u32_u24 v48, 12288, v48\nv_add_u32 v48, %d, v48" % RED)
a.dswait_all()
a("s_barrier")
a.ds("ds_read_b32 v49, v48")
poll_check(52, 1, vP2, "poll")
def OBf(g): return ar(144 + 4 * g, 4)
for g in range(28):
    if g % 4 == 0: a("s_mov_b32 s73, %d" % (28672 + g * 1024))
    a.vm("buffer_load_dwordx4 %s, %s, %s, s73 offen offset:%d sc1" % (OBf(g), vB1a, WS, (g % 4) * 1024), "obf%d" % g)
a.dswait_all()
a("v_cmp_ne_u32 vcc, 0, v49\ns_cmp_lg_u64 vcc, 0\ns_cselect_b32 s73, 1, 0\ns_andn2_b32 s73, s73, %s\ns_cmp_lg_u32 s73, 0" % sFB)
a("s_cbranch_scc1 L_fallback")
a("v_and_b32 v51, 3, v1\nv_and_b32 v53, 1, v51\nv_lshrrev_b32 v51, 1, v51\nv_lshl_or_b32 v51, v53, 1, v51")
a("v_bfe_u32 v53, v1, 4, 1\nv_lshl_or_b32 v51, v53, 2, v51\nv_lshrrev_b32 v50, 5, v1")
a("v_bfe_u32 v53, v1, 2, 2\nv_lshl_add_u32 v53, v50, 3, v53\nv_lshlrev_b32 v53, 7, v53\nv_lshl_add_u32 v53, v51, 3, v53")
a("v_bfe_u32 v51, v1, 3, 1\nv_lshl_or_b32 v53, v51, 6, v53\ns_lshr_b32 s74, s3, 1\ns_lshl_b32 s75, s74, 6\nv_xor_b32 v20, s75, v53\nv_add_u32 v21, 57344, v20")
a("v_add_u32 %s, %d, %s" % (vP2, F5 - F4, vP2))
a.vmwait("oa")
flag_store("s96", F5)
stamp("f5_sent")
a("s_cmp_eq_u32 %s, 0" % sP3)
a("s_cbranch_scc1 L_fin")
def wo_reads(base, g): return [lambda e=e: a.ds("ds_read_b64_tr_b16 %s, %s offset:%d" % (W4(g, e), base, g * 2048 + e * 512), ("w", base, g)) for e in range(2)]
for g in range(3):
    for r in wo_reads("v20", g): r()
for g in range(28):
    a.vmwait("obf%d" % g)
    a.dswait(("w", "v20", g))
    mfma("v[64:79]", W4(g), OBf(g), g == 0)
    if g < 25:
        for r in wo_reads("v20", g + 3): r()
    if g == 20: poll_issue(52, 1, vP2, "poll")
a("s_barrier")
stamp("p3b_done")
a("s_and_b32 s75, s3, 1\ns_mul_i32 s75, s75, 28672\ns_mul_i32 s74, s74, 14336\ns_add_u32 s76, s75, s74\nv_add_u32 v22, s75, v2")
a("s_lshl_b32 s77, %s, 1\ns_and_b32 s78, s3, 1\ns_add_u32 s77, s77, s78\ns_mul_i32 s77, s77, %d\ns_lshl_b32 s78, %s, 7\ns_add_u32 s77, s77, s78\ns_lshr_b32 s78, s3, 1\ns_lshl_b32 s78, s78, 6\ns_add_u32 s77, s77, s78" % (sRB2, 32 * 896, sCC))
a("v_and_b32 v23, 31, v1\nv_mul_u32_u24 v23, 896, v23\nv_lshl_add_u32 v23, v50, 4, v23\nv_add_u32 v23, s77, v23")
poll_check(52, 1, vP2, "poll")
stamp("f5_seen")
for i in range(14):
    if i % 4 == 0: a("s_add_u32 m0, s76, %d\ns_add_u32 s73, s74, %d" % (i * 1024, i * 1024))
    a.vm("buffer_load_dwordx4 %s, %s, s73 offen offset:%d sc1 lds" % (vB1a, WS, (i % 4) * 1024), "oaf")
for g in range(3):
    for r in wo_reads("v21", g): r()
a.vmwait("oaf")
a("s_barrier")
stamp("oa_landed")
def oa_read(g): a.ds("ds_read_b128 %s, v22 offset:%d" % (vr(96 + 4 * (g % 4), 4), g * 1024), ("o", g))
oa_read(0); oa_read(1); oa_read(2)
for g in range(28):
    a.dswait(("o", g)) if True else None
    a.dswait(("w", "v21", g))
    mfma("v[64:79]", W4(g), vr(96 + 4 * (g % 4), 4))
    if g < 25:
        for r in wo_reads("v21", g + 3): r()
        oa_read(g + 3)
a.nop(12)
for q in range(8):
    a("v_cvt_pk_bf16_f32 v%d, v%d, v%d" % (80 + q, 64 + 2 * q, 65 + 2 * q))
for m in range(2):
    a.vm("buffer_store_dwordx4 %s, v23, %s, 0 offen offset:%d" % (vr(80 + 4 * m, 4), OUT, 32 * m))
a("s_or_b32 s73, s2, s3\ns_cmp_lg_u32 s73, 0\ns_cbranch_scc1 L_fin")
a("v_mov_b32 v48, %d\nv_mov_b32 v49, %d\nv_cndmask_b32 v48, v48, v49, %s" % (OOB, EPOCH_OFF, sMZ))
a.vm("buffer_store_dword v242, v48, %s, 0 offen sc1" % WS)
a.label("L_fin")
stamp("end")
if STAMP:
    a("s_lshl_b32 s73, s2, 2\ns_add_u32 s73, s73, s3\ns_lshl_b32 s73, s73, 8\ns_add_u32 s73, s73, %d\nv_lshlrev_b32 v48, 2, v1\ns_nop 4" % STAMP_OFF)
    a("buffer_store_dword v255, v48, %s, s73 offen" % WS)
a.label("L_end")
a("s_endpgm")

a.label("L_fallback")
a("s_mov_b32 %s, 1" % sFB)
a("s_waitcnt vmcnt(0)")
for t in range(4): a("v_mov_b32 v%d, 0xff800000" % (128 + t))
a("s_mov_b32 %s, 0" % sSK)
a.label("L_fb1")
for m in range(2): a("buffer_load_dwordx4 %s, %s, %s, %s offen offset:%d sc1" % (KV(0, m), vK, WS, sSK, 1024 * m))
a("s_waitcnt vmcnt(0)")
for t in range(4):
    M(t, 0); M(t, 1)
a.nop(12)
for t in range(4):
    for q in range(8): a("v_max3_f32 v%d, v%d, v%d, v%d" % (128 + t, Sb(t) + 2 * q, Sb(t) + 2 * q + 1, 128 + t))
a("s_add_u32 %s, %s, %d\ns_cmp_lt_u32 %s, %d\ns_cbranch_scc1 L_fb1" % (sSK, sSK, T_TILE, sSK, 16 * T_TILE))
a("s_barrier")
for t in range(4):
    a("v_mov_b32 v48, v%d\nv_mov_b32 v49, v%d\ns_nop 1\nv_permlane32_swap_b32 v48, v49\nv_max_f32 v48, v48, v49" % (128 + t, 128 + t))
    a("s_add_u32 s73, s3, %d\ns_and_b32 s73, s73, 3\ns_lshl_b32 s73, s73, 10\ns_add_u32 s73, s73, %d\nv_lshlrev_b32 v50, 2, v1\nv_add_u32 v%d, s73, v50" % (1 + t, RED, 132 + t))
    a("s_lshl_b32 s73, s3, 8\nv_add_u32 v50, s73, v%d\nds_write_b32 v50, v48" % (132 + t))
a("s_waitcnt lgkmcnt(0)\ns_barrier")
for t in range(4):
    for k in range(4): a("ds_read_b32 v%d, v%d offset:%d" % (136 + k, 132 + t, 256 * k))
    a("s_waitcnt lgkmcnt(0)\nv_max3_f32 v136, v136, v137, v138\nv_max_f32 v%d, v136, v139" % (128 + t))
zero_o()
a("s_mov_b32 %s, 0\ns_mov_b32 %s, 0" % (sSK, sSV))
a.label("L_fb2")
for m in range(2): a("buffer_load_dwordx4 %s, %s, %s, %s offen offset:%d sc1" % (KV(0, m), vK, WS, sSK, 1024 * m))
for m in range(2): a("buffer_load_dwordx4 %s, %s, %s, %s offen offset:%d sc1" % (KV(0, 2 + m), vV, WS, sSV, 1024 * m))
a("s_waitcnt vmcnt(0)")
for t in range(4):
    M(t, 0); M(t, 1)
a.nop(12)
for t in range(4):
    for q in range(16): a("v_sub_f32 v%d, v%d, v%d" % (Sb(t) + q, Sb(t) + q, 128 + t))
    for q in range(16): a("v_exp_f32 v%d, v%d" % (Sb(t) + q, Sb(t) + q))
a.nop(2)
for t in range(4):
    P(t, 0); P(t, 1)
a.nop(12)
a("s_add_u32 %s, %s, %d\ns_add_u32 %s, %s, 2048\ns_cmp_lt_u32 %s, %d\ns_cbranch_scc1 L_fb2" % (sSK, sSK, T_TILE, sSV, sSV, sSV, 16 * 2048))
a("s_branch L_reduce")

probs = check(a.lines)
for p in sorted(set(probs)): print(p, file=sys.stderr)
hdr = open("cdna_kernels/%s.s.ref" % NAME).read().split("; Override launch")[0]
out = hdr + """; Fused single-launch kernel: QKV projections -> softmax attention + linear attention -> gated output projection.
; @launch grid=(256,1,1) block=(256,1,1) lds=%d
.amdgcn_target "amdgcn-amd-amdhsa--gfx950"
.text
.globl %s_kernel
.p2align 8
.type %s_kernel,@function
%s_kernel:
""" % (LDS_BYTES, NAME, NAME, NAME) + a.text() + """.section .rodata,"a"
.p2align 6
.amdhsa_kernel %s_kernel
  .amdhsa_next_free_vgpr 512
  .amdhsa_next_free_sgpr 102
  .amdhsa_accum_offset 256
  .amdhsa_group_segment_fixed_size 0
  .amdhsa_kernarg_size 80
  .amdhsa_user_sgpr_count 2
  .amdhsa_user_sgpr_kernarg_segment_ptr 1
  .amdhsa_system_sgpr_workgroup_id_x 1
.end_amdhsa_kernel
""" % NAME
dst = [x for x in sys.argv[1:] if not x.startswith("--")]
open(dst[0] if dst else "cdna_kernels/%s.s" % NAME, "w").write(out)
if STAMP: open("stamps.txt", "w").write("\n".join(STAMPS))
print("hazards:", len(set(probs)), "lines:", len(a.lines), file=sys.stderr)
```

```python
import sys, struct
from asmlib import Asm, check

NAME = "gated_mix__mha_block__linear_attn_block__prompt"
def flag(n): return ("--" + n) in sys.argv
def opt(n, d):
    for x in sys.argv:
        if x.startswith("--%s=" % n): return int(x.split("=")[1])
    return d
STAMP, FORCE_FB = flag("stamp"), flag("force-fallback")
SPINTO = opt("spinto", 0); ENC = opt("enc", -1)
AHEAD = 3
PDELAY = opt("pdelay", 16); PSLEEP = opt("psleep", 6); PACE = opt("pace", 2); HDELAY = opt("hdelay", 0); PREF = opt("pref", 1)
P5DELAY = opt("p5delay", 24); P3LATE = opt("p3late", 1); MPRIO = opt("mprio", 2)
HPRIO = opt("hprio", 1)
NOWAIT = flag("nowait")

T_OFF, T_TILE = 0, 21 * 4096
N_OFF, N_KIND = 0x540000, 0x200000
O_OFF, O_TILE = 0xB40000, 112 * 512
SLAB_OFF = 0xEC0000
G_OFF = 0xFC0000
F1, F2, F3, F4, F5 = [0xFC8000 + i * 0x8000 for i in range(5)]
EPOCH_OFF = 0xFF0000
STAMP_OFF = 0x1000000
WS_SIZE = 0x1100000
OOB = 0x40000000
RED = 106496
W2B = 98304
RSV = 155648
KVX = RSV + 1024
FIN = 57344
cM1, cW2, cH2, cF2, cWO, cWA, cF3, cKV, cF4, cREL, cRD, cVT, cFB0, cFB1, cFB2 = range(15)
LDS_BYTES = 163840
SPIN = 1 << 18

def f32(x): return struct.unpack("<I", struct.pack("<f", x))[0]
LOG2E = 1.4426950408889634
QSCALE = 28 ** -0.5 * LOG2E

X, W0, W1, W2, WS, OUT, WOA, WOB = ["s[%d:%d]" % (4 + 4 * i, 7 + 4 * i) for i in range(8)]
GW = W0
sTAG, sRB, sJ, sH, sQB, sU0, sODD, sRB2, sCC, sP3 = ["s%d" % i for i in range(60, 70)]
sC0, sC1, sRTL = "s70", "s71", "s72"
sCNT, sFB, sMX, sMWc = "s79", "s80", "s81", "s82"
sSCL = "s[84:85]"
sMA, sMB, sMZ = "s[86:87]", "s[88:89]", "s[90:91]"
sSK, sSV = "s92", "s93"
sF12, sF345 = "s97", "s96"
STAMPS = {}
vTAG, vFL, vPOLL, vZERO, vSTAMP, vRSV, vONE = "v30", "v29", "v28", "v27", "v31", "v17", "v16"

a = Asm()
def stamp(name):
    if name not in STAMPS: STAMPS[name] = len(STAMPS)
    if STAMP:
        a("s_memtime s[98:99]\ns_waitcnt lgkmcnt(0)\nv_writelane_b32 %s, s98, %d" % (vSTAMP, STAMPS[name]))
        a.lgq = []
    if ENC == STAMPS[name]:
        a("s_memrealtime s[100:101]\ns_waitcnt lgkmcnt(0)")
        a.lgq = []

def rstamp(name):
    if name not in STAMPS: STAMPS[name] = len(STAMPS)
    if STAMP:
        a("s_memrealtime s[98:99]\ns_waitcnt lgkmcnt(0)\nv_writelane_b32 %s, s98, %d" % (vSTAMP, STAMPS[name]))
def vr(b, n=1): return "v%d" % b if n == 1 else "v[%d:%d]" % (b, b + n - 1)
def mfma(d, A, B, zero=False): a("v_mfma_f32_32x32x16_bf16 %s, %s, %s, %s" % (d, A, B, "0" if zero else d))
def srd(reg, lo, hi, size):
    n = int(reg[2:].split(":")[0])
    a("s_mov_b32 s%d, %s\ns_mov_b32 s%d, %s\ns_mov_b32 s%d, %d\ns_mov_b32 s%d, 0x20000" % (n, lo, n + 1, hi, n + 2, size, n + 3))
def swap23(dst, src, t):
    a("v_and_b32 %s, 0x13, %s" % (dst, src))
    a("v_and_b32 %s, 4, %s" % (t, src))
    a("v_lshl_or_b32 %s, %s, 1, %s" % (dst, t, dst))
    a("v_lshrrev_b32 %s, 1, %s" % (t, src))
    a("v_and_or_b32 %s, %s, 4, %s" % (dst, t, dst))
def lane_select(dst, items, t):
    a("v_mov_b32 %s, %s" % (dst, items[0][1]))
    for lo, s in items[1:]:
        a("v_cmp_le_u32 vcc, %d, v1\nv_mov_b32 %s, %s\ns_nop 0\nv_cndmask_b32 %s, %s, %s, vcc" % (lo, t, s, dst, dst, t))
def poll(vdata, n, vaddr, sleep=0):
    top, done = a.newlabel("poll"), a.newlabel("polled")
    a.label(top)
    a("buffer_load_dword%s %s, %s, %s, 0 offen sc1" % ("x4" if n == 4 else "", vr(vdata, n), vaddr, WS))
    a("s_waitcnt vmcnt(0)")
    a.vmq = []
    a("v_cmp_ne_u32 vcc, %s, %s" % (sTAG, vr(vdata)))
    for k in range(1, n):
        a("v_cmp_ne_u32 s[94:95], %s, %s\ns_or_b64 vcc, vcc, s[94:95]" % (sTAG, vr(vdata + k)))
    a("s_cmp_eq_u64 vcc, 0\ns_cbranch_scc1 %s" % done)
    if sleep: a("s_sleep %d" % sleep)
    a("s_sub_u32 %s, %s, 1\ns_cbranch_scc0 %s\ns_mov_b32 %s, 0" % (sCNT, sCNT, top, sCNT))
    a.label(done)
def flag_store(soff, base, t0="v2", t1="v3"):
    a("s_add_u32 s73, %s, %d\nv_mov_b32 %s, %d\nv_mov_b32 %s, s73\nv_cndmask_b32 %s, %s, %s, %s" % (soff, base, t0, OOB, t1, vFL, t0, t1, sMZ))
    a.vm("buffer_store_dword %s, %s, %s, 0 offen sc1" % (vTAG, vFL, WS), "flag")
def arrive(c, rtn=False, val=None):
    a("s_mov_b64 exec, 1")
    if rtn: a("ds_add_rtn_u32 v2, %s, %s offset:%d" % (vRSV, val or vONE, 4 * c))
    else: a.ds("ds_add_u32 %s, %s offset:%d" % (vRSV, val or vONE, 4 * c))
    a("s_mov_b64 exec, -1")
    if rtn:
        a("s_waitcnt lgkmcnt(0)\nv_readfirstlane_b32 s83, v2"); a.lgq = []
def spin(c, target, sleep=1, mask=None):
    top, done = a.newlabel("spin"), a.newlabel("spun")
    a.label(top)
    a("ds_read_b32 v2, %s offset:%d\ns_waitcnt lgkmcnt(0)\nv_readfirstlane_b32 s83, v2" % (vRSV, 4 * c)); a.lgq = []
    if mask: a("s_and_b32 s94, s83, %d\ns_cmp_ge_u32 s94, %s" % (mask, target))
    else: a("s_cmp_ge_u32 s83, %s" % target)
    a("s_cbranch_scc1 %s" % done)
    if sleep: a("s_sleep %d" % sleep)
    a("s_sub_u32 %s, %s, 1\ns_cbranch_scc0 %s\ns_mov_b32 %s, 0" % (sCNT, sCNT, top, sCNT))
    a.label(done)
def publish(c, soff, base):
    skip = a.newlabel("nopub")
    arrive(c, True)
    a("s_cmp_lg_u32 s83, 3\ns_cbranch_scc1 %s" % skip)
    flag_store(soff, base)
    a.label(skip)
def group_poll(phase, delay=0, sleep=4):
    oth, done = a.newlabel("rel"), a.newlabel("reld")
    a("s_cmp_lg_u32 s3, 0\ns_cbranch_scc1 %s" % oth)
    if delay: a("s_sleep %d" % delay)
    poll(4, 1, vPOLL, sleep)
    arrive(cREL)
    a("s_branch %s" % done)
    a.label(oth)
    a("s_waitcnt vmcnt(0)")
    spin(cREL, phase, 3)
    a.label(done)
    a.vmq = []; a.lgq = []
def pace():
    if PACE and len(a.vmq) > PACE:
        a("s_waitcnt vmcnt(%d)" % PACE); a.vmq = a.vmq[-PACE:]
def get_tag():
    a("s_waitcnt lgkmcnt(0)"); a.lgq = []
    a("s_add_u32 %s, %s, 0x9e3779b1\nv_mov_b32 %s, %s" % (sTAG, sTAG, vTAG, sTAG))
def bcast_hi(dst, src, t):
    a("v_mov_b32 %s, %s\nv_mov_b32 %s, %s\ns_nop 1\nv_permlane32_swap_b32 %s, %s" % (t, src, dst, src, t, dst))
def tr_addr(dst, perm, t0, t1, t2):
    a("v_and_b32 %s, 3, v1" % t0)
    if perm: a("v_and_b32 %s, 1, %s\nv_lshrrev_b32 %s, 1, %s\nv_lshl_or_b32 %s, %s, 1, %s" % (t1, t0, t0, t0, t0, t1, t0))
    a("v_bfe_u32 %s, v1, 4, 1\nv_lshl_or_b32 %s, %s, 2, %s" % (t1, t0, t1, t0))
    a("v_bfe_u32 %s, v1, 2, 2\nv_lshrrev_b32 %s, 5, v1\nv_lshl_add_u32 %s, %s, 3, %s" % (t1, t2, t1, t2, t1))
    a("v_lshlrev_b32 %s, 7, %s\nv_lshl_add_u32 %s, %s, 3, %s" % (t1, t1, t1, t0, t1))
    a("v_bfe_u32 %s, v1, 3, 1\nv_lshl_or_b32 %s, %s, 6, %s" % (t0, dst, t0, t1))
def x_addr(base, T, srow, t):
    a("v_and_b32 %s, 31, v1" % t[0])
    if T: a("v_mov_b32 %s, %s" % (t[1], t[0]))
    else: swap23(t[1], t[0], t[2])
    a("v_lshrrev_b32 %s, 5, v1\nv_lshrrev_b32 %s, 1, %s\nv_and_b32 %s, 7, %s" % (t[2], t[3], t[1], t[3], t[3]))
    a("v_lshlrev_b32 %s, 7, %s\nv_add_u32 %s, %s, %s" % (t[1], t[1], t[1], srow, t[1]))
    for k in range(4):
        a("v_add_u32 %s, %d, %s\nv_xor_b32 %s, %s, %s\nv_lshl_add_u32 v%d, %s, 4, %s" % (t[0], 2 * k, t[2], t[0], t[0], t[3], base + k, t[0], t[1]))
        a("v_add_u32 v%d, 65536, v%d" % (base + 4 + k, base + k))
def n_addr(dst, sbase, vf, isV, t):
    a("s_mov_b32 s78, 2341")
    a("v_mul_lo_u32 %s, s78, %s\nv_lshrrev_b32 %s, 16, %s" % (t[0], vf, t[0], t[0]))
    a("v_mul_u32_u24 %s, 28, %s\nv_sub_u32 %s, %s, %s" % (t[1], t[0], t[1], vf, t[1]))
    a("v_and_b32 %s, 1, %s\nv_lshlrev_b32 %s, 2, %s" % (t[2], t[0], t[2], t[2]))
    if isV: a("v_sub_u32 %s, %s, %s\nv_add_u32 %s, 28, %s\nv_min_u32 %s, %s, %s" % (t[1], t[1], t[2], t[3], t[1], t[1], t[1], t[3]))
    else: a("v_add_u32 %s, %s, %s" % (t[1], t[1], t[2]))
    swap23(t[3], t[1], t[2])
    a("v_lshlrev_b32 %s, 17, %s\nv_lshl_add_u32 %s, %s, 4, %s\nv_lshrrev_b32 %s, 5, v1\nv_lshl_add_u32 %s, %s, 9, %s\nv_add_u32 %s, %s, %s" % (t[0], t[0], t[0], t[3], t[0], t[1], t[0], t[1], t[0], dst, sbase, t[0]))
def o_addr(b, vL16, t0, t1):
    a("s_lshl_b32 s73, %s, 2\ns_add_u32 s73, s73, s3\ns_mul_i32 s73, s73, %d\ns_add_u32 s73, s73, %d" % (sQB, O_TILE, O_OFF))
    a("s_add_u32 s74, %s, %s\ns_lshl_b32 s74, s74, 9\ns_add_u32 s74, s74, s73\nv_add_u32 v%d, s74, %s" % (sU0, sODD, b, vL16))
    a("v_cmp_gt_u32 vcc, 32, v1\nv_mov_b32 %s, %d\nv_add_u32 %s, 1024, v%d\nv_cndmask_b32 v%d, %s, %s, vcc" % (t0, OOB, t1, b, b + 1, t0, t1))
    a("s_cmp_eq_u32 %s, 0\ns_cselect_b32 s74, %d, 8\ns_lshl_b32 s75, %s, 9\ns_add_u32 s74, s74, s75\ns_add_u32 s74, s74, s73\ns_sub_u32 s74, s74, 512" % (sODD, 3 * 512, sU0))
    a("v_add_u32 %s, s74, %s\nv_cndmask_b32 v%d, %s, %s, vcc" % (t1, vL16, b + 2, t1, t0))
def store_o(c, b, half, tag):
    a("s_mov_b32 s73, %d" % (half * 56 * 512))
    a.vm("buffer_store_dwordx4 %s, v%d, %s, s73 offen sc1" % (vr(c, 4), b, WS), tag)
    a.vm("buffer_store_dwordx4 %s, v%d, %s, s73 offen sc1" % (vr(c + 4, 4), b + 1, WS), tag)
    a.vm("buffer_store_dwordx2 %s, v%d, %s, s73 offen sc1" % (vr(c + 4, 2), b + 2, WS), tag)
def load_g(dst, t):
    a("s_lshl_b32 s73, %s, 2\ns_add_u32 s73, s73, s3\ns_lshl_b32 s73, s73, 7\ns_add_u32 s73, s73, %d\nv_and_b32 %s, 31, v1\nv_lshlrev_b32 %s, 2, %s" % (sQB, G_OFF, t, t, t))
    a.vm("buffer_load_dword %s, %s, %s, s73 offen sc1" % (dst, t, WS), "g")

a("s_cmp_ge_u32 s2, 256\ns_cbranch_scc1 L_end")
a("s_load_dwordx16 s[40:55], s[0:1], 0\ns_load_dwordx4 s[56:59], s[0:1], 64")
if SPINTO or ENC >= 0: a("s_memrealtime s[98:99]")
if STAMP: a("v_mov_b32 %s, 0" % vSTAMP)
stamp("entry")
a("""
v_lshrrev_b32 v2, 6, v0
v_and_b32 v1, 63, v0
v_readfirstlane_b32 s83, v2
v_lshlrev_b32 v0, 4, v1
s_and_b32 s73, s2, 7
s_lshr_b32 s74, s2, 3
s_and_b32 s3, s83, 3
s_and_b32 s75, s73, 1
s_lshl_b32 s75, s75, 3
s_and_b32 s76, s74, 7
s_add_u32 %s, s75, s76
s_lshr_b32 s75, s73, 1
s_lshl_b32 s75, s75, 2
s_lshr_b32 s76, s74, 3
s_add_u32 %s, s75, s76
""" % (sRB, sJ))
vL16 = "v0"
a("""
s_and_b32 %s, s74, 1
s_lshl_b32 s75, s73, 1
s_add_u32 %s, s75, %s
s_lshr_b32 %s, s74, 1
s_mul_i32 s75, %s, 7
s_lshr_b32 %s, s75, 1
s_mul_i32 s75, s74, 37
s_lshr_b32 s75, s75, 8
s_mul_i32 s76, s75, 7
s_sub_u32 %s, s74, s76
s_lshl_b32 s76, s73, 2
s_add_u32 %s, s76, s75
s_cmp_lt_u32 s74, 28
s_cselect_b32 %s, 1, 0
s_cselect_b32 %s, %s, 0
s_mul_i32 s75, %s, 28
s_lshr_b32 %s, s75, 6
s_add_u32 s75, s75, 27
s_lshr_b32 %s, s75, 6
s_mov_b32 %s, %d
s_mov_b32 %s, 0
s_lshl_b32 %s, s3, 12
s_lshl_b32 %s, s3, 11
""" % (sODD, sH, sODD, sQB, sH, sU0, sCC, sRB2, sP3, sRB2, sRB2, sH, sC0, sC1, sCNT, SPIN, sFB, sMX, sMWc))
a("s_lshl_b32 s75, %s, 4\ns_add_u32 s75, s75, %s\ns_lshl_b32 %s, s75, 7" % (sJ, sRB, sF12))
a("s_lshl_b32 s75, %s, 4\ns_add_u32 s75, s75, %s\ns_lshl_b32 %s, s75, 7" % (sH, sQB, sF345))
a("v_cmp_eq_u32 %s, 0, v1\nv_mov_b32 %s, 0\nv_mov_b32 %s, %d\nv_mov_b32 %s, 1" % (sMZ, vZERO, vRSV, RSV, vONE))
pX, pWA, pWoA, pWB, pWoB, pG, pOut, pWs = [("s%d" % i, "s%d" % (i + 1)) for i in (40, 42, 44, 48, 50, 52, 54, 58)]
WBYTES = 448 * 2688
def common_srds():
    a("s_mov_b32 s73, %d\ns_load_dword %s, s[58:59], s73" % (EPOCH_OFF, sTAG))
    srd(WS, pWs[0], pWs[1], WS_SIZE)
SLOT = [0, 1, 2, 3, 0, 1, 2]
a("s_cmp_ge_u32 s83, 4\ns_cbranch_scc1 L_helper")

def Xm(buf, rtl): return vr(32 + 16 * buf + 4 * rtl, 4)
def Wm(buf, ct, e=None):
    b = 40 + 16 * buf + 4 * ct
    return vr(b, 4) if e is None else vr(b + 2 * e, 2)
def acc1(rtl, ct): return 64 + 32 * rtl + 16 * ct
def main_p1(T):
    a.vmq = []; a.lgq = []
    tmp = ["v2", "v3", "v4", "v5"]
    a("s_and_b32 s73, s3, 1\ns_lshr_b32 s74, s3, 1\ns_lshl_b32 s75, s73, 13")
    x_addr(128, T, "s75", tmp)
    tr_addr("v5", T, "v2", "v3", "v4")
    a("s_lshl_b32 s75, s74, 13\ns_add_u32 s75, s75, 16384\nv_add_u32 v140, s75, v5\nv_xor_b32 v141, 64, v140")
    for ct in range(2): a("v_add_u32 v%d, 65536, v%d" % (142 + ct, 140 + ct))
    a("s_lshl_b32 s75, %s, 2\ns_lshl_b32 s76, s73, 1\ns_add_u32 s75, s75, s76" % sRB)
    a("s_lshl_b32 s76, %s, 1\ns_add_u32 s76, s76, s74" % sJ)
    if T:
        a("s_mul_i32 s77, s75, %d\ns_lshl_b32 s78, s76, 12\ns_add_u32 s78, s78, s77\nv_add_u32 v146, s78, %s" % (T_TILE, vL16))
        a("s_cmp_lt_u32 s76, 7\ns_cselect_b32 s84, 0x%x, 1.0\ns_mov_b32 s85, s84\ns_mov_b32 %s, %d" % (f32(QSCALE), sRTL, T_TILE))
    else:
        a("s_lshl_b32 s75, s75, 11\ns_add_u32 s75, s75, %d" % N_OFF)
        a("s_sub_u32 s76, s76, 14\ns_sub_u32 s77, s76, 7\ns_cmp_lt_u32 s76, 7\ns_cselect_b32 s76, s76, s77\ns_cselect_b32 s77, 0, %d\ns_add_u32 s77, s77, s75" % N_KIND)
        for ct in range(2):
            a("s_lshl_b32 s73, s76, 6\ns_add_u32 s73, s73, %d\nv_and_b32 v6, 31, v1\nv_add_u32 v6, s73, v6" % (32 * ct))
            n_addr("v%d" % (146 + ct), "s77", "v6", True, tmp)
        a("s_lshl_b32 s73, s76, 6\ns_add_u32 s74, s73, 27\ns_mul_i32 s74, s74, 2341\ns_lshr_b32 s74, s74, 16\ns_add_u32 s73, s73, 64")
        a("v_lshrrev_b32 v2, 4, v1\nv_add_u32 v2, s74, v2\nv_mul_u32_u24 v3, 28, v2\nv_cmp_gt_u32 vcc, s73, v3")
        a("v_lshlrev_b32 v2, 17, v2\nv_bfe_u32 v3, v1, 2, 2\nv_lshl_add_u32 v2, v3, 9, v2\nv_and_b32 v3, 3, v1\nv_lshl_add_u32 v2, v3, 4, v2")
        a("v_add_u32 v2, s77, v2\nv_add_u32 v2, %d, v2\nv_mov_b32 v4, %d\nv_cndmask_b32 v148, v4, v2, vcc" % (28 * 16, OOB))
        a("v_cmp_eq_u32 vcc, 0, v3\nv_mov_b32 v4, 0x3f803f80\ns_nop 0\nv_cndmask_b32 v152, %s, v4, vcc" % vZERO)
        a("v_mov_b32 v153, v152\nv_mov_b32 v154, v152\nv_mov_b32 v155, v152")
    def mm(rtl, ct, g):
        if T: mfma(vr(acc1(rtl, ct), 16), Wm(g & 1, ct), Xm(g & 1, rtl), g == 0)
        else: mfma(vr(acc1(rtl, ct), 16), Xm(g & 1, rtl), Wm(g & 1, ct), g == 0)
    def reads(g):
        s, t = g >> 2, g & 3; slot = SLOT[s]; hi, lo = slot >> 1, (slot & 1) * 32768
        rx = [lambda rtl=rtl: a.ds("ds_read_b128 %s, v%d offset:%d" % (Xm(g & 1, rtl), 128 + 4 * hi + t, lo + rtl * 4096), g) for rtl in range(2)]
        rw = [lambda ct=ct, e=e: a.ds("ds_read_b64_tr_b16 %s, v%d offset:%d" % (Wm(g & 1, ct, e), 140 + 2 * hi + ct, lo + t * 2048 + e * 512), g) for ct in range(2) for e in range(2)]
        return [rx[0], rw[0], rw[1], rw[2], rw[3], rx[1]]
    get_tag()
    a("s_barrier")
    stamp("m_slab0")
    for r in reads(0): r()
    for g in range(28):
        a.dswait(g)
        mm(0, 0, g)
        if (g & 3) == 3 and g < 27: a("s_barrier")
        if g == 27: arrive(cH2)
        if g == 13 and PREF: prefetch_wo()
        nxt = reads(g + 1) if g < 27 else []
        for r in nxt[:3]: r()
        mm(0, 1, g)
        for r in nxt[3:]: r()
        mm(1, 0, g)
        mm(1, 1, g)
    stamp("m_r1")
    a("s_cmp_lg_u32 s84, 1.0")
    a.nop(8)
    for rtl in range(2):
        for ct in range(2):
            b = acc1(rtl, ct); o = 160 + 8 * (2 * rtl + ct)
            if T:
                skip = a.newlabel("noscale")
                a("s_cbranch_scc0 %s" % skip)
                if (rtl, ct) == (0, 0): pass
                for q in range(16): a("v_mul_f32 v%d, s84, v%d" % (b + q, b + q))
                a.label(skip)
            for q in range(8):
                a("v_cvt_pk_bf16_f32 v%d, v%d, v%d" % (o + q, b + 2 * q, b + 2 * q + 1))
            for m in range(2):
                if T: a.vm("buffer_store_dwordx4 %s, v146, %s, %s offen offset:%d sc1" % (vr(o + 4 * m, 4), WS, sRTL if rtl else "0", ct * 2048 + m * 1024))
                else: a.vm("buffer_store_dwordx4 %s, v%d, %s, 0 offen offset:%d sc1" % (vr(o + 4 * m, 4), 146 + ct, WS, rtl * 2048 + m * 1024))
    if not T:
        for rtl in range(2): a.vm("buffer_store_dwordx4 v[152:155], v148, %s, 0 offen offset:%d sc1" % (WS, rtl * 2048))
    stamp("m_stored")

if MPRIO: a("s_setprio %d" % MPRIO)
a("v_lshlrev_b32 v2, 2, v1\nv_add_u32 v2, %d, v2\nds_write_b32 v2, %s" % (RSV, vZERO))
a("s_and_b32 s73, s2, 7\ns_lshr_b32 s74, s2, 3")
a("s_and_b32 s75, s73, 1\ns_lshl_b32 s75, s75, 10\ns_lshl_b32 s76, s74, 5\ns_add_u32 s75, s75, s76\ns_lshl_b32 s76, s3, 3\ns_add_u32 s75, s75, s76\ns_mul_i32 s75, s75, 896")
a("v_lshrrev_b32 v2, 3, v1\nv_and_b32 v3, 7, v1\nv_min_u32 v3, 6, v3\nv_mul_u32_u24 v8, 896, v2\nv_lshl_add_u32 v8, v3, 7, v8\nv_add_u32 v8, s75, v8")
a("s_lshr_b32 s75, s73, 1\ns_lshl_b32 s75, s75, 2\ns_add_u32 s75, s75, s3\ns_min_u32 s75, s75, 13\ns_mul_i32 s76, s74, 14")
a("v_and_b32 v2, 15, v1\nv_min_u32 v2, 13, v2\nv_add_u32 v2, s76, v2\nv_mul_u32_u24 v9, 2688, v2")
a("v_lshrrev_b32 v2, 4, v1\nv_min_u32 v2, 2, v2\ns_lshl_b32 s76, s75, 1\nv_add_u32 v3, s76, v2\ns_add_u32 s76, s75, 7\nv_mov_b32 v4, s76\nv_cmp_eq_u32 vcc, 2, v2")
a("v_add_u32 v4, 14, v4\ns_nop 0\nv_cndmask_b32 v3, v3, v4, vcc")
a("v_subrev_u32 v4, 7, v3\nv_mov_b32 v5, s75\nv_cndmask_b32 v4, v4, v5, vcc\nv_cmp_le_u32 vcc, 21, v3\ns_nop 1\nv_cndmask_b32 v3, v3, v4, vcc\nv_lshl_add_u32 v9, v3, 7, v9")
a("s_mov_b64 s[36:37], vcc")
a("s_mul_i32 s75, s74, 28\ns_mul_i32 s76, s3, 7\ns_add_u32 s75, s75, s76\ns_sub_u32 s76, s75, 448\ns_cmp_lt_u32 s75, 448\ns_cselect_b32 s75, s75, s76\ns_cselect_b32 s38, 0, 1\ns_mul_i32 s75, s75, 896")
a("v_lshrrev_b32 v2, 3, v1\nv_min_u32 v2, 6, v2\nv_and_b32 v3, 7, v1\nv_min_u32 v3, 6, v3\nv_mul_u32_u24 v10, 896, v2\nv_lshl_add_u32 v10, v3, 7, v10\nv_add_u32 v10, s75, v10")
a("s_waitcnt lgkmcnt(0)")
stamp("kernarg")
if PREF:
    a("global_load_dword v11, v8, s[40:41]")
    a("v_mov_b32 v2, %s\nv_mov_b32 v3, %s\nv_mov_b32 v4, %s\nv_mov_b32 v5, %s" % (pWA[0], pWA[1], pWB[0], pWB[1]))
    a("v_cndmask_b32 v2, v2, v4, s[36:37]\nv_cndmask_b32 v3, v3, v5, s[36:37]\nv_add_co_u32 v2, vcc, v2, v9\ns_nop 1\nv_addc_co_u32 v3, vcc, 0, v3, vcc")
    a("global_load_dword v12, v[2:3], off")
a("s_cmp_eq_u32 s38, 0\ns_cselect_b32 s36, %s, %s\ns_cselect_b32 s37, %s, %s" % (pWoA[0], pWoB[0], pWoA[1], pWoB[1]))
def prefetch_wo(): a("global_load_dword v13, v10, s[36:37]")
common_srds()
a("s_cmp_ge_u32 %s, 14\ns_cbranch_scc1 L_m_gate" % sJ)
a("s_cmp_ge_u32 %s, 7\ns_cbranch_scc1 L_m_N" % sJ)
main_p1(True)
a("s_branch L_m_join")
a.label("L_m_N")
main_p1(False)
a("s_branch L_m_join")
a.label("L_m_gate")
srd(X, pX[0], pX[1], 2048 * 896)
srd(GW, pG[0], pG[1], 896)
a.vmq = []
a("s_lshl_b32 s75, %s, 7\ns_sub_u32 s76, %s, 14\ns_lshl_b32 s76, s76, 6\ns_add_u32 s75, s75, s76\ns_lshl_b32 s76, s3, 4\ns_add_u32 s75, s75, s76" % (sRB, sJ))
a("v_lshrrev_b32 v2, 3, v1\nv_add_u32 v2, s75, v2\nv_and_b32 v3, 7, v1\nv_lshlrev_b32 v3, 4, v3")
a("v_mul_u32_u24 v4, 896, v2\nv_add_u32 v4, v4, v3\nv_add_u32 v5, %d, v4" % (8 * 896))
for i in range(7):
    a.vm("buffer_load_dwordx4 %s, v3, %s, 0 offen offset:%d" % (vr(64 + 4 * i, 4), GW, 128 * i))
    a.vm("buffer_load_dwordx4 %s, v4, %s, 0 offen offset:%d" % (vr(96 + 4 * i, 4), X, 128 * i))
    a.vm("buffer_load_dwordx4 %s, v5, %s, 0 offen offset:%d" % (vr(128 + 4 * i, 4), X, 128 * i))
a("v_mov_b32 v6, 0\nv_mov_b32 v7, 0")
a("v_lshlrev_b32 v2, 2, v2\nv_add_u32 v2, %d, v2\nv_mov_b32 v8, %d\nv_cmp_eq_u32 vcc, 0, v3\ns_nop 1\nv_cndmask_b32 v9, v8, v2, vcc" % (G_OFF, OOB))
get_tag()
a("s_barrier")
arrive(cH2)
if PREF: prefetch_wo()
a.vmwait_all()
for i in range(28):
    a("v_dot2_f32_bf16 v6, v%d, v%d, v6\nv_dot2_f32_bf16 v7, v%d, v%d, v7" % (64 + i, 96 + i, 64 + i, 128 + i))
a.nop(3)
for dpp in ("quad_perm:[1,0,3,2]", "quad_perm:[2,3,0,1]", "row_half_mirror"):
    a("v_add_f32_dpp v6, v6, v6 %s row_mask:0xf bank_mask:0xf\nv_add_f32_dpp v7, v7, v7 %s row_mask:0xf bank_mask:0xf" % (dpp, dpp))
    a.nop(2)
for r in (6, 7):
    a("v_mul_f32 v%d, 0x%x, v%d\nv_exp_f32 v%d, v%d\ns_nop 0\nv_add_f32 v%d, 1.0, v%d\nv_rcp_f32 v%d, v%d\ns_nop 0" % (r, f32(-LOG2E), r, r, r, r, r, r, r))
a.vm("buffer_store_dword v6, v9, %s, 0 offen sc1" % WS)
a.vm("buffer_store_dword v7, v9, %s, 0 offen offset:32 sc1" % WS)

a.label("L_m_join")
a.vmq = ["st"]; a.lgq = []
vK, vV, vQ, vG, vIDX = "v26", "v25", "v24", "v23", "v22"
OAD = 19
def Qf(tau, m): return 32 + 8 * tau + 4 * m
def KV(b, k): return vr(192 + 16 * b + 4 * k, 4)
def Oa(tau): return 128 + 16 * tau
def Sb(tau): return 64 + 16 * tau
a("""
s_add_u32 s73, %s, 7
s_lshr_b32 s73, s73, 1
s_add_u32 s74, %s, 7
s_lshr_b32 s74, s74, 1
s_add_u32 s75, %s, 14
s_lshr_b32 s75, s75, 1
s_add_u32 s76, %s, 14
s_lshr_b32 s76, s76, 1
s_lshr_b32 s77, %s, 1
s_lshr_b32 s78, %s, 1
s_lshr_b32 s83, s3, 1
s_add_u32 s83, s83, 14
""" % (sC0, sC1, sC0, sC1, sC0, sC1))
lane_select("v2", [(0, "s73"), (4, "s74"), (8, "s75"), (12, "s76"), (16, "s77"), (17, "s78"), (18, "s83")], "v3")
a("s_lshl_b32 s73, s3, 2\nv_and_b32 v3, 3, v1\nv_add_u32 v3, s73, v3\nv_mov_b32 v4, %s\nv_cmp_le_u32 vcc, 16, v1\ns_nop 1\nv_cndmask_b32 v3, v3, v4, vcc" % sQB)
a("v_lshl_add_u32 v2, v2, 4, v3\nv_lshlrev_b32 v2, 7, v2\nv_add_u32 %s, %d, v2" % (vPOLL, F1))
a("s_lshl_b32 s73, %s, 9" % sU0)
a("s_mul_i32 s74, s3, %d\ns_add_u32 s74, s74, s73\ns_add_u32 s74, s74, %d\nv_add_u32 %s, s74, %s" % (16 * T_TILE, T_OFF + 7 * 4096, vK, vL16))
a("s_lshl_b32 s74, %s, 17\ns_lshl_b32 s75, s3, 15\ns_add_u32 s74, s74, s75\ns_add_u32 s74, s74, %d\nv_add_u32 %s, s74, %s" % (sH, N_OFF, vV, vL16))
a("s_mul_i32 s74, %s, %d\ns_add_u32 s74, s74, s73\nv_add_u32 %s, s74, %s" % (sQB, 4 * T_TILE, vQ, vL16))
o_addr(OAD, vL16, "v2", "v3")
a("s_cmp_eq_u32 %s, 0\ns_mov_b32 s86, 0\ns_cselect_b32 s87, -1, 0\ns_cselect_b32 s88, 0, -1\ns_mov_b32 s89, 0" % sODD)
a("v_mov_b32 %s, 0xdddddddd" % vIDX)
def zero_o():
    for i in range(64): a("v_mov_b32 v%d, 0" % (128 + i))
zero_o()
for tau in range(4):
    a("s_add_u32 s73, s3, %d\ns_and_b32 s73, s73, 3\ns_mul_i32 s%d, s73, %d" % (1 + tau, 74 + tau, T_TILE))
if MPRIO: a("s_setprio 0")
a.vmwait_all()
stamp("m_drained")
publish(cM1, sF12, F1)
if PDELAY: a("s_sleep %d" % PDELAY)
poll(4, 1, vPOLL, PSLEEP)
stamp("m_f1seen")
def kv_load(kt, k):
    if k < 2: a.vm("buffer_load_dwordx4 %s, %s, %s, %s offen offset:%d sc1" % (KV(kt & 3, k), vK, WS, sSK, 1024 * k), "k%d" % kt)
    else: a.vm("buffer_load_dwordx4 %s, %s, %s, %s offen offset:%d sc1" % (KV(kt & 3, k), vV, WS, sSV, 1024 * (k - 2)), "v%d" % kt)
def kv_off(kt, k): a("s_mov_b32 %s, %d" % ((sSK, kt * T_TILE) if k == 0 else (sSV, kt * 2048)))
def q_load(tau):
    for m in range(2): a.vm("buffer_load_dwordx4 %s, %s, %s, s%d offen offset:%d sc1" % (vr(Qf(tau, m), 4), vQ, WS, 74 + tau, 1024 * m), "q%d" % tau)
def q_fix(tau):
    for k in (0, 1): a("v_cndmask_b32 v%d, v%d, %s, %s" % (Qf(tau, 0) + k, Qf(tau, 0) + k, vZERO, sMB))
    for k in (2, 3): a("v_cndmask_b32 v%d, v%d, %s, %s" % (Qf(tau, 1) + k, Qf(tau, 1) + k, vZERO, sMA))
kv_off(0, 0); kv_off(0, 1)
kv_load(0, 0); kv_load(0, 1); q_load(0); q_load(1); kv_load(0, 2); kv_load(0, 3); q_load(2); q_load(3)
kv_off(1, 0); kv_off(1, 1)
for k in range(4): kv_load(1, k)
load_g(vG, "v2")
def M(n, m):
    kt, tau = n >> 2, n & 3
    mfma(vr(Sb(tau), 16), KV(kt & 3, m), vr(Qf(tau, m), 4), m == 0)
def P(n, m):
    kt, tau = n >> 2, n & 3
    a("v_smfmac_f32_32x32x32_bf16 %s, %s, %s, %s" % (vr(Oa(tau), 16), KV(kt & 3, 2 + m), vr(Sb(tau) + 8 * m, 8), vIDX))
def E(n, q):
    for k in range(4 * q, 4 * q + 4): a("v_exp_f32 v%d, v%d" % (Sb(n & 3) + k, Sb(n & 3) + k))
a.vmwait("q0"); q_fix(0)
stamp("m_attn0"); rstamp("R_attn0")
a.nop(1)
M(0, 0); M(0, 1)
a.vmwait("q1"); q_fix(1)
a.nop(6)
sched = {n: [] for n in range(64)}
for i, (kt, k) in enumerate([(2, 0), (2, 1), (2, 2), (2, 3), (3, 0), (3, 1), (3, 2), (3, 3)]): sched[i // 2].append((kt, k))
for kt in range(4, 16):
    for k in range(4): sched[4 * (kt - 3) + k].append((kt, k))
for n in range(64):
    ld = sched[n]
    if n < 63: M(n + 1, 0)
    for kt, k in ld:
        if k in (0, 2): kv_off(kt, k >> 1)
    E(n, 0)
    if n < 63: M(n + 1, 1)
    if n == 0: a.vmwait("v0")
    E(n, 1)
    if n > 0: P(n - 1, 1)
    if ld: kv_load(*ld[0])
    E(n, 2)
    P(n, 0)
    if len(ld) > 1: kv_load(*ld[1])
    if n < 2: a.vmwait("q%d" % (n + 2))
    elif NOWAIT: pass
    elif (n & 3) == 2 and n + 2 < 64: a.vmwait("k%d" % ((n + 2) // 4))
    elif (n & 3) == 3 and n + 1 < 64: a.vmwait("v%d" % ((n + 1) // 4))
    E(n, 3)
    if n < 2: q_fix(n + 2)
    if n in (7, 15, 31, 47): stamp("m_slot%d" % n)
a.nop(2)
P(63, 1)
stamp("m_attn_end"); rstamp("R_attn_end")
spin(cWA, 4)
a("s_mov_b32 s77, 4")
a.label("L_reduce")
for tau in range(3):
    a("s_add_u32 s73, s3, %d\ns_and_b32 s73, s73, 3\ns_mul_i32 s73, s73, 12288\ns_add_u32 s73, s73, %d\nv_add_u32 v2, s73, %s" % (1 + tau, RED + tau * 4096, vL16))
    for i in range(4):
        a.ds("ds_write_b128 v2, %s offset:%d" % (vr(Oa(tau) + 4 * i, 4), 1024 * i))
a("s_mul_i32 s73, s3, 12288\ns_add_u32 s73, s73, %d\nv_add_u32 v2, s73, %s" % (RED, vL16))
a("v_mov_b32 v3, v2")
arrive(cRD)
spin(cRD, "s77", 0)
for k in range(12):
    a.ds("ds_read_b128 %s, v3 offset:%d" % (vr(64 + 4 * k, 4), 1024 * k), k // 4)
O3 = Oa(3)
for s in range(3):
    a.dswait(s)
    for q in range(8):
        a("v_pk_add_f32 %s, %s, %s" % (vr(O3 + 2 * q, 2), vr(O3 + 2 * q, 2), vr(64 + 16 * s + 2 * q, 2)))
bcast_hi("v4", vr(O3 + 12), "v5")
a("v_rcp_f32 v6, v4\nv_mov_b32 v8, 0\nv_mov_b32 v9, 0\nv_mul_f32 v6, v6, %s\nv_mov_b32 v7, v6" % vG)
for q in range(8):
    a("v_pk_mul_f32 %s, %s, v[6:7]" % (vr(64 + 2 * q, 2), vr(O3 + 2 * q, 2)))
for q in range(8):
    a("v_cvt_pk_bf16_f32 v%d, v%d, v%d" % (80 + q, 64 + 2 * q, 65 + 2 * q))
store_o(80, OAD, 0, "oa")
stamp("m_oa_stored")
for q in range(8):
    a("v_pk_fma_f32 v[8:9], %s, 0, v[8:9] op_sel_hi:[1,0,1]" % vr(O3 + 2 * q, 2))
a("v_add_f32 v8, v8, v9\nv_add_f32 v4, v4, v8")
a("v_cmp_nle_f32 vcc, 0x%x, v4\ns_mov_b64 s[94:95], vcc\nv_cmp_nge_f32 vcc, 0x%x, v4\ns_or_b64 vcc, vcc, s[94:95]" % (f32(2.0 ** -64), f32(2.0 ** 64)))
a("s_cmp_lg_u64 vcc, 0\ns_cselect_b32 s74, 0x101, %d\ns_andn2_b32 s74, s74, %s\nv_mov_b32 v3, s74" % (0x101 if FORCE_FB else 1, sFB))
a.vmwait_all()
arrive(cVT, True, "v3")
a("s_add_u32 s75, s83, s74\ns_and_b32 s76, s75, 0xff\ns_cmp_lg_u32 s76, s77\ns_cbranch_scc1 L_notlast")
a("s_lshr_b32 s75, s75, 8\ns_cmp_lg_u32 s75, 0\ns_cselect_b32 s75, 0x100, 0\ns_andn2_b32 s75, s75, %s\ns_cmp_lg_u32 s75, 0\ns_cbranch_scc1 L_fallback" % sFB)
flag_store(sF345, F5)
stamp("m_f5sent")
a("s_branch L_fin")
a.label("L_notlast")
a("s_cmp_lg_u32 %s, 0\ns_cbranch_scc1 L_fin" % sFB)
spin(cVT, 4, 1, 0xff)
a("s_lshr_b32 s73, s83, 8\ns_cmp_eq_u32 s73, 0\ns_cbranch_scc1 L_fin")

a.label("L_fallback")
a("s_mov_b32 %s, 0x100\ns_mov_b32 s77, 8\ns_waitcnt vmcnt(0)" % sFB)
for t in range(4): a("v_mov_b32 v%d, 0xff800000" % (8 + t))
a("s_mov_b32 %s, 0" % sSK)
a.label("L_fb1")
for m in range(2): kv_load(0, m)
a("s_waitcnt vmcnt(0)")
for t in range(4):
    M(t, 0); M(t, 1)
a.nop(12)
for t in range(4):
    for q in range(8): a("v_max3_f32 v%d, v%d, v%d, v%d" % (8 + t, Sb(t) + 2 * q, Sb(t) + 2 * q + 1, 8 + t))
a("s_add_u32 %s, %s, %d\ns_cmp_lt_u32 %s, %d\ns_cbranch_scc1 L_fb1" % (sSK, sSK, T_TILE, sSK, 16 * T_TILE))
for t in range(4):
    a("v_mov_b32 v2, v%d\nv_mov_b32 v3, v%d\ns_nop 1\nv_permlane32_swap_b32 v2, v3\nv_max_f32 v2, v2, v3" % (8 + t, 8 + t))
    a("s_add_u32 s73, s3, %d\ns_and_b32 s73, s73, 3\ns_lshl_b32 s73, s73, 10\ns_add_u32 s73, s73, %d\nv_lshlrev_b32 v4, 2, v1\nv_add_u32 v%d, s73, v4" % (1 + t, RED, 12 + t))
    a("s_lshl_b32 s73, s3, 8\nv_add_u32 v4, s73, v%d\nds_write_b32 v4, v2" % (12 + t))
arrive(cFB0)
spin(cFB0, 4)
for t in range(4):
    for k in range(4): a("ds_read_b32 v%d, v%d offset:%d" % (2 + k, 12 + t, 256 * k))
    a("s_waitcnt lgkmcnt(0)\nv_max3_f32 v2, v2, v3, v4\nv_max_f32 v%d, v2, v5" % (8 + t))
arrive(cFB1)
spin(cFB1, 4)
zero_o()
a("s_mov_b32 %s, 0\ns_mov_b32 %s, 0" % (sSK, sSV))
a.label("L_fb2")
for k in range(4): kv_load(0, k)
a("s_waitcnt vmcnt(0)")
for t in range(4):
    M(t, 0); M(t, 1)
a.nop(12)
for t in range(4):
    for q in range(16): a("v_sub_f32 v%d, v%d, v%d" % (Sb(t) + q, Sb(t) + q, 8 + t))
    for q in range(16): a("v_exp_f32 v%d, v%d" % (Sb(t) + q, Sb(t) + q))
a.nop(2)
for t in range(4):
    P(t, 0); P(t, 1)
a.nop(12)
a("s_add_u32 %s, %s, %d\ns_add_u32 %s, %s, 2048\ns_cmp_lt_u32 %s, %d\ns_cbranch_scc1 L_fb2" % (sSK, sSK, T_TILE, sSV, sSV, sSV, 16 * 2048))
a("s_branch L_reduce")

a.label("L_helper")
a.vmq = []; a.lgq = []
if HPRIO: a("s_setprio %d" % HPRIO)
a("v_lshrrev_b32 v10, 3, v1\nv_and_b32 v11, 7, v1\nv_lshrrev_b32 v12, 4, v1")
a("s_lshl_b32 s75, %s, 7\ns_lshl_b32 s76, s3, 5\ns_add_u32 s75, s75, s76\ns_mul_i32 s75, s75, 896" % sRB)
a("v_mul_u32_u24 v13, 896, v10\nv_add_u32 v14, s75, v13")
for i in range(4):
    a("v_add_u32 v2, %d, v12\nv_and_b32 v2, 7, v2\nv_xor_b32 v2, v2, v11\nv_lshl_add_u32 v%d, v2, 4, v14" % (4 * i, 3 + i))
    if i: a("v_add_u32 v%d, %d, v%d" % (3 + i, i * (8 * 896 - 1024), 3 + i))
a("v_and_b32 v2, 1, v12\nv_lshlrev_b32 v2, 2, v2\nv_xor_b32 v2, v2, v11")
a("s_mul_i32 s76, s3, %d\nv_mul_u32_u24 v14, 2688, v10\nv_add_u32 v14, s76, v14\nv_lshl_add_u32 v7, v2, 4, v14\nv_add_u32 v8, %d, v7" % (16 * 2688, 8 * 2688 - 1024))
a("s_mul_i32 s76, s3, %d\ns_lshl_b32 s77, %s, 7\ns_add_u32 s76, s76, s77\nv_add_u32 v13, s76, v13\nv_lshl_add_u32 v26, v2, 4, v13" % (112 * 896, sCC))
a("s_waitcnt lgkmcnt(0)")
a("s_mov_b32 s73, %d\ns_load_dword %s, s[58:59], s73" % (EPOCH_OFF, sTAG))
srd(X, pX[0], pX[1], 2048 * 896)
for c, reg in ((0, W0), (1, W1)):
    n = int(reg[2:].split(":")[0])
    a("""
s_lshl_b32 s75, %s, 1
s_add_u32 s75, s75, %d
s_sub_u32 s76, s75, 7
s_cmp_lt_u32 s75, 21
s_cselect_b32 s75, s75, s76
s_cselect_b32 s%d, %s, %s
s_cselect_b32 s%d, %s, %s
s_min_u32 s75, s75, 20
s_lshl_b32 s75, s75, 7
s_add_u32 s%d, s%d, s75
s_addc_u32 s%d, s%d, 0
s_sub_u32 s%d, %d, s75
s_mov_b32 s%d, 0x20000
""" % (sJ, c, n, pWA[0], pWB[0], n + 1, pWA[1], pWB[1], n, n, n + 1, n + 1, n + 2, WBYTES, n + 3))
a("s_cmp_ge_u32 %s, 14\ns_cbranch_scc1 L_h_gate" % sJ)
if HDELAY: a("s_sleep %d" % HDELAY)
def dma_slab(s):
    slot = SLOT[s]
    a("s_add_u32 m0, %s, %d\ns_mov_b32 s73, %d" % (sMX, slot * 32768, s * 128))
    for i in range(4): a.vm("buffer_load_dwordx4 v%d, %s, s73 offen offset:%d lds" % (3 + i, X, 1024 * i), "slab%d" % s)
    for c, reg in ((0, W0), (1, W1)):
        a("s_add_u32 m0, %s, %d\ns_mov_b32 s73, %d" % (sMWc, slot * 32768 + 16384 + c * 8192, s * 64 * 2688))
        for i in range(2): a.vm("buffer_load_dwordx4 v%d, %s, s73 offen offset:%d lds" % (7 + i, reg, 1024 * i), "slab%d" % s)
def dma_w2(s2):
    a("s_add_u32 m0, %s, %d\ns_mov_b32 s73, %d" % (sMWc, W2B + s2 * 8192, s2 * 64 * 2688))
    for i in range(2): a.vm("buffer_load_dwordx4 v%d, %s, s73 offen offset:%d lds" % (7 + i, W2, 1024 * i), "w2")
def other_srds():
    a("s_lshl_b32 s75, %s, 7\ns_add_u32 s16, %s, s75\ns_addc_u32 s17, %s, 0\ns_sub_u32 s18, %d, s75\ns_mov_b32 s19, 0x20000" % (sJ, pWB[0], pWB[1], WBYTES))
    srd(WS, pWs[0], pWs[1], WS_SIZE)
    srd(OUT, pOut[0], pOut[1], 2048 * 896)
    srd(WOA, pWoA[0], pWoA[1], 448 * 896)
    srd(WOB, pWoB[0], pWoB[1], 448 * 896)
for s in range(AHEAD): dma_slab(s)
stamp("h_issued")
other_srds()
vmq0 = list(a.vmq)
a("s_cmp_ge_u32 %s, 7\ns_cbranch_scc1 L_h_N" % sJ)
def Xh(g): return vr(144 + 4 * g, 4)
def acc2(ct): return 64 + 16 * ct
def Wh(g, ct, e=None):
    b = 32 + 8 * (g & 3) + 4 * ct
    return vr(b, 4) if e is None else vr(b + 2 * e, 2)
def helper_p1(T):
    a.vmq = list(vmq0); a.lgq = []
    tmp = ["v10", "v11", "v12", "v13"]
    x_addr(96, T, sMX, tmp)
    tr_addr("v13", T, "v10", "v11", "v12")
    a("v_add_u32 v108, %d, v13\nv_xor_b32 v109, 64, v108" % W2B)
    a("s_lshl_b32 s75, %s, 2\ns_add_u32 s75, s75, s3" % sRB)
    if T:
        a("s_mul_i32 s77, s75, %d\ns_add_u32 s78, %s, 14\ns_lshl_b32 s78, s78, 12\ns_add_u32 s78, s78, s77\nv_add_u32 v110, s78, %s\nv_add_u32 v111, 2048, v110" % (T_TILE, sJ, vL16))
    else:
        a("s_lshl_b32 s75, s75, 11\ns_add_u32 s77, s75, %d" % (N_OFF + 2 * N_KIND))
        for ct in range(2):
            a("s_sub_u32 s73, %s, 7\ns_lshl_b32 s73, s73, 6\ns_add_u32 s73, s73, %d\nv_and_b32 v14, 31, v1\nv_add_u32 v14, s73, v14" % (sJ, 32 * ct))
            n_addr("v%d" % (110 + ct), "s77", "v14", False, tmp)
    for s in range(7):
        a.vmwait("slab%d" % s)
        if s: a.dswait_all()
        a("s_barrier")
        slot = SLOT[s]; hi, lo = slot >> 1, (slot & 1) * 32768
        for t in range(4): a.ds("ds_read_b128 %s, v%d offset:%d" % (Xh(4 * s + t), 96 + 4 * hi + t, lo))
        k = s + AHEAD
        if k < 7: dma_slab(k)
        if s == 4 or (s == 5 and False): pass
        if s == 4:
            for k2 in range(4): dma_w2(k2)
        if s == 5:
            for k2 in range(4, 7): dma_w2(k2)
    a.vmwait("w2")
    get_tag()
    arrive(cW2)
    spin(cW2, 4, 0)
    stamp("h_r2_start")
    def reads(g):
        for ct in range(2):
            for e in range(2):
                a.ds("ds_read_b64_tr_b16 %s, v%d offset:%d" % (Wh(g, ct, e), 108 + ct, (g >> 2) * 8192 + (g & 3) * 2048 + e * 512), g)
    reads(0); reads(1)
    for g in range(28):
        a.dswait(g)
        for ct in range(2):
            if T: mfma(vr(acc2(ct), 16), Wh(g, ct), Xh(g), g == 0)
            else: mfma(vr(acc2(ct), 16), Xh(g), Wh(g, ct), g == 0)
            if ct == 0 and g < 26: reads(g + 2)
            if ct == 0 and g == 27: arrive(cH2)
    stamp("h_r2_end")
helper_p1(True)
a("s_branch L_h_phi")
a.label("L_h_N")
helper_p1(False)
a.label("L_h_phi")
a.vmq = []; a.lgq = []
a("s_mov_b32 s84, 0x%x\ns_mov_b32 s85, s84\ns_mov_b32 s94, 0x%x\ns_mov_b32 s95, s94" % (f32(LOG2E), f32(1e-6)))
a.nop(8)
for ct in range(2):
    b = acc2(ct)
    for q in range(8): a("v_pk_mul_f32 %s, %s, %s" % (vr(112 + 2 * q, 2), vr(b + 2 * q, 2), sSCL))
    for q in range(16): a("v_exp_f32_e64 v%d, v%d clamp" % (112 + q, 112 + q))
    for q in range(16): a("v_max_f32 v%d, 0, v%d" % (b + q, b + q))
    for q in range(8): a("v_pk_add_f32 %s, %s, %s" % (vr(b + 2 * q, 2), vr(b + 2 * q, 2), vr(112 + 2 * q, 2)))
    for q in range(8): a("v_pk_add_f32 %s, %s, s[94:95]" % (vr(b + 2 * q, 2), vr(b + 2 * q, 2)))
    for q in range(8): a("v_cvt_pk_bf16_f32 v%d, v%d, v%d" % (32 + 8 * ct + q, b + 2 * q, b + 2 * q + 1))
    for m in range(2): a.vm("buffer_store_dwordx4 %s, v%d, %s, 0 offen offset:%d sc1" % (vr(32 + 8 * ct + 4 * m, 4), 110 + ct, WS, 1024 * m), "st2")
stamp("h_phi")
a("s_branch L_h_join")
a.label("L_h_gate")
other_srds()
get_tag()
a("s_barrier")
arrive(cH2)
a.label("L_h_join")
a.vmq = ["st2"]; a.lgq = []
vB1a, vB1b, vSL, vPQ, vGh, vO, vOUT, vWB, vWA = "v25", "v24", "v23", "v22", "v18", "v15", "v14", 10, 12
spin(cH2, 8)
a("s_mul_i32 s75, s3, %d" % (14 * 1024))
def dma_wo(half, reg):
    for i in range(14):
        a("s_add_u32 m0, s75, %d\ns_mov_b32 s74, %d" % (half * 57344 + i * 1024, i * 8 * 896))
        a.vm("buffer_load_dwordx4 v26, %s, s74 offen lds" % reg, "wo")
dma_wo(1, WOA)
a.vmwait("st2")
publish(cF2, sF12, F2)
stamp("h_f2sent")
dma_wo(0, WOB)
stamp("h_wo_issued")
a("""
s_add_u32 s73, %s, 23
s_add_u32 s74, %s, 23
s_add_u32 s75, %s, 16
s_add_u32 s76, %s, 16
s_add_u32 s77, %s, 21
s_lshr_b32 s77, s77, 1
s_add_u32 s78, %s, 21
s_lshr_b32 s78, s78, 1
""" % (sC0, sC1, sC0, sC1, sC0, sC1))
lane_select("v2", [(0, "s73"), (1, "s74"), (2, "s75"), (3, "s76"), (4, "s77"), (5, "s78"), (6, "14"), (7, "15")], "v3")
a("s_lshl_b32 s73, %s, 7\ns_add_u32 s73, s73, %d\nv_lshlrev_b32 v2, 11, v2\nv_add_u32 %s, s73, v2" % (sQB, F1, vPOLL))
a("s_lshl_b32 s73, %s, 17\ns_lshl_b32 s74, %s, 13\ns_add_u32 s73, s73, s74\ns_add_u32 s73, s73, %d" % (sH, sQB, N_OFF + N_KIND))
a("v_lshrrev_b32 v2, 4, v1\nv_and_b32 v3, 15, v1\nv_lshlrev_b32 v3, 4, v3\nv_lshl_add_u32 v2, v2, 9, v3")
a("s_and_b32 s74, s3, 1\ns_lshl_b32 s74, s74, 8\ns_add_u32 s74, s74, s73\nv_add_u32 %s, s74, v2" % vB1b)
a("s_lshr_b32 s74, s3, 1\ns_lshl_b32 s74, s74, 8\ns_add_u32 s74, s74, s73\ns_add_u32 s74, s74, %d\nv_add_u32 %s, s74, v2" % (N_KIND, vB1a))
a("s_lshl_b32 s73, %s, 16\ns_lshl_b32 s74, s3, 10\ns_add_u32 s73, s73, s74\ns_add_u32 s73, s73, %d\nv_add_u32 %s, s73, %s" % (sH, SLAB_OFF, vSL, vL16))
a("s_lshl_b32 s73, %s, 2\ns_add_u32 s73, s73, s3\ns_mul_i32 s73, s73, %d\ns_lshl_b32 s74, %s, 9\ns_add_u32 s73, s73, s74\ns_add_u32 s73, s73, %d\nv_add_u32 %s, s73, %s" % (sQB, T_TILE, sU0, T_OFF + 14 * 4096, vPQ, vL16))
o_addr(OAD, vL16, "v2", "v3")
a("s_lshl_b32 s73, %s, 11\ns_add_u32 s73, s73, %d\nv_and_b32 v2, 15, v1\nv_lshlrev_b32 v3, 7, v2\nv_add_u32 v9, s73, v3" % (sH, F3))
a("s_lshr_b32 s73, %s, 1\ns_lshl_b32 s73, s73, 7\ns_add_u32 s73, s73, %d\nv_lshlrev_b32 v2, 11, v2\nv_add_u32 v8, s73, v2" % (sRB2, F4))
a("s_lshl_b32 s73, %s, 1\ns_and_b32 s74, s3, 1\ns_add_u32 s73, s73, s74\ns_lshr_b32 s74, s3, 1" % sRB2)
a("s_mul_i32 s75, s73, %d\ns_mul_i32 s76, s74, 14336\ns_add_u32 s75, s75, s76\ns_add_u32 s75, s75, %d\nv_add_u32 %s, s75, %s" % (O_TILE, O_OFF, vO, vL16))
a("s_mul_i32 s75, s73, %d\ns_lshl_b32 s76, %s, 7\ns_add_u32 s75, s75, s76\ns_lshl_b32 s76, s74, 6\ns_add_u32 s75, s75, s76" % (32 * 896, sCC))
a("v_and_b32 v2, 31, v1\nv_mul_u32_u24 v2, 896, v2\nv_lshrrev_b32 v3, 5, v1\nv_lshl_add_u32 v2, v3, 4, v2\nv_add_u32 %s, s75, v2" % vOUT)
tr_addr("v4", True, "v2", "v3", "v5")
a("v_xor_b32 v4, s76, v4\ns_mul_i32 s75, s74, 28672\nv_add_u32 v%d, s75, v4\nv_xor_b32 v%d, 64, v%d" % (vWB, vWB + 1, vWB))
a("v_add_u32 v%d, 57344, v%d\nv_add_u32 v%d, 57344, v%d" % (vWA, vWB, vWA + 1, vWB + 1))
a("s_lshl_b32 s73, s74, 2\ns_cmp_eq_u32 %s, 0\ns_cselect_b32 s75, 7, 0\ns_sub_u32 s75, s75, s73" % sODD)
a("v_lshrrev_b32 v2, 4, v1\nv_cmp_eq_u32 %s, s75, v2" % sMA)
a("s_lshl_b32 s73, s73, 8\ns_and_b32 s75, s3, 1\ns_lshl_b32 s75, s75, 8\ns_add_u32 s73, s73, s75\ns_add_u32 s73, s73, %d" % KVX)
a("v_and_b32 v3, 15, v1\nv_lshlrev_b32 v3, 4, v3\nv_and_b32 v4, 1, v2\nv_lshl_add_u32 v3, v4, 9, v3\nv_lshrrev_b32 v4, 1, v2\nv_lshl_add_u32 v3, v4, 3, v3\nv_add_u32 v7, s73, v3")
a("v_add_u32 v6, %d, %s" % (KVX, vL16))
a.vmwait_all()
arrive(cWO)
spin(cWO, 4, 1)
def WAf(g, c, e=None):
    b = 144 + 8 * g + 4 * c
    return vr(b, 4) if e is None else vr(b + 2 * e, 2)
for g in range(14):
    for c in range(2):
        for e in range(2): a.ds("ds_read_b64_tr_b16 %s, v%d offset:%d" % (WAf(g, c, e), vWA + c, g * 2048 + e * 512))
    if g % 3 == 2: a.dswait_all()
a.dswait_all()
arrive(cWA)
stamp("h_wa_read")
group_poll(1)
stamp("h_f2seen")
for k in range(4):
    a("s_mov_b32 s73, %d" % (2048 * k))
    a.vm("buffer_load_dwordx4 %s, %s, %s, s73 offen sc1" % (vr(64 + 8 * k, 4), vB1a, WS), "b1"); pace()
    a.vm("buffer_load_dwordx4 %s, %s, %s, s73 offen sc1" % (vr(68 + 8 * k, 4), vB1b, WS), "b1"); pace()
a("v_mov_b32 %s, v9" % vPOLL)
a.vmwait_all()
for k in range(4):
    a("v_mfma_f32_16x16x32_bf16 v[96:99], %s, %s, %s" % (vr(64 + 8 * k, 4), vr(68 + 8 * k, 4), "v[96:99]" if k else "0"))
a("s_lshl_b32 s73, %s, 12" % sQB)
a.nop(7)
a.vm("buffer_store_dwordx4 v[96:99], %s, %s, s73 offen sc1" % (vSL, WS), "slab")
for m in range(2): a.vm("buffer_load_dwordx4 %s, %s, %s, 0 offen offset:%d sc1" % (vr(56 + 4 * m, 4), vPQ, WS, 1024 * m), "pq")
load_g(vGh, "v2")
a.vmwait("slab")
publish(cF3, sF345, F3)
stamp("h_f3sent")
group_poll(2, 16)
stamp("h_f3seen")
for k in range(16):
    a("s_mov_b32 s73, %d" % (4096 * k))
    a.vm("buffer_load_dwordx4 %s, %s, %s, s73 offen sc1" % (vr(64 + 4 * k, 4), vSL, WS), "b2"); pace()
a("v_mov_b32 %s, v8" % vPOLL)
a.vmwait_all()
for step in (32, 16, 8, 4):
    for k in range(0, step, 2):
        a("v_pk_add_f32 %s, %s, %s" % (vr(64 + k, 2), vr(64 + k, 2), vr(64 + step + k, 2)))
a("v_cvt_pk_bf16_f32 v4, v64, v65\nv_cvt_pk_bf16_f32 v5, v66, v67")
a("v_cndmask_b32 v4, v4, %s, %s\nv_cndmask_b32 v5, v5, %s, %s" % (vZERO, sMA, vZERO, sMA))
a("ds_write_b64 v7, v[4:5]")
arrive(cKV)
spin(cKV, 4, 1)
a("ds_read_b128 v[64:67], v6\nds_read_b128 v[68:71], v6 offset:1024\ns_waitcnt lgkmcnt(0)")
mfma("v[80:95]", "v[64:67]", "v[56:59]", True)
mfma("v[80:95]", "v[68:71]", "v[60:63]")
a("v_sub_f32 v4, 1.0, %s" % vGh)
a.nop(11)
bcast_hi("v2", "v92", "v3")
a("v_add_f32 v2, 0x%x, v2\nv_rcp_f32 v2, v2\ns_nop 0\nv_mul_f32 v2, v2, v4\nv_mov_b32 v3, v2" % f32(1e-6))
for q in range(8): a("v_pk_mul_f32 %s, %s, v[2:3]" % (vr(80 + 2 * q, 2), vr(80 + 2 * q, 2)))
for q in range(8): a("v_cvt_pk_bf16_f32 v%d, v%d, v%d" % (64 + q, 80 + 2 * q, 81 + 2 * q))
store_o(64, OAD, 1, "ob")
a.vmwait_all()
publish(cF4, sF345, F4)
stamp("h_f4sent")
a("s_cmp_eq_u32 %s, 0\ns_cbranch_scc1 L_fin" % sP3)
group_poll(3, 16)
stamp("h_f4seen")
def Of(g): return vr(64 + 4 * g, 4)
def acc3(c): return 32 + 16 * c
def WBf(g, c, e=None):
    b = 120 + 8 * (g % 3) + 4 * c
    return vr(b, 4) if e is None else vr(b + 2 * e, 2)
def wb_reads(g):
    for c in range(2):
        for e in range(2): a.ds("ds_read_b64_tr_b16 %s, v%d offset:%d" % (WBf(g, c, e), vWB + c, g * 2048 + e * 512), g)
for g in range(14):
    if g % 4 == 0: a("s_mov_b32 s73, %d" % (28672 + g * 1024))
    a.vm("buffer_load_dwordx4 %s, %s, %s, s73 offen offset:%d sc1" % (Of(g), vO, WS, (g % 4) * 1024)); pace()
a("v_add_u32 %s, %d, %s" % (vPOLL, F5 - F4, vPOLL))
a.vmwait_all()
stamp("h_ob_loaded")
spin(cVT, 4, 2, 0xff) if P3LATE else spin(cRD, 1, 4)
wb_reads(0); wb_reads(1)
for g in range(14):
    a.dswait(g)
    mfma(vr(acc3(0), 16), WBf(g, 0), Of(g), g == 0)
    if g < 12: wb_reads(g + 2)
    mfma(vr(acc3(1), 16), WBf(g, 1), Of(g), g == 0)
stamp("h_p3b_done")
a("s_xor_b32 s73, s3, 2\ns_lshl_b32 s73, s73, 12\ns_add_u32 s73, s73, %d\nv_add_u32 v6, s73, %s\ns_lshl_b32 s73, s3, 12\ns_add_u32 s73, s73, %d\nv_add_u32 v7, s73, %s" % (FIN, vL16, FIN, vL16))
spin(cVT, 4, 2, 0xff)
group_poll(4, P5DELAY, 4)
stamp("h_f5seen")
for g in range(14):
    if g % 4 == 0: a("s_mov_b32 s73, %d" % (g * 1024))
    a.vm("buffer_load_dwordx4 %s, %s, %s, s73 offen offset:%d sc1" % (Of(g), vO, WS, (g % 4) * 1024), g)
for g in range(14):
    a.vmwait(g)
    if g == 0: stamp("h_oa0")
    mfma(vr(acc3(1), 16), WAf(g, 1), Of(g))
    mfma(vr(acc3(0), 16), WAf(g, 0), Of(g))
a.nop(11)
for i in range(4): a.ds("ds_write_b128 v6, %s offset:%d" % (vr(acc3(1) + 4 * i, 4), 1024 * i))
a.dswait_all()
a("s_barrier")
for i in range(4): a.ds("ds_read_b128 %s, v7 offset:%d" % (vr(64 + 4 * i, 4), 1024 * i), i)
for i in range(4):
    a.dswait(i)
    for q in range(2): a("v_pk_add_f32 %s, %s, %s" % (vr(32 + 4 * i + 2 * q, 2), vr(32 + 4 * i + 2 * q, 2), vr(64 + 4 * i + 2 * q, 2)))
for q in range(8): a("v_cvt_pk_bf16_f32 v%d, v%d, v%d" % (80 + q, 32 + 2 * q, 33 + 2 * q))
for m in range(2): a.vm("buffer_store_dwordx4 %s, %s, %s, 0 offen offset:%d" % (vr(80 + 4 * m, 4), vOUT, OUT, 32 * m))
a("s_or_b32 s73, s2, s3\ns_cmp_lg_u32 s73, 0\ns_cbranch_scc1 L_fin")
a("v_mov_b32 v2, %d\nv_mov_b32 v3, %d\nv_cndmask_b32 v2, v2, v3, %s" % (OOB, EPOCH_OFF, sMZ))
a.vm("buffer_store_dword %s, v2, %s, 0 offen sc1" % (vTAG, WS))
a.label("L_fin")
stamp("end")
if STAMP:
    a("s_getreg_b32 s74, hwreg(HW_REG_HW_ID)\ns_getreg_b32 s75, hwreg(HW_REG_XCC_ID)\nv_writelane_b32 %s, s74, 62\nv_writelane_b32 %s, s75, 63" % (vSTAMP, vSTAMP))
    a("s_cmp_lg_u32 %s, 0xdddddddd" % "s98")
    a("v_lshlrev_b32 v2, 2, v1\ns_lshl_b32 s73, s2, 3\ns_add_u32 s73, s73, s39\ns_lshl_b32 s73, s73, 8\ns_add_u32 s73, s73, %d\ns_nop 4" % STAMP_OFF)
    a("buffer_store_dword %s, v2, %s, s73 offen" % (vSTAMP, WS))
if SPINTO or ENC >= 0:
    a("s_waitcnt vmcnt(0)")
    if ENC >= 0: a("s_sub_u32 s100, s100, s98\ns_min_u32 s100, s100, 5000\ns_add_u32 s100, s100, 4000")
    else: a("s_mov_b32 s100, %d" % SPINTO)
    a.label("L_spinto")
    a("s_memrealtime s[74:75]\ns_waitcnt lgkmcnt(0)\ns_sub_u32 s74, s74, s98\ns_cmp_lt_u32 s74, s100\ns_cbranch_scc1 L_spinto")
a.label("L_end")
a("s_endpgm")

if STAMP:
    i = a.lines.index("v_readfirstlane_b32 s83, v2")
    a.lines.insert(i + 2, "s_mov_b32 s39, s83")
if ENC >= 0:
    i = a.lines.index("v_readfirstlane_b32 s83, v2")
    a.lines[i + 2:i + 2] = ["s_waitcnt lgkmcnt(0)", "s_mov_b32 s100, s98"]
probs = check(a.lines)
for p in sorted(set(probs)): print(p, file=sys.stderr)
hdr = open("cdna_kernels/%s.s.ref" % NAME).read().split("; Override launch")[0]
out = hdr + """; Fused single-launch kernel: QKV projections -> softmax attention + linear attention -> gated output projection.
; @launch grid=(256,1,1) block=(512,1,1) lds=%d
.amdgcn_target "amdgcn-amd-amdhsa--gfx950"
.text
.globl %s_kernel
.p2align 8
.type %s_kernel,@function
%s_kernel:
""" % (LDS_BYTES, NAME, NAME, NAME) + a.text() + """.section .rodata,"a"
.p2align 6
.amdhsa_kernel %s_kernel
  .amdhsa_next_free_vgpr 256
  .amdhsa_next_free_sgpr 102
  .amdhsa_accum_offset 256
  .amdhsa_group_segment_fixed_size 0
  .amdhsa_kernarg_size 80
  .amdhsa_user_sgpr_count 2
  .amdhsa_user_sgpr_kernarg_segment_ptr 1
  .amdhsa_system_sgpr_workgroup_id_x 1
.end_amdhsa_kernel
""" % NAME
dst = [x for x in sys.argv[1:] if not x.startswith("--")]
open(dst[0] if dst else "cdna_kernels/%s.s" % NAME, "w").write(out)
open("stamps.txt", "w").write("\n".join(STAMPS))
print("hazards:", len(set(probs)), "lines:", len(a.lines), file=sys.stderr)
```

```python
import sys, struct
from asmlib import Asm, check

NAME = "gated_mix__mha_block__linear_attn_block__prompt"
def flag(n): return ("--" + n) in sys.argv
def opt(n, d):
    for x in sys.argv:
        if x.startswith("--%s=" % n): return int(x.split("=")[1])
    return d
STAMP, FORCE_FB = flag("stamp"), flag("force-fallback")
SPINTO = opt("spinto", 0); ENC = opt("enc", -1)
AHEAD = 3
PDELAY = opt("pdelay", 16); PSLEEP = opt("psleep", 6); PACE = opt("pace", 2); HDELAY = opt("hdelay", 0); PREF = opt("pref", 1)
P5DELAY = opt("p5delay", 24); P3LATE = opt("p3late", 1); MPRIO = opt("mprio", 2)
HPRIO = opt("hprio", 1)
NOWAIT = flag("nowait")

T_OFF, T_TILE = 0, 21 * 4096
N_OFF, N_KIND = 0x540000, 0x200000
O_OFF, O_TILE = 0xB40000, 112 * 512
SLAB_OFF = 0xEC0000
G_OFF = 0xFC0000
F1, F2, F3, F4, F5 = [0xFC8000 + i * 0x8000 for i in range(5)]
EPOCH_OFF = 0xFF0000
STAMP_OFF = 0x1000000
WS_SIZE = 0x1100000
OOB = 0x40000000
RED = 106496
W2B = 98304
RSV = 155648
KVX = RSV + 1024
FIN = 57344
cM1, cW2, cH2, cF2, cWO, cWA, cF3, cKV, cF4, cREL, cRD, cVT, cFB0, cFB1, cFB2 = range(15)
LDS_BYTES = 163840
SPIN = 1 << 18

def f32(x): return struct.unpack("<I", struct.pack("<f", x))[0]
LOG2E = 1.4426950408889634
QSCALE = 28 ** -0.5 * LOG2E

X, W0, W1, W2, WS, OUT, WOA, WOB = ["s[%d:%d]" % (4 + 4 * i, 7 + 4 * i) for i in range(8)]
GW = W0
sTAG, sRB, sJ, sH, sQB, sU0, sODD, sRB2, sCC, sP3 = ["s%d" % i for i in range(60, 70)]
sC0, sC1, sRTL = "s70", "s71", "s72"
sCNT, sFB, sMX, sMWc = "s79", "s80", "s81", "s82"
sSCL = "s[84:85]"
sMA, sMB, sMZ = "s[86:87]", "s[88:89]", "s[90:91]"
sSK, sSV = "s92", "s93"
sF12, sF345 = "s97", "s96"
STAMPS = {}
vTAG, vFL, vPOLL, vZERO, vSTAMP, vRSV, vONE = "v30", "v29", "v28", "v27", "v31", "v17", "v16"

a = Asm()
def stamp(name):
    if name not in STAMPS: STAMPS[name] = len(STAMPS)
    if STAMP:
        a("s_memtime s[98:99]\ns_waitcnt lgkmcnt(0)\nv_writelane_b32 %s, s98, %d" % (vSTAMP, STAMPS[name]))
        a.lgq = []
    if ENC == STAMPS[name]:
        a("s_memrealtime s[100:101]\ns_waitcnt lgkmcnt(0)")
        a.lgq = []

def rstamp(name):
    if name not in STAMPS: STAMPS[name] = len(STAMPS)
    if STAMP:
        a("s_memrealtime s[98:99]\ns_waitcnt lgkmcnt(0)\nv_writelane_b32 %s, s98, %d" % (vSTAMP, STAMPS[name]))
def vr(b, n=1): return "v%d" % b if n == 1 else "v[%d:%d]" % (b, b + n - 1)
def mfma(d, A, B, zero=False): a("v_mfma_f32_32x32x16_bf16 %s, %s, %s, %s" % (d, A, B, "0" if zero else d))
def srd(reg, lo, hi, size):
    n = int(reg[2:].split(":")[0])
    a("s_mov_b32 s%d, %s\ns_mov_b32 s%d, %s\ns_mov_b32 s%d, %d\ns_mov_b32 s%d, 0x20000" % (n, lo, n + 1, hi, n + 2, size, n + 3))
def swap23(dst, src, t):
    a("v_and_b32 %s, 0x13, %s" % (dst, src))
    a("v_and_b32 %s, 4, %s" % (t, src))
    a("v_lshl_or_b32 %s, %s, 1, %s" % (dst, t, dst))
    a("v_lshrrev_b32 %s, 1, %s" % (t, src))
    a("v_and_or_b32 %s, %s, 4, %s" % (dst, t, dst))
def lane_select(dst, items, t):
    a("v_mov_b32 %s, %s" % (dst, items[0][1]))
    for lo, s in items[1:]:
        a("v_cmp_le_u32 vcc, %d, v1\nv_mov_b32 %s, %s\ns_nop 0\nv_cndmask_b32 %s, %s, %s, vcc" % (lo, t, s, dst, dst, t))
def poll(vdata, n, vaddr, sleep=0):
    top, done = a.newlabel("poll"), a.newlabel("polled")
    a.label(top)
    a("buffer_load_dword%s %s, %s, %s, 0 offen sc1" % ("x4" if n == 4 else "", vr(vdata, n), vaddr, WS))
    a("s_waitcnt vmcnt(0)")
    a.vmq = []
    a("v_cmp_ne_u32 vcc, %s, %s" % (sTAG, vr(vdata)))
    for k in range(1, n):
        a("v_cmp_ne_u32 s[94:95], %s, %s\ns_or_b64 vcc, vcc, s[94:95]" % (sTAG, vr(vdata + k)))
    a("s_cmp_eq_u64 vcc, 0\ns_cbranch_scc1 %s" % done)
    if sleep: a("s_sleep %d" % sleep)
    a("s_sub_u32 %s, %s, 1\ns_cbranch_scc0 %s\ns_mov_b32 %s, 0" % (sCNT, sCNT, top, sCNT))
    a.label(done)
def flag_store(soff, base, t0="v2", t1="v3"):
    a("s_add_u32 s73, %s, %d\nv_mov_b32 %s, %d\nv_mov_b32 %s, s73\nv_cndmask_b32 %s, %s, %s, %s" % (soff, base, t0, OOB, t1, vFL, t0, t1, sMZ))
    a.vm("buffer_store_dword %s, %s, %s, 0 offen sc1" % (vTAG, vFL, WS), "flag")
def arrive(c, rtn=False, val=None):
    a("s_mov_b64 exec, 1")
    if rtn: a("ds_add_rtn_u32 v2, %s, %s offset:%d" % (vRSV, val or vONE, 4 * c))
    else: a.ds("ds_add_u32 %s, %s offset:%d" % (vRSV, val or vONE, 4 * c))
    a("s_mov_b64 exec, -1")
    if rtn:
        a("s_waitcnt lgkmcnt(0)\nv_readfirstlane_b32 s83, v2"); a.lgq = []
def spin(c, target, sleep=1, mask=None):
    top, done = a.newlabel("spin"), a.newlabel("spun")
    a.label(top)
    a("ds_read_b32 v2, %s offset:%d\ns_waitcnt lgkmcnt(0)\nv_readfirstlane_b32 s83, v2" % (vRSV, 4 * c)); a.lgq = []
    if mask: a("s_and_b32 s94, s83, %d\ns_cmp_ge_u32 s94, %s" % (mask, target))
    else: a("s_cmp_ge_u32 s83, %s" % target)
    a("s_cbranch_scc1 %s" % done)
    if sleep: a("s_sleep %d" % sleep)
    a("s_sub_u32 %s, %s, 1\ns_cbranch_scc0 %s\ns_mov_b32 %s, 0" % (sCNT, sCNT, top, sCNT))
    a.label(done)
def publish(c, soff, base):
    skip = a.newlabel("nopub")
    arrive(c, True)
    a("s_cmp_lg_u32 s83, 3\ns_cbranch_scc1 %s" % skip)
    flag_store(soff, base)
    a.label(skip)
def group_poll(phase, delay=0, sleep=4):
    oth, done = a.newlabel("rel"), a.newlabel("reld")
    a("s_cmp_lg_u32 s3, 0\ns_cbranch_scc1 %s" % oth)
    if delay: a("s_sleep %d" % delay)
    poll(4, 1, vPOLL, sleep)
    arrive(cREL)
    a("s_branch %s" % done)
    a.label(oth)
    a("s_waitcnt vmcnt(0)")
    spin(cREL, phase, 3)
    a.label(done)
    a.vmq = []; a.lgq = []
def pace():
    if PACE and len(a.vmq) > PACE:
        a("s_waitcnt vmcnt(%d)" % PACE); a.vmq = a.vmq[-PACE:]
def get_tag():
    a("s_waitcnt lgkmcnt(0)"); a.lgq = []
    a("s_add_u32 %s, %s, 0x9e3779b1\nv_mov_b32 %s, %s" % (sTAG, sTAG, vTAG, sTAG))
def bcast_hi(dst, src, t):
    a("v_mov_b32 %s, %s\nv_mov_b32 %s, %s\ns_nop 1\nv_permlane32_swap_b32 %s, %s" % (t, src, dst, src, t, dst))
def tr_addr(dst, perm, t0, t1, t2):
    a("v_and_b32 %s, 3, v1" % t0)
    if perm: a("v_and_b32 %s, 1, %s\nv_lshrrev_b32 %s, 1, %s\nv_lshl_or_b32 %s, %s, 1, %s" % (t1, t0, t0, t0, t0, t1, t0))
    a("v_bfe_u32 %s, v1, 4, 1\nv_lshl_or_b32 %s, %s, 2, %s" % (t1, t0, t1, t0))
    a("v_bfe_u32 %s, v1, 2, 2\nv_lshrrev_b32 %s, 5, v1\nv_lshl_add_u32 %s, %s, 3, %s" % (t1, t2, t1, t2, t1))
    a("v_lshlrev_b32 %s, 7, %s\nv_lshl_add_u32 %s, %s, 3, %s" % (t1, t1, t1, t0, t1))
    a("v_bfe_u32 %s, v1, 3, 1\nv_lshl_or_b32 %s, %s, 6, %s" % (t0, dst, t0, t1))
def x_addr(base, T, srow, t):
    a("v_and_b32 %s, 31, v1" % t[0])
    if T: a("v_mov_b32 %s, %s" % (t[1], t[0]))
    else: swap23(t[1], t[0], t[2])
    a("v_lshrrev_b32 %s, 5, v1\nv_lshrrev_b32 %s, 1, %s\nv_and_b32 %s, 7, %s" % (t[2], t[3], t[1], t[3], t[3]))
    a("v_lshlrev_b32 %s, 7, %s\nv_add_u32 %s, %s, %s" % (t[1], t[1], t[1], srow, t[1]))
    for k in range(4):
        a("v_add_u32 %s, %d, %s\nv_xor_b32 %s, %s, %s\nv_lshl_add_u32 v%d, %s, 4, %s" % (t[0], 2 * k, t[2], t[0], t[0], t[3], base + k, t[0], t[1]))
        a("v_add_u32 v%d, 65536, v%d" % (base + 4 + k, base + k))
def n_addr(dst, sbase, vf, isV, t):
    a("s_mov_b32 s78, 2341")
    a("v_mul_lo_u32 %s, s78, %s\nv_lshrrev_b32 %s, 16, %s" % (t[0], vf, t[0], t[0]))
    a("v_mul_u32_u24 %s, 28, %s\nv_sub_u32 %s, %s, %s" % (t[1], t[0], t[1], vf, t[1]))
    a("v_and_b32 %s, 1, %s\nv_lshlrev_b32 %s, 2, %s" % (t[2], t[0], t[2], t[2]))
    if isV: a("v_sub_u32 %s, %s, %s\nv_add_u32 %s, 28, %s\nv_min_u32 %s, %s, %s" % (t[1], t[1], t[2], t[3], t[1], t[1], t[1], t[3]))
    else: a("v_add_u32 %s, %s, %s" % (t[1], t[1], t[2]))
    swap23(t[3], t[1], t[2])
    a("v_lshlrev_b32 %s, 17, %s\nv_lshl_add_u32 %s, %s, 4, %s\nv_lshrrev_b32 %s, 5, v1\nv_lshl_add_u32 %s, %s, 9, %s\nv_add_u32 %s, %s, %s" % (t[0], t[0], t[0], t[3], t[0], t[1], t[0], t[1], t[0], dst, sbase, t[0]))
def o_addr(b, vL16, t0, t1):
    a("s_lshl_b32 s73, %s, 2\ns_add_u32 s73, s73, s3\ns_mul_i32 s73, s73, %d\ns_add_u32 s73, s73, %d" % (sQB, O_TILE, O_OFF))
    a("s_add_u32 s74, %s, %s\ns_lshl_b32 s74, s74, 9\ns_add_u32 s74, s74, s73\nv_add_u32 v%d, s74, %s" % (sU0, sODD, b, vL16))
    a("v_cmp_gt_u32 vcc, 32, v1\nv_mov_b32 %s, %d\nv_add_u32 %s, 1024, v%d\nv_cndmask_b32 v%d, %s, %s, vcc" % (t0, OOB, t1, b, b + 1, t0, t1))
    a("s_cmp_eq_u32 %s, 0\ns_cselect_b32 s74, %d, 8\ns_lshl_b32 s75, %s, 9\ns_add_u32 s74, s74, s75\ns_add_u32 s74, s74, s73\ns_sub_u32 s74, s74, 512" % (sODD, 3 * 512, sU0))
    a("v_add_u32 %s, s74, %s\nv_cndmask_b32 v%d, %s, %s, vcc" % (t1, vL16, b + 2, t1, t0))
def store_o(c, b, half, tag):
    a("s_mov_b32 s73, %d" % (half * 56 * 512))
    a.vm("buffer_store_dwordx4 %s, v%d, %s, s73 offen sc1" % (vr(c, 4), b, WS), tag)
    a.vm("buffer_store_dwordx4 %s, v%d, %s, s73 offen sc1" % (vr(c + 4, 4), b + 1, WS), tag)
    a.vm("buffer_store_dwordx2 %s, v%d, %s, s73 offen sc1" % (vr(c + 4, 2), b + 2, WS), tag)
def load_g(dst, t):
    a("s_lshl_b32 s73, %s, 2\ns_add_u32 s73, s73, s3\ns_lshl_b32 s73, s73, 7\ns_add_u32 s73, s73, %d\nv_and_b32 %s, 31, v1\nv_lshlrev_b32 %s, 2, %s" % (sQB, G_OFF, t, t, t))
    a.vm("buffer_load_dword %s, %s, %s, s73 offen sc1" % (dst, t, WS), "g")

a("s_cmp_ge_u32 s2, 256\ns_cbranch_scc1 L_end")
a("s_load_dwordx16 s[40:55], s[0:1], 0\ns_load_dwordx4 s[56:59], s[0:1], 64")
if SPINTO or ENC >= 0: a("s_memrealtime s[98:99]")
if STAMP: a("v_mov_b32 %s, 0" % vSTAMP)
FILL = opt("fill", -1)
if FILL >= 0:
    if flag("fillwait"): a("s_waitcnt lgkmcnt(0)")
    if flag("filljump"):
        for i in range(FILL):
            a("s_branch L_fj%d" % i)
            a(".fill 1023, 4, 0xBF800000")
            a.label("L_fj%d" % i)
    else:
        for i in range(FILL): a("v_mov_b32_e64 v2, v3")
    a("s_memrealtime s[100:101]\ns_waitcnt lgkmcnt(0)")
stamp("entry")
a("""
v_lshrrev_b32 v2, 6, v0
v_and_b32 v1, 63, v0
v_readfirstlane_b32 s83, v2
v_lshlrev_b32 v0, 4, v1
s_and_b32 s73, s2, 7
s_lshr_b32 s74, s2, 3
s_and_b32 s3, s83, 3
s_and_b32 s75, s73, 1
s_lshl_b32 s75, s75, 3
s_and_b32 s76, s74, 7
s_add_u32 %s, s75, s76
s_lshr_b32 s75, s73, 1
s_lshl_b32 s75, s75, 2
s_lshr_b32 s76, s74, 3
s_add_u32 %s, s75, s76
""" % (sRB, sJ))
vL16 = "v0"
a("""
s_and_b32 %s, s74, 1
s_lshl_b32 s75, s73, 1
s_add_u32 %s, s75, %s
s_lshr_b32 %s, s74, 1
s_mul_i32 s75, %s, 7
s_lshr_b32 %s, s75, 1
s_mul_i32 s75, s74, 37
s_lshr_b32 s75, s75, 8
s_mul_i32 s76, s75, 7
s_sub_u32 %s, s74, s76
s_lshl_b32 s76, s73, 2
s_add_u32 %s, s76, s75
s_cmp_lt_u32 s74, 28
s_cselect_b32 %s, 1, 0
s_cselect_b32 %s, %s, 0
s_mul_i32 s75, %s, 28
s_lshr_b32 %s, s75, 6
s_add_u32 s75, s75, 27
s_lshr_b32 %s, s75, 6
s_mov_b32 %s, %d
s_mov_b32 %s, 0
s_lshl_b32 %s, s3, 12
s_lshl_b32 %s, s3, 11
""" % (sODD, sH, sODD, sQB, sH, sU0, sCC, sRB2, sP3, sRB2, sRB2, sH, sC0, sC1, sCNT, SPIN, sFB, sMX, sMWc))
a("s_lshl_b32 s75, %s, 4\ns_add_u32 s75, s75, %s\ns_lshl_b32 %s, s75, 7" % (sJ, sRB, sF12))
a("s_lshl_b32 s75, %s, 4\ns_add_u32 s75, s75, %s\ns_lshl_b32 %s, s75, 7" % (sH, sQB, sF345))
a("v_cmp_eq_u32 %s, 0, v1\nv_mov_b32 %s, 0\nv_mov_b32 %s, %d\nv_mov_b32 %s, 1" % (sMZ, vZERO, vRSV, RSV, vONE))
pX, pWA, pWoA, pWB, pWoB, pG, pOut, pWs = [("s%d" % i, "s%d" % (i + 1)) for i in (40, 42, 44, 48, 50, 52, 54, 58)]
WBYTES = 448 * 2688
def common_srds():
    a("s_mov_b32 s73, %d\ns_load_dword %s, s[58:59], s73" % (EPOCH_OFF, sTAG))
    srd(WS, pWs[0], pWs[1], WS_SIZE)
SLOT = [0, 1, 2, 3, 0, 1, 2]
a("s_cmp_ge_u32 s83, 4\ns_cbranch_scc1 L_helper")

def Xm(buf, rtl): return vr(32 + 16 * buf + 4 * rtl, 4)
def Wm(buf, ct, e=None):
    b = 40 + 16 * buf + 4 * ct
    return vr(b, 4) if e is None else vr(b + 2 * e, 2)
def acc1(rtl, ct): return 64 + 32 * rtl + 16 * ct
def main_p1(T):
    a.vmq = []; a.lgq = []
    tmp = ["v2", "v3", "v4", "v5"]
    a("s_and_b32 s73, s3, 1\ns_lshr_b32 s74, s3, 1\ns_lshl_b32 s75, s73, 13")
    x_addr(128, T, "s75", tmp)
    tr_addr("v5", T, "v2", "v3", "v4")
    a("s_lshl_b32 s75, s74, 13\ns_add_u32 s75, s75, 16384\nv_add_u32 v140, s75, v5\nv_xor_b32 v141, 64, v140")
    for ct in range(2): a("v_add_u32 v%d, 65536, v%d" % (142 + ct, 140 + ct))
    a("s_lshl_b32 s75, %s, 2\ns_lshl_b32 s76, s73, 1\ns_add_u32 s75, s75, s76" % sRB)
    a("s_lshl_b32 s76, %s, 1\ns_add_u32 s76, s76, s74" % sJ)
    if T:
        a("s_mul_i32 s77, s75, %d\ns_lshl_b32 s78, s76, 12\ns_add_u32 s78, s78, s77\nv_add_u32 v146, s78, %s" % (T_TILE, vL16))
        a("s_cmp_lt_u32 s76, 7\ns_cselect_b32 s84, 0x%x, 1.0\ns_mov_b32 s85, s84\ns_mov_b32 %s, %d" % (f32(QSCALE), sRTL, T_TILE))
    else:
        a("s_lshl_b32 s75, s75, 11\ns_add_u32 s75, s75, %d" % N_OFF)
        a("s_sub_u32 s76, s76, 14\ns_sub_u32 s77, s76, 7\ns_cmp_lt_u32 s76, 7\ns_cselect_b32 s76, s76, s77\ns_cselect_b32 s77, 0, %d\ns_add_u32 s77, s77, s75" % N_KIND)
        for ct in range(2):
            a("s_lshl_b32 s73, s76, 6\ns_add_u32 s73, s73, %d\nv_and_b32 v6, 31, v1\nv_add_u32 v6, s73, v6" % (32 * ct))
            n_addr("v%d" % (146 + ct), "s77", "v6", True, tmp)
        a("s_lshl_b32 s73, s76, 6\ns_add_u32 s74, s73, 27\ns_mul_i32 s74, s74, 2341\ns_lshr_b32 s74, s74, 16\ns_add_u32 s73, s73, 64")
        a("v_lshrrev_b32 v2, 4, v1\nv_add_u32 v2, s74, v2\nv_mul_u32_u24 v3, 28, v2\nv_cmp_gt_u32 vcc, s73, v3")
        a("v_lshlrev_b32 v2, 17, v2\nv_bfe_u32 v3, v1, 2, 2\nv_lshl_add_u32 v2, v3, 9, v2\nv_and_b32 v3, 3, v1\nv_lshl_add_u32 v2, v3, 4, v2")
        a("v_add_u32 v2, s77, v2\nv_add_u32 v2, %d, v2\nv_mov_b32 v4, %d\nv_cndmask_b32 v148, v4, v2, vcc" % (28 * 16, OOB))
        a("v_cmp_eq_u32 vcc, 0, v3\nv_mov_b32 v4, 0x3f803f80\ns_nop 0\nv_cndmask_b32 v152, %s, v4, vcc" % vZERO)
        a("v_mov_b32 v153, v152\nv_mov_b32 v154, v152\nv_mov_b32 v155, v152")
    def mm(rtl, ct, g):
        if T: mfma(vr(acc1(rtl, ct), 16), Wm(g & 1, ct), Xm(g & 1, rtl), g == 0)
        else: mfma(vr(acc1(rtl, ct), 16), Xm(g & 1, rtl), Wm(g & 1, ct), g == 0)
    def reads(g):
        s, t = g >> 2, g & 3; slot = SLOT[s]; hi, lo = slot >> 1, (slot & 1) * 32768
        rx = [lambda rtl=rtl: a.ds("ds_read_b128 %s, v%d offset:%d" % (Xm(g & 1, rtl), 128 + 4 * hi + t, lo + rtl * 4096), g) for rtl in range(2)]
        rw = [lambda ct=ct, e=e: a.ds("ds_read_b64_tr_b16 %s, v%d offset:%d" % (Wm(g & 1, ct, e), 140 + 2 * hi + ct, lo + t * 2048 + e * 512), g) for ct in range(2) for e in range(2)]
        return [rx[0], rw[0], rw[1], rw[2], rw[3], rx[1]]
    get_tag()
    a("s_barrier")
    stamp("m_slab0")
    for r in reads(0): r()
    for g in range(28):
        a.dswait(g)
        mm(0, 0, g)
        if (g & 3) == 3 and g < 27: a("s_barrier")
        if g == 27: arrive(cH2)
        if g == 13 and PREF: prefetch_wo()
        nxt = reads(g + 1) if g < 27 else []
        for r in nxt[:3]: r()
        mm(0, 1, g)
        for r in nxt[3:]: r()
        mm(1, 0, g)
        mm(1, 1, g)
    stamp("m_r1")
    a("s_cmp_lg_u32 s84, 1.0")
    a.nop(8)
    for rtl in range(2):
        for ct in range(2):
            b = acc1(rtl, ct); o = 160 + 8 * (2 * rtl + ct)
            if T:
                skip = a.newlabel("noscale")
                a("s_cbranch_scc0 %s" % skip)
                if (rtl, ct) == (0, 0): pass
                for q in range(16): a("v_mul_f32 v%d, s84, v%d" % (b + q, b + q))
                a.label(skip)
            for q in range(8):
                a("v_cvt_pk_bf16_f32 v%d, v%d, v%d" % (o + q, b + 2 * q, b + 2 * q + 1))
            for m in range(2):
                if T: a.vm("buffer_store_dwordx4 %s, v146, %s, %s offen offset:%d sc1" % (vr(o + 4 * m, 4), WS, sRTL if rtl else "0", ct * 2048 + m * 1024))
                else: a.vm("buffer_store_dwordx4 %s, v%d, %s, 0 offen offset:%d sc1" % (vr(o + 4 * m, 4), 146 + ct, WS, rtl * 2048 + m * 1024))
    if not T:
        for rtl in range(2): a.vm("buffer_store_dwordx4 v[152:155], v148, %s, 0 offen offset:%d sc1" % (WS, rtl * 2048))
    stamp("m_stored")

if MPRIO: a("s_setprio %d" % MPRIO)
a("v_lshlrev_b32 v2, 2, v1\nv_add_u32 v2, %d, v2\nds_write_b32 v2, %s" % (RSV, vZERO))
a("s_and_b32 s73, s2, 7\ns_lshr_b32 s74, s2, 3")
a("s_and_b32 s75, s73, 1\ns_lshl_b32 s75, s75, 10\ns_lshl_b32 s76, s74, 5\ns_add_u32 s75, s75, s76\ns_lshl_b32 s76, s3, 3\ns_add_u32 s75, s75, s76\ns_mul_i32 s75, s75, 896")
a("v_lshrrev_b32 v2, 3, v1\nv_and_b32 v3, 7, v1\nv_min_u32 v3, 6, v3\nv_mul_u32_u24 v8, 896, v2\nv_lshl_add_u32 v8, v3, 7, v8\nv_add_u32 v8, s75, v8")
a("s_lshr_b32 s75, s73, 1\ns_lshl_b32 s75, s75, 2\ns_add_u32 s75, s75, s3\ns_min_u32 s75, s75, 13\ns_mul_i32 s76, s74, 14")
a("v_and_b32 v2, 15, v1\nv_min_u32 v2, 13, v2\nv_add_u32 v2, s76, v2\nv_mul_u32_u24 v9, 2688, v2")
a("v_lshrrev_b32 v2, 4, v1\nv_min_u32 v2, 2, v2\ns_lshl_b32 s76, s75, 1\nv_add_u32 v3, s76, v2\ns_add_u32 s76, s75, 7\nv_mov_b32 v4, s76\nv_cmp_eq_u32 vcc, 2, v2")
a("v_add_u32 v4, 14, v4\ns_nop 0\nv_cndmask_b32 v3, v3, v4, vcc")
a("v_subrev_u32 v4, 7, v3\nv_mov_b32 v5, s75\nv_cndmask_b32 v4, v4, v5, vcc\nv_cmp_le_u32 vcc, 21, v3\ns_nop 1\nv_cndmask_b32 v3, v3, v4, vcc\nv_lshl_add_u32 v9, v3, 7, v9")
a("s_mov_b64 s[36:37], vcc")
a("s_mul_i32 s75, s74, 28\ns_mul_i32 s76, s3, 7\ns_add_u32 s75, s75, s76\ns_sub_u32 s76, s75, 448\ns_cmp_lt_u32 s75, 448\ns_cselect_b32 s75, s75, s76\ns_cselect_b32 s38, 0, 1\ns_mul_i32 s75, s75, 896")
a("v_lshrrev_b32 v2, 3, v1\nv_min_u32 v2, 6, v2\nv_and_b32 v3, 7, v1\nv_min_u32 v3, 6, v3\nv_mul_u32_u24 v10, 896, v2\nv_lshl_add_u32 v10, v3, 7, v10\nv_add_u32 v10, s75, v10")
a("s_waitcnt lgkmcnt(0)")
stamp("kernarg")
if PREF:
    a("global_load_dword v11, v8, s[40:41]")
    a("v_mov_b32 v2, %s\nv_mov_b32 v3, %s\nv_mov_b32 v4, %s\nv_mov_b32 v5, %s" % (pWA[0], pWA[1], pWB[0], pWB[1]))
    a("v_cndmask_b32 v2, v2, v4, s[36:37]\nv_cndmask_b32 v3, v3, v5, s[36:37]\nv_add_co_u32 v2, vcc, v2, v9\ns_nop 1\nv_addc_co_u32 v3, vcc, 0, v3, vcc")
    a("global_load_dword v12, v[2:3], off")
a("s_cmp_eq_u32 s38, 0\ns_cselect_b32 s36, %s, %s\ns_cselect_b32 s37, %s, %s" % (pWoA[0], pWoB[0], pWoA[1], pWoB[1]))
def prefetch_wo(): a("global_load_dword v13, v10, s[36:37]")
common_srds()
a("s_cmp_ge_u32 %s, 14\ns_cbranch_scc1 L_m_gate" % sJ)
a("s_cmp_ge_u32 %s, 7\ns_cbranch_scc1 L_m_N" % sJ)
main_p1(True)
a("s_branch L_m_join")
a.label("L_m_N")
main_p1(False)
a("s_branch L_m_join")
a.label("L_m_gate")
srd(X, pX[0], pX[1], 2048 * 896)
srd(GW, pG[0], pG[1], 896)
a.vmq = []
a("s_lshl_b32 s75, %s, 7\ns_sub_u32 s76, %s, 14\ns_lshl_b32 s76, s76, 6\ns_add_u32 s75, s75, s76\ns_lshl_b32 s76, s3, 4\ns_add_u32 s75, s75, s76" % (sRB, sJ))
a("v_lshrrev_b32 v2, 3, v1\nv_add_u32 v2, s75, v2\nv_and_b32 v3, 7, v1\nv_lshlrev_b32 v3, 4, v3")
a("v_mul_u32_u24 v4, 896, v2\nv_add_u32 v4, v4, v3\nv_add_u32 v5, %d, v4" % (8 * 896))
for i in range(7):
    a.vm("buffer_load_dwordx4 %s, v3, %s, 0 offen offset:%d" % (vr(64 + 4 * i, 4), GW, 128 * i))
    a.vm("buffer_load_dwordx4 %s, v4, %s, 0 offen offset:%d" % (vr(96 + 4 * i, 4), X, 128 * i))
    a.vm("buffer_load_dwordx4 %s, v5, %s, 0 offen offset:%d" % (vr(128 + 4 * i, 4), X, 128 * i))
a("v_mov_b32 v6, 0\nv_mov_b32 v7, 0")
a("v_lshlrev_b32 v2, 2, v2\nv_add_u32 v2, %d, v2\nv_mov_b32 v8, %d\nv_cmp_eq_u32 vcc, 0, v3\ns_nop 1\nv_cndmask_b32 v9, v8, v2, vcc" % (G_OFF, OOB))
get_tag()
a("s_barrier")
arrive(cH2)
if PREF: prefetch_wo()
a.vmwait_all()
for i in range(28):
    a("v_dot2_f32_bf16 v6, v%d, v%d, v6\nv_dot2_f32_bf16 v7, v%d, v%d, v7" % (64 + i, 96 + i, 64 + i, 128 + i))
a.nop(3)
for dpp in ("quad_perm:[1,0,3,2]", "quad_perm:[2,3,0,1]", "row_half_mirror"):
    a("v_add_f32_dpp v6, v6, v6 %s row_mask:0xf bank_mask:0xf\nv_add_f32_dpp v7, v7, v7 %s row_mask:0xf bank_mask:0xf" % (dpp, dpp))
    a.nop(2)
for r in (6, 7):
    a("v_mul_f32 v%d, 0x%x, v%d\nv_exp_f32 v%d, v%d\ns_nop 0\nv_add_f32 v%d, 1.0, v%d\nv_rcp_f32 v%d, v%d\ns_nop 0" % (r, f32(-LOG2E), r, r, r, r, r, r, r))
a.vm("buffer_store_dword v6, v9, %s, 0 offen sc1" % WS)
a.vm("buffer_store_dword v7, v9, %s, 0 offen offset:32 sc1" % WS)

a.label("L_m_join")
a.vmq = ["st"]; a.lgq = []
vK, vV, vQ, vG, vIDX = "v26", "v25", "v24", "v23", "v22"
OAD = 19
def Qf(tau, m): return 32 + 8 * tau + 4 * m
def KV(b, k): return vr(192 + 16 * b + 4 * k, 4)
def Oa(tau): return 128 + 16 * tau
def Sb(tau): return 64 + 16 * tau
a("""
s_add_u32 s73, %s, 7
s_lshr_b32 s73, s73, 1
s_add_u32 s74, %s, 7
s_lshr_b32 s74, s74, 1
s_add_u32 s75, %s, 14
s_lshr_b32 s75, s75, 1
s_add_u32 s76, %s, 14
s_lshr_b32 s76, s76, 1
s_lshr_b32 s77, %s, 1
s_lshr_b32 s78, %s, 1
s_lshr_b32 s83, s3, 1
s_add_u32 s83, s83, 14
""" % (sC0, sC1, sC0, sC1, sC0, sC1))
lane_select("v2", [(0, "s73"), (4, "s74"), (8, "s75"), (12, "s76"), (16, "s77"), (17, "s78"), (18, "s83")], "v3")
a("s_lshl_b32 s73, s3, 2\nv_and_b32 v3, 3, v1\nv_add_u32 v3, s73, v3\nv_mov_b32 v4, %s\nv_cmp_le_u32 vcc, 16, v1\ns_nop 1\nv_cndmask_b32 v3, v3, v4, vcc" % sQB)
a("v_lshl_add_u32 v2, v2, 4, v3\nv_lshlrev_b32 v2, 7, v2\nv_add_u32 %s, %d, v2" % (vPOLL, F1))
a("s_lshl_b32 s73, %s, 9" % sU0)
a("s_mul_i32 s74, s3, %d\ns_add_u32 s74, s74, s73\ns_add_u32 s74, s74, %d\nv_add_u32 %s, s74, %s" % (16 * T_TILE, T_OFF + 7 * 4096, vK, vL16))
a("s_lshl_b32 s74, %s, 17\ns_lshl_b32 s75, s3, 15\ns_add_u32 s74, s74, s75\ns_add_u32 s74, s74, %d\nv_add_u32 %s, s74, %s" % (sH, N_OFF, vV, vL16))
a("s_mul_i32 s74, %s, %d\ns_add_u32 s74, s74, s73\nv_add_u32 %s, s74, %s" % (sQB, 4 * T_TILE, vQ, vL16))
o_addr(OAD, vL16, "v2", "v3")
a("s_cmp_eq_u32 %s, 0\ns_mov_b32 s86, 0\ns_cselect_b32 s87, -1, 0\ns_cselect_b32 s88, 0, -1\ns_mov_b32 s89, 0" % sODD)
a("v_mov_b32 %s, 0xdddddddd" % vIDX)
def zero_o():
    for i in range(64): a("v_mov_b32 v%d, 0" % (128 + i))
zero_o()
for tau in range(4):
    a("s_add_u32 s73, s3, %d\ns_and_b32 s73, s73, 3\ns_mul_i32 s%d, s73, %d" % (1 + tau, 74 + tau, T_TILE))
if MPRIO: a("s_setprio 0")
a.vmwait_all()
stamp("m_drained")
publish(cM1, sF12, F1)
if PDELAY: a("s_sleep %d" % PDELAY)
poll(4, 1, vPOLL, PSLEEP)
stamp("m_f1seen")
def kv_load(kt, k):
    if k < 2: a.vm("buffer_load_dwordx4 %s, %s, %s, %s offen offset:%d sc1" % (KV(kt & 3, k), vK, WS, sSK, 1024 * k), "k%d" % kt)
    else: a.vm("buffer_load_dwordx4 %s, %s, %s, %s offen offset:%d sc1" % (KV(kt & 3, k), vV, WS, sSV, 1024 * (k - 2)), "v%d" % kt)
def kv_off(kt, k): a("s_mov_b32 %s, %d" % ((sSK, kt * T_TILE) if k == 0 else (sSV, kt * 2048)))
def q_load(tau):
    for m in range(2): a.vm("buffer_load_dwordx4 %s, %s, %s, s%d offen offset:%d sc1" % (vr(Qf(tau, m), 4), vQ, WS, 74 + tau, 1024 * m), "q%d" % tau)
def q_fix(tau):
    for k in (0, 1): a("v_cndmask_b32 v%d, v%d, %s, %s" % (Qf(tau, 0) + k, Qf(tau, 0) + k, vZERO, sMB))
    for k in (2, 3): a("v_cndmask_b32 v%d, v%d, %s, %s" % (Qf(tau, 1) + k, Qf(tau, 1) + k, vZERO, sMA))
kv_off(0, 0); kv_off(0, 1)
kv_load(0, 0); kv_load(0, 1); q_load(0); q_load(1); kv_load(0, 2); kv_load(0, 3); q_load(2); q_load(3)
kv_off(1, 0); kv_off(1, 1)
for k in range(4): kv_load(1, k)
load_g(vG, "v2")
def M(n, m):
    kt, tau = n >> 2, n & 3
    mfma(vr(Sb(tau), 16), KV(kt & 3, m), vr(Qf(tau, m), 4), m == 0)
def P(n, m):
    kt, tau = n >> 2, n & 3
    a("v_smfmac_f32_32x32x32_bf16 %s, %s, %s, %s" % (vr(Oa(tau), 16), KV(kt & 3, 2 + m), vr(Sb(tau) + 8 * m, 8), vIDX))
def E(n, q):
    for k in range(4 * q, 4 * q + 4): a("v_exp_f32 v%d, v%d" % (Sb(n & 3) + k, Sb(n & 3) + k))
a.vmwait("q0"); q_fix(0)
stamp("m_attn0"); rstamp("R_attn0")
a.nop(1)
M(0, 0); M(0, 1)
a.vmwait("q1"); q_fix(1)
a.nop(6)
sched = {n: [] for n in range(64)}
for i, (kt, k) in enumerate([(2, 0), (2, 1), (2, 2), (2, 3), (3, 0), (3, 1), (3, 2), (3, 3)]): sched[i // 2].append((kt, k))
for kt in range(4, 16):
    for k in range(4): sched[4 * (kt - 3) + k].append((kt, k))
for n in range(64):
    ld = sched[n]
    if n < 63: M(n + 1, 0)
    for kt, k in ld:
        if k in (0, 2): kv_off(kt, k >> 1)
    E(n, 0)
    if n < 63: M(n + 1, 1)
    if n == 0: a.vmwait("v0")
    E(n, 1)
    if n > 0: P(n - 1, 1)
    if ld: kv_load(*ld[0])
    E(n, 2)
    P(n, 0)
    if len(ld) > 1: kv_load(*ld[1])
    if n < 2: a.vmwait("q%d" % (n + 2))
    elif NOWAIT: pass
    elif (n & 3) == 2 and n + 2 < 64: a.vmwait("k%d" % ((n + 2) // 4))
    elif (n & 3) == 3 and n + 1 < 64: a.vmwait("v%d" % ((n + 1) // 4))
    E(n, 3)
    if n < 2: q_fix(n + 2)
    if n in (7, 15, 31, 47): stamp("m_slot%d" % n)
a.nop(2)
P(63, 1)
stamp("m_attn_end"); rstamp("R_attn_end")
spin(cWA, 4)
a("s_mov_b32 s77, 4")
a.label("L_reduce")
for tau in range(3):
    a("s_add_u32 s73, s3, %d\ns_and_b32 s73, s73, 3\ns_mul_i32 s73, s73, 12288\ns_add_u32 s73, s73, %d\nv_add_u32 v2, s73, %s" % (1 + tau, RED + tau * 4096, vL16))
    for i in range(4):
        a.ds("ds_write_b128 v2, %s offset:%d" % (vr(Oa(tau) + 4 * i, 4), 1024 * i))
a("s_mul_i32 s73, s3, 12288\ns_add_u32 s73, s73, %d\nv_add_u32 v2, s73, %s" % (RED, vL16))
a("v_mov_b32 v3, v2")
arrive(cRD)
spin(cRD, "s77", 0)
for k in range(12):
    a.ds("ds_read_b128 %s, v3 offset:%d" % (vr(64 + 4 * k, 4), 1024 * k), k // 4)
O3 = Oa(3)
for s in range(3):
    a.dswait(s)
    for q in range(8):
        a("v_pk_add_f32 %s, %s, %s" % (vr(O3 + 2 * q, 2), vr(O3 + 2 * q, 2), vr(64 + 16 * s + 2 * q, 2)))
bcast_hi("v4", vr(O3 + 12), "v5")
a("v_rcp_f32 v6, v4\nv_mov_b32 v8, 0\nv_mov_b32 v9, 0\nv_mul_f32 v6, v6, %s\nv_mov_b32 v7, v6" % vG)
for q in range(8):
    a("v_pk_mul_f32 %s, %s, v[6:7]" % (vr(64 + 2 * q, 2), vr(O3 + 2 * q, 2)))
for q in range(8):
    a("v_cvt_pk_bf16_f32 v%d, v%d, v%d" % (80 + q, 64 + 2 * q, 65 + 2 * q))
store_o(80, OAD, 0, "oa")
stamp("m_oa_stored")
for q in range(8):
    a("v_pk_fma_f32 v[8:9], %s, 0, v[8:9] op_sel_hi:[1,0,1]" % vr(O3 + 2 * q, 2))
a("v_add_f32 v8, v8, v9\nv_add_f32 v4, v4, v8")
a("v_cmp_nle_f32 vcc, 0x%x, v4\ns_mov_b64 s[94:95], vcc\nv_cmp_nge_f32 vcc, 0x%x, v4\ns_or_b64 vcc, vcc, s[94:95]" % (f32(2.0 ** -64), f32(2.0 ** 64)))
a("s_cmp_lg_u64 vcc, 0\ns_cselect_b32 s74, 0x101, %d\ns_andn2_b32 s74, s74, %s\nv_mov_b32 v3, s74" % (0x101 if FORCE_FB else 1, sFB))
a.vmwait_all()
arrive(cVT, True, "v3")
a("s_add_u32 s75, s83, s74\ns_and_b32 s76, s75, 0xff\ns_cmp_lg_u32 s76, s77\ns_cbranch_scc1 L_notlast")
a("s_lshr_b32 s75, s75, 8\ns_cmp_lg_u32 s75, 0\ns_cselect_b32 s75, 0x100, 0\ns_andn2_b32 s75, s75, %s\ns_cmp_lg_u32 s75, 0\ns_cbranch_scc1 L_fallback" % sFB)
flag_store(sF345, F5)
stamp("m_f5sent")
a("s_branch L_fin")
a.label("L_notlast")
a("s_cmp_lg_u32 %s, 0\ns_cbranch_scc1 L_fin" % sFB)
spin(cVT, 4, 1, 0xff)
a("s_lshr_b32 s73, s83, 8\ns_cmp_eq_u32 s73, 0\ns_cbranch_scc1 L_fin")

a.label("L_fallback")
a("s_mov_b32 %s, 0x100\ns_mov_b32 s77, 8\ns_waitcnt vmcnt(0)" % sFB)
for t in range(4): a("v_mov_b32 v%d, 0xff800000" % (8 + t))
a("s_mov_b32 %s, 0" % sSK)
a.label("L_fb1")
for m in range(2): kv_load(0, m)
a("s_waitcnt vmcnt(0)")
for t in range(4):
    M(t, 0); M(t, 1)
a.nop(12)
for t in range(4):
    for q in range(8): a("v_max3_f32 v%d, v%d, v%d, v%d" % (8 + t, Sb(t) + 2 * q, Sb(t) + 2 * q + 1, 8 + t))
a("s_add_u32 %s, %s, %d\ns_cmp_lt_u32 %s, %d\ns_cbranch_scc1 L_fb1" % (sSK, sSK, T_TILE, sSK, 16 * T_TILE))
for t in range(4):
    a("v_mov_b32 v2, v%d\nv_mov_b32 v3, v%d\ns_nop 1\nv_permlane32_swap_b32 v2, v3\nv_max_f32 v2, v2, v3" % (8 + t, 8 + t))
    a("s_add_u32 s73, s3, %d\ns_and_b32 s73, s73, 3\ns_lshl_b32 s73, s73, 10\ns_add_u32 s73, s73, %d\nv_lshlrev_b32 v4, 2, v1\nv_add_u32 v%d, s73, v4" % (1 + t, RED, 12 + t))
    a("s_lshl_b32 s73, s3, 8\nv_add_u32 v4, s73, v%d\nds_write_b32 v4, v2" % (12 + t))
arrive(cFB0)
spin(cFB0, 4)
for t in range(4):
    for k in range(4): a("ds_read_b32 v%d, v%d offset:%d" % (2 + k, 12 + t, 256 * k))
    a("s_waitcnt lgkmcnt(0)\nv_max3_f32 v2, v2, v3, v4\nv_max_f32 v%d, v2, v5" % (8 + t))
arrive(cFB1)
spin(cFB1, 4)
zero_o()
a("s_mov_b32 %s, 0\ns_mov_b32 %s, 0" % (sSK, sSV))
a.label("L_fb2")
for k in range(4): kv_load(0, k)
a("s_waitcnt vmcnt(0)")
for t in range(4):
    M(t, 0); M(t, 1)
a.nop(12)
for t in range(4):
    for q in range(16): a("v_sub_f32 v%d, v%d, v%d" % (Sb(t) + q, Sb(t) + q, 8 + t))
    for q in range(16): a("v_exp_f32 v%d, v%d" % (Sb(t) + q, Sb(t) + q))
a.nop(2)
for t in range(4):
    P(t, 0); P(t, 1)
a.nop(12)
a("s_add_u32 %s, %s, %d\ns_add_u32 %s, %s, 2048\ns_cmp_lt_u32 %s, %d\ns_cbranch_scc1 L_fb2" % (sSK, sSK, T_TILE, sSV, sSV, sSV, 16 * 2048))
a("s_branch L_reduce")

a.label("L_helper")
a.vmq = []; a.lgq = []
if HPRIO: a("s_setprio %d" % HPRIO)
a("v_lshrrev_b32 v10, 3, v1\nv_and_b32 v11, 7, v1\nv_lshrrev_b32 v12, 4, v1")
a("s_lshl_b32 s75, %s, 7\ns_lshl_b32 s76, s3, 5\ns_add_u32 s75, s75, s76\ns_mul_i32 s75, s75, 896" % sRB)
a("v_mul_u32_u24 v13, 896, v10\nv_add_u32 v14, s75, v13")
for i in range(4):
    a("v_add_u32 v2, %d, v12\nv_and_b32 v2, 7, v2\nv_xor_b32 v2, v2, v11\nv_lshl_add_u32 v%d, v2, 4, v14" % (4 * i, 3 + i))
    if i: a("v_add_u32 v%d, %d, v%d" % (3 + i, i * (8 * 896 - 1024), 3 + i))
a("v_and_b32 v2, 1, v12\nv_lshlrev_b32 v2, 2, v2\nv_xor_b32 v2, v2, v11")
a("s_mul_i32 s76, s3, %d\nv_mul_u32_u24 v14, 2688, v10\nv_add_u32 v14, s76, v14\nv_lshl_add_u32 v7, v2, 4, v14\nv_add_u32 v8, %d, v7" % (16 * 2688, 8 * 2688 - 1024))
a("s_mul_i32 s76, s3, %d\ns_lshl_b32 s77, %s, 7\ns_add_u32 s76, s76, s77\nv_add_u32 v13, s76, v13\nv_lshl_add_u32 v26, v2, 4, v13" % (112 * 896, sCC))
a("s_waitcnt lgkmcnt(0)")
a("s_mov_b32 s73, %d\ns_load_dword %s, s[58:59], s73" % (EPOCH_OFF, sTAG))
srd(X, pX[0], pX[1], 2048 * 896)
for c, reg in ((0, W0), (1, W1)):
    n = int(reg[2:].split(":")[0])
    a("""
s_lshl_b32 s75, %s, 1
s_add_u32 s75, s75, %d
s_sub_u32 s76, s75, 7
s_cmp_lt_u32 s75, 21
s_cselect_b32 s75, s75, s76
s_cselect_b32 s%d, %s, %s
s_cselect_b32 s%d, %s, %s
s_min_u32 s75, s75, 20
s_lshl_b32 s75, s75, 7
s_add_u32 s%d, s%d, s75
s_addc_u32 s%d, s%d, 0
s_sub_u32 s%d, %d, s75
s_mov_b32 s%d, 0x20000
""" % (sJ, c, n, pWA[0], pWB[0], n + 1, pWA[1], pWB[1], n, n, n + 1, n + 1, n + 2, WBYTES, n + 3))
a("s_cmp_ge_u32 %s, 14\ns_cbranch_scc1 L_h_gate" % sJ)
if HDELAY: a("s_sleep %d" % HDELAY)
def dma_slab(s):
    slot = SLOT[s]
    a("s_add_u32 m0, %s, %d\ns_mov_b32 s73, %d" % (sMX, slot * 32768, s * 128))
    for i in range(4): a.vm("buffer_load_dwordx4 v%d, %s, s73 offen offset:%d lds" % (3 + i, X, 1024 * i), "slab%d" % s)
    for c, reg in ((0, W0), (1, W1)):
        a("s_add_u32 m0, %s, %d\ns_mov_b32 s73, %d" % (sMWc, slot * 32768 + 16384 + c * 8192, s * 64 * 2688))
        for i in range(2): a.vm("buffer_load_dwordx4 v%d, %s, s73 offen offset:%d lds" % (7 + i, reg, 1024 * i), "slab%d" % s)
def dma_w2(s2):
    a("s_add_u32 m0, %s, %d\ns_mov_b32 s73, %d" % (sMWc, W2B + s2 * 8192, s2 * 64 * 2688))
    for i in range(2): a.vm("buffer_load_dwordx4 v%d, %s, s73 offen offset:%d lds" % (7 + i, W2, 1024 * i), "w2")
def other_srds():
    a("s_lshl_b32 s75, %s, 7\ns_add_u32 s16, %s, s75\ns_addc_u32 s17, %s, 0\ns_sub_u32 s18, %d, s75\ns_mov_b32 s19, 0x20000" % (sJ, pWB[0], pWB[1], WBYTES))
    srd(WS, pWs[0], pWs[1], WS_SIZE)
    srd(OUT, pOut[0], pOut[1], 2048 * 896)
    srd(WOA, pWoA[0], pWoA[1], 448 * 896)
    srd(WOB, pWoB[0], pWoB[1], 448 * 896)
for s in range(AHEAD): dma_slab(s)
stamp("h_issued")
other_srds()
vmq0 = list(a.vmq)
a("s_cmp_ge_u32 %s, 7\ns_cbranch_scc1 L_h_N" % sJ)
def Xh(g): return vr(144 + 4 * g, 4)
def acc2(ct): return 64 + 16 * ct
def Wh(g, ct, e=None):
    b = 32 + 8 * (g & 3) + 4 * ct
    return vr(b, 4) if e is None else vr(b + 2 * e, 2)
def helper_p1(T):
    a.vmq = list(vmq0); a.lgq = []
    tmp = ["v10", "v11", "v12", "v13"]
    x_addr(96, T, sMX, tmp)
    tr_addr("v13", T, "v10", "v11", "v12")
    a("v_add_u32 v108, %d, v13\nv_xor_b32 v109, 64, v108" % W2B)
    a("s_lshl_b32 s75, %s, 2\ns_add_u32 s75, s75, s3" % sRB)
    if T:
        a("s_mul_i32 s77, s75, %d\ns_add_u32 s78, %s, 14\ns_lshl_b32 s78, s78, 12\ns_add_u32 s78, s78, s77\nv_add_u32 v110, s78, %s\nv_add_u32 v111, 2048, v110" % (T_TILE, sJ, vL16))
    else:
        a("s_lshl_b32 s75, s75, 11\ns_add_u32 s77, s75, %d" % (N_OFF + 2 * N_KIND))
        for ct in range(2):
            a("s_sub_u32 s73, %s, 7\ns_lshl_b32 s73, s73, 6\ns_add_u32 s73, s73, %d\nv_and_b32 v14, 31, v1\nv_add_u32 v14, s73, v14" % (sJ, 32 * ct))
            n_addr("v%d" % (110 + ct), "s77", "v14", False, tmp)
    for s in range(7):
        a.vmwait("slab%d" % s)
        if s: a.dswait_all()
        a("s_barrier")
        slot = SLOT[s]; hi, lo = slot >> 1, (slot & 1) * 32768
        for t in range(4): a.ds("ds_read_b128 %s, v%d offset:%d" % (Xh(4 * s + t), 96 + 4 * hi + t, lo))
        k = s + AHEAD
        if k < 7: dma_slab(k)
        if s == 4 or (s == 5 and False): pass
        if s == 4:
            for k2 in range(4): dma_w2(k2)
        if s == 5:
            for k2 in range(4, 7): dma_w2(k2)
    a.vmwait("w2")
    get_tag()
    arrive(cW2)
    spin(cW2, 4, 0)
    stamp("h_r2_start")
    def reads(g):
        for ct in range(2):
            for e in range(2):
                a.ds("ds_read_b64_tr_b16 %s, v%d offset:%d" % (Wh(g, ct, e), 108 + ct, (g >> 2) * 8192 + (g & 3) * 2048 + e * 512), g)
    reads(0); reads(1)
    for g in range(28):
        a.dswait(g)
        for ct in range(2):
            if T: mfma(vr(acc2(ct), 16), Wh(g, ct), Xh(g), g == 0)
            else: mfma(vr(acc2(ct), 16), Xh(g), Wh(g, ct), g == 0)
            if ct == 0 and g < 26: reads(g + 2)
            if ct == 0 and g == 27: arrive(cH2)
    stamp("h_r2_end")
helper_p1(True)
a("s_branch L_h_phi")
a.label("L_h_N")
helper_p1(False)
a.label("L_h_phi")
a.vmq = []; a.lgq = []
a("s_mov_b32 s84, 0x%x\ns_mov_b32 s85, s84\ns_mov_b32 s94, 0x%x\ns_mov_b32 s95, s94" % (f32(LOG2E), f32(1e-6)))
a.nop(8)
for ct in range(2):
    b = acc2(ct)
    for q in range(8): a("v_pk_mul_f32 %s, %s, %s" % (vr(112 + 2 * q, 2), vr(b + 2 * q, 2), sSCL))
    for q in range(16): a("v_exp_f32_e64 v%d, v%d clamp" % (112 + q, 112 + q))
    for q in range(16): a("v_max_f32 v%d, 0, v%d" % (b + q, b + q))
    for q in range(8): a("v_pk_add_f32 %s, %s, %s" % (vr(b + 2 * q, 2), vr(b + 2 * q, 2), vr(112 + 2 * q, 2)))
    for q in range(8): a("v_pk_add_f32 %s, %s, s[94:95]" % (vr(b + 2 * q, 2), vr(b + 2 * q, 2)))
    for q in range(8): a("v_cvt_pk_bf16_f32 v%d, v%d, v%d" % (32 + 8 * ct + q, b + 2 * q, b + 2 * q + 1))
    for m in range(2): a.vm("buffer_store_dwordx4 %s, v%d, %s, 0 offen offset:%d sc1" % (vr(32 + 8 * ct + 4 * m, 4), 110 + ct, WS, 1024 * m), "st2")
stamp("h_phi")
a("s_branch L_h_join")
a.label("L_h_gate")
other_srds()
get_tag()
a("s_barrier")
arrive(cH2)
a.label("L_h_join")
a.vmq = ["st2"]; a.lgq = []
vB1a, vB1b, vSL, vPQ, vGh, vO, vOUT, vWB, vWA = "v25", "v24", "v23", "v22", "v18", "v15", "v14", 10, 12
spin(cH2, 8)
a("s_mul_i32 s75, s3, %d" % (14 * 1024))
def dma_wo(half, reg):
    for i in range(14):
        a("s_add_u32 m0, s75, %d\ns_mov_b32 s74, %d" % (half * 57344 + i * 1024, i * 8 * 896))
        a.vm("buffer_load_dwordx4 v26, %s, s74 offen lds" % reg, "wo")
dma_wo(1, WOA)
a.vmwait("st2")
publish(cF2, sF12, F2)
stamp("h_f2sent")
dma_wo(0, WOB)
stamp("h_wo_issued")
a("""
s_add_u32 s73, %s, 23
s_add_u32 s74, %s, 23
s_add_u32 s75, %s, 16
s_add_u32 s76, %s, 16
s_add_u32 s77, %s, 21
s_lshr_b32 s77, s77, 1
s_add_u32 s78, %s, 21
s_lshr_b32 s78, s78, 1
""" % (sC0, sC1, sC0, sC1, sC0, sC1))
lane_select("v2", [(0, "s73"), (1, "s74"), (2, "s75"), (3, "s76"), (4, "s77"), (5, "s78"), (6, "14"), (7, "15")], "v3")
a("s_lshl_b32 s73, %s, 7\ns_add_u32 s73, s73, %d\nv_lshlrev_b32 v2, 11, v2\nv_add_u32 %s, s73, v2" % (sQB, F1, vPOLL))
a("s_lshl_b32 s73, %s, 17\ns_lshl_b32 s74, %s, 13\ns_add_u32 s73, s73, s74\ns_add_u32 s73, s73, %d" % (sH, sQB, N_OFF + N_KIND))
a("v_lshrrev_b32 v2, 4, v1\nv_and_b32 v3, 15, v1\nv_lshlrev_b32 v3, 4, v3\nv_lshl_add_u32 v2, v2, 9, v3")
a("s_and_b32 s74, s3, 1\ns_lshl_b32 s74, s74, 8\ns_add_u32 s74, s74, s73\nv_add_u32 %s, s74, v2" % vB1b)
a("s_lshr_b32 s74, s3, 1\ns_lshl_b32 s74, s74, 8\ns_add_u32 s74, s74, s73\ns_add_u32 s74, s74, %d\nv_add_u32 %s, s74, v2" % (N_KIND, vB1a))
a("s_lshl_b32 s73, %s, 16\ns_lshl_b32 s74, s3, 10\ns_add_u32 s73, s73, s74\ns_add_u32 s73, s73, %d\nv_add_u32 %s, s73, %s" % (sH, SLAB_OFF, vSL, vL16))
a("s_lshl_b32 s73, %s, 2\ns_add_u32 s73, s73, s3\ns_mul_i32 s73, s73, %d\ns_lshl_b32 s74, %s, 9\ns_add_u32 s73, s73, s74\ns_add_u32 s73, s73, %d\nv_add_u32 %s, s73, %s" % (sQB, T_TILE, sU0, T_OFF + 14 * 4096, vPQ, vL16))
o_addr(OAD, vL16, "v2", "v3")
a("s_lshl_b32 s73, %s, 11\ns_add_u32 s73, s73, %d\nv_and_b32 v2, 15, v1\nv_lshlrev_b32 v3, 7, v2\nv_add_u32 v9, s73, v3" % (sH, F3))
a("s_lshr_b32 s73, %s, 1\ns_lshl_b32 s73, s73, 7\ns_add_u32 s73, s73, %d\nv_lshlrev_b32 v2, 11, v2\nv_add_u32 v8, s73, v2" % (sRB2, F4))
a("s_lshl_b32 s73, %s, 1\ns_and_b32 s74, s3, 1\ns_add_u32 s73, s73, s74\ns_lshr_b32 s74, s3, 1" % sRB2)
a("s_mul_i32 s75, s73, %d\ns_mul_i32 s76, s74, 14336\ns_add_u32 s75, s75, s76\ns_add_u32 s75, s75, %d\nv_add_u32 %s, s75, %s" % (O_TILE, O_OFF, vO, vL16))
a("s_mul_i32 s75, s73, %d\ns_lshl_b32 s76, %s, 7\ns_add_u32 s75, s75, s76\ns_lshl_b32 s76, s74, 6\ns_add_u32 s75, s75, s76" % (32 * 896, sCC))
a("v_and_b32 v2, 31, v1\nv_mul_u32_u24 v2, 896, v2\nv_lshrrev_b32 v3, 5, v1\nv_lshl_add_u32 v2, v3, 4, v2\nv_add_u32 %s, s75, v2" % vOUT)
tr_addr("v4", True, "v2", "v3", "v5")
a("v_xor_b32 v4, s76, v4\ns_mul_i32 s75, s74, 28672\nv_add_u32 v%d, s75, v4\nv_xor_b32 v%d, 64, v%d" % (vWB, vWB + 1, vWB))
a("v_add_u32 v%d, 57344, v%d\nv_add_u32 v%d, 57344, v%d" % (vWA, vWB, vWA + 1, vWB + 1))
a("s_lshl_b32 s73, s74, 2\ns_cmp_eq_u32 %s, 0\ns_cselect_b32 s75, 7, 0\ns_sub_u32 s75, s75, s73" % sODD)
a("v_lshrrev_b32 v2, 4, v1\nv_cmp_eq_u32 %s, s75, v2" % sMA)
a("s_lshl_b32 s73, s73, 8\ns_and_b32 s75, s3, 1\ns_lshl_b32 s75, s75, 8\ns_add_u32 s73, s73, s75\ns_add_u32 s73, s73, %d" % KVX)
a("v_and_b32 v3, 15, v1\nv_lshlrev_b32 v3, 4, v3\nv_and_b32 v4, 1, v2\nv_lshl_add_u32 v3, v4, 9, v3\nv_lshrrev_b32 v4, 1, v2\nv_lshl_add_u32 v3, v4, 3, v3\nv_add_u32 v7, s73, v3")
a("v_add_u32 v6, %d, %s" % (KVX, vL16))
a.vmwait_all()
arrive(cWO)
spin(cWO, 4, 1)
def WAf(g, c, e=None):
    b = 144 + 8 * g + 4 * c
    return vr(b, 4) if e is None else vr(b + 2 * e, 2)
for g in range(14):
    for c in range(2):
        for e in range(2): a.ds("ds_read_b64_tr_b16 %s, v%d offset:%d" % (WAf(g, c, e), vWA + c, g * 2048 + e * 512))
    if g % 3 == 2: a.dswait_all()
a.dswait_all()
arrive(cWA)
stamp("h_wa_read")
group_poll(1)
stamp("h_f2seen")
for k in range(4):
    a("s_mov_b32 s73, %d" % (2048 * k))
    a.vm("buffer_load_dwordx4 %s, %s, %s, s73 offen sc1" % (vr(64 + 8 * k, 4), vB1a, WS), "b1"); pace()
    a.vm("buffer_load_dwordx4 %s, %s, %s, s73 offen sc1" % (vr(68 + 8 * k, 4), vB1b, WS), "b1"); pace()
a("v_mov_b32 %s, v9" % vPOLL)
a.vmwait_all()
for k in range(4):
    a("v_mfma_f32_16x16x32_bf16 v[96:99], %s, %s, %s" % (vr(64 + 8 * k, 4), vr(68 + 8 * k, 4), "v[96:99]" if k else "0"))
a("s_lshl_b32 s73, %s, 12" % sQB)
a.nop(7)
a.vm("buffer_store_dwordx4 v[96:99], %s, %s, s73 offen sc1" % (vSL, WS), "slab")
for m in range(2): a.vm("buffer_load_dwordx4 %s, %s, %s, 0 offen offset:%d sc1" % (vr(56 + 4 * m, 4), vPQ, WS, 1024 * m), "pq")
load_g(vGh, "v2")
a.vmwait("slab")
publish(cF3, sF345, F3)
stamp("h_f3sent")
group_poll(2, 16)
stamp("h_f3seen")
for k in range(16):
    a("s_mov_b32 s73, %d" % (4096 * k))
    a.vm("buffer_load_dwordx4 %s, %s, %s, s73 offen sc1" % (vr(64 + 4 * k, 4), vSL, WS), "b2"); pace()
a("v_mov_b32 %s, v8" % vPOLL)
a.vmwait_all()
for step in (32, 16, 8, 4):
    for k in range(0, step, 2):
        a("v_pk_add_f32 %s, %s, %s" % (vr(64 + k, 2), vr(64 + k, 2), vr(64 + step + k, 2)))
a("v_cvt_pk_bf16_f32 v4, v64, v65\nv_cvt_pk_bf16_f32 v5, v66, v67")
a("v_cndmask_b32 v4, v4, %s, %s\nv_cndmask_b32 v5, v5, %s, %s" % (vZERO, sMA, vZERO, sMA))
a("ds_write_b64 v7, v[4:5]")
arrive(cKV)
spin(cKV, 4, 1)
a("ds_read_b128 v[64:67], v6\nds_read_b128 v[68:71], v6 offset:1024\ns_waitcnt lgkmcnt(0)")
mfma("v[80:95]", "v[64:67]", "v[56:59]", True)
mfma("v[80:95]", "v[68:71]", "v[60:63]")
a("v_sub_f32 v4, 1.0, %s" % vGh)
a.nop(11)
bcast_hi("v2", "v92", "v3")
a("v_add_f32 v2, 0x%x, v2\nv_rcp_f32 v2, v2\ns_nop 0\nv_mul_f32 v2, v2, v4\nv_mov_b32 v3, v2" % f32(1e-6))
for q in range(8): a("v_pk_mul_f32 %s, %s, v[2:3]" % (vr(80 + 2 * q, 2), vr(80 + 2 * q, 2)))
for q in range(8): a("v_cvt_pk_bf16_f32 v%d, v%d, v%d" % (64 + q, 80 + 2 * q, 81 + 2 * q))
store_o(64, OAD, 1, "ob")
a.vmwait_all()
publish(cF4, sF345, F4)
stamp("h_f4sent")
a("s_cmp_eq_u32 %s, 0\ns_cbranch_scc1 L_fin" % sP3)
group_poll(3, 16)
stamp("h_f4seen")
def Of(g): return vr(64 + 4 * g, 4)
def acc3(c): return 32 + 16 * c
def WBf(g, c, e=None):
    b = 120 + 8 * (g % 3) + 4 * c
    return vr(b, 4) if e is None else vr(b + 2 * e, 2)
def wb_reads(g):
    for c in range(2):
        for e in range(2): a.ds("ds_read_b64_tr_b16 %s, v%d offset:%d" % (WBf(g, c, e), vWB + c, g * 2048 + e * 512), g)
for g in range(14):
    if g % 4 == 0: a("s_mov_b32 s73, %d" % (28672 + g * 1024))
    a.vm("buffer_load_dwordx4 %s, %s, %s, s73 offen offset:%d sc1" % (Of(g), vO, WS, (g % 4) * 1024)); pace()
a("v_add_u32 %s, %d, %s" % (vPOLL, F5 - F4, vPOLL))
a.vmwait_all()
stamp("h_ob_loaded")
spin(cVT, 4, 2, 0xff) if P3LATE else spin(cRD, 1, 4)
wb_reads(0); wb_reads(1)
for g in range(14):
    a.dswait(g)
    mfma(vr(acc3(0), 16), WBf(g, 0), Of(g), g == 0)
    if g < 12: wb_reads(g + 2)
    mfma(vr(acc3(1), 16), WBf(g, 1), Of(g), g == 0)
stamp("h_p3b_done")
a("s_xor_b32 s73, s3, 2\ns_lshl_b32 s73, s73, 12\ns_add_u32 s73, s73, %d\nv_add_u32 v6, s73, %s\ns_lshl_b32 s73, s3, 12\ns_add_u32 s73, s73, %d\nv_add_u32 v7, s73, %s" % (FIN, vL16, FIN, vL16))
spin(cVT, 4, 2, 0xff)
group_poll(4, P5DELAY, 4)
stamp("h_f5seen")
for g in range(14):
    if g % 4 == 0: a("s_mov_b32 s73, %d" % (g * 1024))
    a.vm("buffer_load_dwordx4 %s, %s, %s, s73 offen offset:%d sc1" % (Of(g), vO, WS, (g % 4) * 1024), g)
for g in range(14):
    a.vmwait(g)
    if g == 0: stamp("h_oa0")
    mfma(vr(acc3(1), 16), WAf(g, 1), Of(g))
    mfma(vr(acc3(0), 16), WAf(g, 0), Of(g))
a.nop(11)
for i in range(4): a.ds("ds_write_b128 v6, %s offset:%d" % (vr(acc3(1) + 4 * i, 4), 1024 * i))
a.dswait_all()
a("s_barrier")
for i in range(4): a.ds("ds_read_b128 %s, v7 offset:%d" % (vr(64 + 4 * i, 4), 1024 * i), i)
for i in range(4):
    a.dswait(i)
    for q in range(2): a("v_pk_add_f32 %s, %s, %s" % (vr(32 + 4 * i + 2 * q, 2), vr(32 + 4 * i + 2 * q, 2), vr(64 + 4 * i + 2 * q, 2)))
for q in range(8): a("v_cvt_pk_bf16_f32 v%d, v%d, v%d" % (80 + q, 32 + 2 * q, 33 + 2 * q))
for m in range(2): a.vm("buffer_store_dwordx4 %s, %s, %s, 0 offen offset:%d" % (vr(80 + 4 * m, 4), vOUT, OUT, 32 * m))
a("s_or_b32 s73, s2, s3\ns_cmp_lg_u32 s73, 0\ns_cbranch_scc1 L_fin")
a("v_mov_b32 v2, %d\nv_mov_b32 v3, %d\nv_cndmask_b32 v2, v2, v3, %s" % (OOB, EPOCH_OFF, sMZ))
a.vm("buffer_store_dword %s, v2, %s, 0 offen sc1" % (vTAG, WS))
a.label("L_fin")
stamp("end")
if STAMP:
    a("s_getreg_b32 s74, hwreg(HW_REG_HW_ID)\ns_getreg_b32 s75, hwreg(HW_REG_XCC_ID)\nv_writelane_b32 %s, s74, 62\nv_writelane_b32 %s, s75, 63" % (vSTAMP, vSTAMP))
    a("s_cmp_lg_u32 %s, 0xdddddddd" % "s98")
    a("v_lshlrev_b32 v2, 2, v1\ns_lshl_b32 s73, s2, 3\ns_add_u32 s73, s73, s39\ns_lshl_b32 s73, s73, 8\ns_add_u32 s73, s73, %d\ns_nop 4" % STAMP_OFF)
    a("buffer_store_dword %s, v2, %s, s73 offen" % (vSTAMP, WS))
if SPINTO or ENC >= 0:
    a("s_waitcnt vmcnt(0)")
    if ENC >= 0: a("s_sub_u32 s100, s100, s98\ns_min_u32 s100, s100, 5000\ns_add_u32 s100, s100, 4000")
    else: a("s_mov_b32 s100, %d" % SPINTO)
    a.label("L_spinto")
    a("s_memrealtime s[74:75]\ns_waitcnt lgkmcnt(0)\ns_sub_u32 s74, s74, s98\ns_cmp_lt_u32 s74, s100\ns_cbranch_scc1 L_spinto")
a.label("L_end")
a("s_endpgm")

if STAMP:
    i = a.lines.index("v_readfirstlane_b32 s83, v2")
    a.lines.insert(i + 2, "s_mov_b32 s39, s83")
if ENC >= 0 and FILL < 0:
    i = a.lines.index("v_readfirstlane_b32 s83, v2")
    a.lines[i + 2:i + 2] = ["s_waitcnt lgkmcnt(0)", "s_mov_b32 s100, s98"]
probs = check(a.lines)
for p in sorted(set(probs)): print(p, file=sys.stderr)
hdr = open("cdna_kernels/%s.s.ref" % NAME).read().split("; Override launch")[0]
out = hdr + """; Fused single-launch kernel: QKV projections -> softmax attention + linear attention -> gated output projection.
; @launch grid=(256,1,1) block=(512,1,1) lds=%d
.amdgcn_target "amdgcn-amd-amdhsa--gfx950"
.text
.globl %s_kernel
.p2align 8
.type %s_kernel,@function
%s_kernel:
""" % (LDS_BYTES, NAME, NAME, NAME) + a.text() + """.section .rodata,"a"
.p2align 6
.amdhsa_kernel %s_kernel
  .amdhsa_next_free_vgpr 256
  .amdhsa_next_free_sgpr 102
  .amdhsa_accum_offset 256
  .amdhsa_group_segment_fixed_size 0
  .amdhsa_kernarg_size 80
  .amdhsa_user_sgpr_count 2
  .amdhsa_user_sgpr_kernarg_segment_ptr 1
  .amdhsa_system_sgpr_workgroup_id_x 1
.end_amdhsa_kernel
""" % NAME
dst = [x for x in sys.argv[1:] if not x.startswith("--")]
open(dst[0] if dst else "cdna_kernels/%s.s" % NAME, "w").write(out)
open("stamps.txt", "w").write("\n".join(STAMPS))
print("hazards:", len(set(probs)), "lines:", len(a.lines), file=sys.stderr)
```

```python
import sys, struct
from asmlib import Asm, check

NAME = "gated_mix__mha_block__linear_attn_block__prompt"
def flag(n): return ("--" + n) in sys.argv
def opt(n, d):
    for x in sys.argv:
        if x.startswith("--%s=" % n): return int(x.split("=")[1])
    return d
STAMP, FORCE_FB = flag("stamp"), flag("force-fallback")
SPINTO = opt("spinto", 0); ENC = opt("enc", -1)
AHEAD = opt("ahead", 2)
NTX = ["", "nt", "sc1", "sc0 sc1", "sc0 sc1 nt"][opt("ntx", 0)]; NTW = ["", "nt", "sc1", "sc0 sc1", "sc0 sc1 nt"][opt("ntw", 0)]
WOPF = opt("wopf", 6)
PDELAY = opt("pdelay", 16); PSLEEP = opt("psleep", 6); PACE = opt("pace", 4); HDELAY = opt("hdelay", 0); PREF = opt("pref", 1)
P5DELAY = opt("p5delay", 24); P3LATE = opt("p3late", 1); MPRIO = opt("mprio", 2)
HPRIO = opt("hprio", 1)
NOWAIT = flag("nowait")

T_OFF, T_TILE = 0, 21 * 4096
N_OFF, N_KIND = 0x540000, 0x200000
O_OFF, O_TILE = 0xB40000, 112 * 512
SLAB_OFF = 0xEC0000
G_OFF = 0xFC0000
F1, F2, F3, F4, F5 = [0xFC8000 + i * 0x8000 for i in range(5)]
EPOCH_OFF = 0xFF0000
STAMP_OFF = 0x1000000
WS_SIZE = 0x1100000
OOB = 0x40000000
RED = 106496
W2B = 98304
RSV = 155648
KVX = RSV + 1024
FIN = 57344
cM1, cW2, cH2, cF2, cWO, cWA, cF3, cKV, cF4, cREL, cRD, cVT, cFB0, cFB1, cFB2 = range(15)
LDS_BYTES = 163840
SPIN = 1 << 18

def f32(x): return struct.unpack("<I", struct.pack("<f", x))[0]
LOG2E = 1.4426950408889634
QSCALE = 28 ** -0.5 * LOG2E

X, W0, W1, W2, WS, OUT, WOA, WOB = ["s[%d:%d]" % (4 + 4 * i, 7 + 4 * i) for i in range(8)]
GW = W0
sTAG, sRB, sJ, sH, sQB, sU0, sODD, sRB2, sCC, sP3 = ["s%d" % i for i in range(60, 70)]
sC0, sC1, sRTL = "s70", "s71", "s72"
sCNT, sFB, sMX, sMWc = "s79", "s80", "s81", "s82"
sSCL = "s[84:85]"
sMA, sMB, sMZ = "s[86:87]", "s[88:89]", "s[90:91]"
sSK, sSV = "s92", "s93"
sF12, sF345 = "s97", "s96"
STAMPS = {}
vTAG, vFL, vPOLL, vZERO, vSTAMP, vRSV, vONE = "v30", "v29", "v28", "v27", "v31", "v17", "v16"

a = Asm()
def stamp(name):
    if name not in STAMPS: STAMPS[name] = len(STAMPS)
    if STAMP:
        a("s_memrealtime s[98:99]\ns_waitcnt lgkmcnt(0)\nv_writelane_b32 %s, s98, %d" % (vSTAMP, STAMPS[name]))
        a.lgq = []
    if ENC == STAMPS[name]:
        a("s_memrealtime s[100:101]\ns_waitcnt lgkmcnt(0)")
        a.lgq = []

def rstamp(name):
    if name not in STAMPS: STAMPS[name] = len(STAMPS)
    if STAMP:
        a("s_memtime s[98:99]\ns_waitcnt lgkmcnt(0)\nv_writelane_b32 %s, s98, %d" % (vSTAMP, STAMPS[name]))
def vr(b, n=1): return "v%d" % b if n == 1 else "v[%d:%d]" % (b, b + n - 1)
def mfma(d, A, B, zero=False): a("v_mfma_f32_32x32x16_bf16 %s, %s, %s, %s" % (d, A, B, "0" if zero else d))
def srd(reg, lo, hi, size):
    n = int(reg[2:].split(":")[0])
    a("s_mov_b32 s%d, %s\ns_mov_b32 s%d, %s\ns_mov_b32 s%d, %d\ns_mov_b32 s%d, 0x20000" % (n, lo, n + 1, hi, n + 2, size, n + 3))
def swap23(dst, src, t):
    a("v_and_b32 %s, 0x13, %s" % (dst, src))
    a("v_and_b32 %s, 4, %s" % (t, src))
    a("v_lshl_or_b32 %s, %s, 1, %s" % (dst, t, dst))
    a("v_lshrrev_b32 %s, 1, %s" % (t, src))
    a("v_and_or_b32 %s, %s, 4, %s" % (dst, t, dst))
def lane_select(dst, items, t):
    a("v_mov_b32 %s, %s" % (dst, items[0][1]))
    for lo, s in items[1:]:
        a("v_cmp_le_u32 vcc, %d, v1\nv_mov_b32 %s, %s\ns_nop 0\nv_cndmask_b32 %s, %s, %s, vcc" % (lo, t, s, dst, dst, t))
def poll(vdata, n, vaddr, sleep=0):
    top, done = a.newlabel("poll"), a.newlabel("polled")
    a.label(top)
    a("buffer_load_dword%s %s, %s, %s, 0 offen sc1" % ("x4" if n == 4 else "", vr(vdata, n), vaddr, WS))
    a("s_waitcnt vmcnt(0)")
    a.vmq = []
    a("v_cmp_ne_u32 vcc, %s, %s" % (sTAG, vr(vdata)))
    for k in range(1, n):
        a("v_cmp_ne_u32 s[94:95], %s, %s\ns_or_b64 vcc, vcc, s[94:95]" % (sTAG, vr(vdata + k)))
    a("s_cmp_eq_u64 vcc, 0\ns_cbranch_scc1 %s" % done)
    if sleep: a("s_sleep %d" % sleep)
    a("s_sub_u32 %s, %s, 1\ns_cbranch_scc0 %s\ns_mov_b32 %s, 0" % (sCNT, sCNT, top, sCNT))
    a.label(done)
def flag_store(soff, base, t0="v2", t1="v3"):
    a("s_add_u32 s73, %s, %d\nv_mov_b32 %s, %d\nv_mov_b32 %s, s73\nv_cndmask_b32 %s, %s, %s, %s" % (soff, base, t0, OOB, t1, vFL, t0, t1, sMZ))
    a.vm("buffer_store_dword %s, %s, %s, 0 offen sc1" % (vTAG, vFL, WS), "flag")
def arrive(c, rtn=False, val=None):
    a("s_mov_b64 exec, 1")
    if rtn: a("ds_add_rtn_u32 v2, %s, %s offset:%d" % (vRSV, val or vONE, 4 * c))
    else: a.ds("ds_add_u32 %s, %s offset:%d" % (vRSV, val or vONE, 4 * c))
    a("s_mov_b64 exec, -1")
    if rtn:
        a("s_waitcnt lgkmcnt(0)\nv_readfirstlane_b32 s83, v2"); a.lgq = []
def spin(c, target, sleep=1, mask=None):
    top, done = a.newlabel("spin"), a.newlabel("spun")
    a.label(top)
    a("ds_read_b32 v2, %s offset:%d\ns_waitcnt lgkmcnt(0)\nv_readfirstlane_b32 s83, v2" % (vRSV, 4 * c)); a.lgq = []
    if mask: a("s_and_b32 s94, s83, %d\ns_cmp_ge_u32 s94, %s" % (mask, target))
    else: a("s_cmp_ge_u32 s83, %s" % target)
    a("s_cbranch_scc1 %s" % done)
    if sleep: a("s_sleep %d" % sleep)
    a("s_sub_u32 %s, %s, 1\ns_cbranch_scc0 %s\ns_mov_b32 %s, 0" % (sCNT, sCNT, top, sCNT))
    a.label(done)
def publish(c, soff, base):
    skip = a.newlabel("nopub")
    arrive(c, True)
    a("s_cmp_lg_u32 s83, 3\ns_cbranch_scc1 %s" % skip)
    flag_store(soff, base)
    a.label(skip)
def group_poll(phase, delay=0, sleep=4):
    oth, done = a.newlabel("rel"), a.newlabel("reld")
    a("s_cmp_lg_u32 s3, 0\ns_cbranch_scc1 %s" % oth)
    if delay: a("s_sleep %d" % delay)
    poll(4, 1, vPOLL, sleep)
    arrive(cREL)
    a("s_branch %s" % done)
    a.label(oth)
    a("s_waitcnt vmcnt(0)")
    spin(cREL, phase, 3)
    a.label(done)
    a.vmq = []; a.lgq = []
def pace():
    if PACE and len(a.vmq) > PACE:
        a("s_waitcnt vmcnt(%d)" % PACE); a.vmq = a.vmq[-PACE:]
def get_tag():
    a("s_waitcnt lgkmcnt(0)"); a.lgq = []
    a("s_add_u32 %s, %s, 0x9e3779b1\nv_mov_b32 %s, %s" % (sTAG, sTAG, vTAG, sTAG))
def bcast_hi(dst, src, t):
    a("v_mov_b32 %s, %s\nv_mov_b32 %s, %s\ns_nop 1\nv_permlane32_swap_b32 %s, %s" % (t, src, dst, src, t, dst))
def tr_addr(dst, perm, t0, t1, t2):
    a("v_and_b32 %s, 3, v1" % t0)
    if perm: a("v_and_b32 %s, 1, %s\nv_lshrrev_b32 %s, 1, %s\nv_lshl_or_b32 %s, %s, 1, %s" % (t1, t0, t0, t0, t0, t1, t0))
    a("v_bfe_u32 %s, v1, 4, 1\nv_lshl_or_b32 %s, %s, 2, %s" % (t1, t0, t1, t0))
    a("v_bfe_u32 %s, v1, 2, 2\nv_lshrrev_b32 %s, 5, v1\nv_lshl_add_u32 %s, %s, 3, %s" % (t1, t2, t1, t2, t1))
    a("v_lshlrev_b32 %s, 7, %s\nv_lshl_add_u32 %s, %s, 3, %s" % (t1, t1, t1, t0, t1))
    a("v_bfe_u32 %s, v1, 3, 1\nv_lshl_or_b32 %s, %s, 6, %s" % (t0, dst, t0, t1))
def x_addr(base, T, srow, t):
    a("v_and_b32 %s, 31, v1" % t[0])
    if T: a("v_mov_b32 %s, %s" % (t[1], t[0]))
    else: swap23(t[1], t[0], t[2])
    a("v_lshrrev_b32 %s, 5, v1\nv_lshrrev_b32 %s, 1, %s\nv_and_b32 %s, 7, %s" % (t[2], t[3], t[1], t[3], t[3]))
    a("v_lshlrev_b32 %s, 7, %s\nv_add_u32 %s, %s, %s" % (t[1], t[1], t[1], srow, t[1]))
    for k in range(4):
        a("v_add_u32 %s, %d, %s\nv_xor_b32 %s, %s, %s\nv_lshl_add_u32 v%d, %s, 4, %s" % (t[0], 2 * k, t[2], t[0], t[0], t[3], base + k, t[0], t[1]))
        a("v_add_u32 v%d, 65536, v%d" % (base + 4 + k, base + k))
def n_addr(dst, sbase, vf, isV, t):
    a("s_mov_b32 s78, 2341")
    a("v_mul_lo_u32 %s, s78, %s\nv_lshrrev_b32 %s, 16, %s" % (t[0], vf, t[0], t[0]))
    a("v_mul_u32_u24 %s, 28, %s\nv_sub_u32 %s, %s, %s" % (t[1], t[0], t[1], vf, t[1]))
    a("v_and_b32 %s, 1, %s\nv_lshlrev_b32 %s, 2, %s" % (t[2], t[0], t[2], t[2]))
    if isV: a("v_sub_u32 %s, %s, %s\nv_add_u32 %s, 28, %s\nv_min_u32 %s, %s, %s" % (t[1], t[1], t[2], t[3], t[1], t[1], t[1], t[3]))
    else: a("v_add_u32 %s, %s, %s" % (t[1], t[1], t[2]))
    swap23(t[3], t[1], t[2])
    a("v_lshlrev_b32 %s, 17, %s\nv_lshl_add_u32 %s, %s, 4, %s\nv_lshrrev_b32 %s, 5, v1\nv_lshl_add_u32 %s, %s, 9, %s\nv_add_u32 %s, %s, %s" % (t[0], t[0], t[0], t[3], t[0], t[1], t[0], t[1], t[0], dst, sbase, t[0]))
def o_addr(b, vL16, t0, t1):
    a("s_lshl_b32 s73, %s, 2\ns_add_u32 s73, s73, s3\ns_mul_i32 s73, s73, %d\ns_add_u32 s73, s73, %d" % (sQB, O_TILE, O_OFF))
    a("s_add_u32 s74, %s, %s\ns_lshl_b32 s74, s74, 9\ns_add_u32 s74, s74, s73\nv_add_u32 v%d, s74, %s" % (sU0, sODD, b, vL16))
    a("v_cmp_gt_u32 vcc, 32, v1\nv_mov_b32 %s, %d\nv_add_u32 %s, 1024, v%d\nv_cndmask_b32 v%d, %s, %s, vcc" % (t0, OOB, t1, b, b + 1, t0, t1))
    a("s_cmp_eq_u32 %s, 0\ns_cselect_b32 s74, %d, 8\ns_lshl_b32 s75, %s, 9\ns_add_u32 s74, s74, s75\ns_add_u32 s74, s74, s73\ns_sub_u32 s74, s74, 512" % (sODD, 3 * 512, sU0))
    a("v_add_u32 %s, s74, %s\nv_cndmask_b32 v%d, %s, %s, vcc" % (t1, vL16, b + 2, t1, t0))
def store_o(c, b, half, tag):
    a("s_mov_b32 s73, %d" % (half * 56 * 512))
    a.vm("buffer_store_dwordx4 %s, v%d, %s, s73 offen sc1" % (vr(c, 4), b, WS), tag)
    a.vm("buffer_store_dwordx4 %s, v%d, %s, s73 offen sc1" % (vr(c + 4, 4), b + 1, WS), tag)
    a.vm("buffer_store_dwordx2 %s, v%d, %s, s73 offen sc1" % (vr(c + 4, 2), b + 2, WS), tag)
def load_g(dst, t):
    a("s_lshl_b32 s73, %s, 2\ns_add_u32 s73, s73, s3\ns_lshl_b32 s73, s73, 7\ns_add_u32 s73, s73, %d\nv_and_b32 %s, 31, v1\nv_lshlrev_b32 %s, 2, %s" % (sQB, G_OFF, t, t, t))
    a.vm("buffer_load_dword %s, %s, %s, s73 offen sc1" % (dst, t, WS), "g")

a("s_cmp_ge_u32 s2, 256\ns_cbranch_scc1 L_end")
a("s_load_dwordx16 s[40:55], s[0:1], 0\ns_load_dwordx4 s[56:59], s[0:1], 64")
if SPINTO or ENC >= 0: a("s_memrealtime s[98:99]")
if STAMP: a("v_mov_b32 %s, 0" % vSTAMP)
FILL = -1
stamp("entry")
pX, pWA, pWoA, pWB, pWoB, pG, pOut, pWs = [("s%d" % i, "s%d" % (i + 1)) for i in (40, 42, 44, 48, 50, 52, 54, 58)]
WBYTES = 448 * 2688
SLOT = [0, 1, 2, 3, 0, 1, 2]
vL16 = "v0"
if PREF == 1:
    a("""
v_lshrrev_b32 v2, 6, v0
v_and_b32 v1, 63, v0
v_lshl_add_u32 v3, s2, 3, v2
v_mad_u32_u24 v4, v3, 7, v1
v_mad_u32_u24 v5, v3, 5, v1
v_lshlrev_b32 v4, 7, v4
v_min_u32 v5, %d, v5
v_lshlrev_b32 v5, 7, v5
s_mov_b64 exec, 0x7f
s_waitcnt lgkmcnt(0)
global_load_dword v254, v4, s[40:41]
s_mov_b64 exec, 0x1f
global_load_dword v254, v5, s[42:43]
global_load_dword v254, v5, s[48:49]
s_mov_b64 exec, -1
""" % (448 * 21 - 1))
stamp("pf_issued")
a("s_getpc_b64 s[36:37]")
a.label("L_pc")
a("""
s_lshr_b32 s74, s2, 3
v_lshrrev_b32 v2, 6, v0
v_and_b32 v1, 63, v0
v_readfirstlane_b32 s83, v2
v_lshlrev_b32 v2, 3, v2
v_and_or_b32 v2, v1, 7, v2
s_and_b32 s75, s74, 7
v_lshl_add_u32 v2, s75, 6, v2
v_lshlrev_b32 v2, 7, v2
s_mov_b32 s75, L_codeend-L_pc-4
v_min_u32 v2, s75, v2
s_mov_b64 exec, 0xff
global_load_dword v255, v2, s[36:37]
s_mov_b64 exec, -1
v_lshlrev_b32 v0, 4, v1
s_and_b32 s73, s2, 7
s_and_b32 s3, s83, 3
s_and_b32 s75, s73, 1
s_lshl_b32 s75, s75, 3
s_and_b32 s76, s74, 7
s_add_u32 %s, s75, s76
s_lshr_b32 s75, s73, 1
s_lshl_b32 s75, s75, 2
s_lshr_b32 s76, s74, 3
s_add_u32 %s, s75, s76
""" % (sRB, sJ))
def w_srd(reg, sc):
    n = int(reg[2:].split(":")[0])
    a("""
s_lshl_b32 s75, %s, 1
s_add_u32 s75, s75, %s
s_sub_u32 s76, s75, 7
s_cmp_lt_u32 s75, 21
s_cselect_b32 s75, s75, s76
s_cselect_b32 s%d, %s, %s
s_cselect_b32 s%d, %s, %s
s_min_u32 s75, s75, 20
s_lshl_b32 s75, s75, 7
s_add_u32 s%d, s%d, s75
s_addc_u32 s%d, s%d, 0
s_sub_u32 s%d, %d, s75
s_mov_b32 s%d, 0x20000
""" % (sJ, sc, n, pWA[0], pWB[0], n + 1, pWA[1], pWB[1], n, n, n + 1, n + 1, n + 2, WBYTES, n + 3))
def w2_srd():
    a("s_lshl_b32 s75, %s, 7\ns_add_u32 s16, %s, s75\ns_addc_u32 s17, %s, 0\ns_sub_u32 s18, %d, s75\ns_mov_b32 s19, 0x20000" % (sJ, pWB[0], pWB[1], WBYTES))
def roles():
    a("s_and_b32 s73, s2, 7\ns_lshr_b32 s74, s2, 3")
    a("""
s_and_b32 %s, s74, 1
s_lshl_b32 s75, s73, 1
s_add_u32 %s, s75, %s
s_lshr_b32 %s, s74, 1
s_mul_i32 s75, %s, 7
s_lshr_b32 %s, s75, 1
s_mul_i32 s75, s74, 37
s_lshr_b32 s75, s75, 8
s_mul_i32 s76, s75, 7
s_sub_u32 %s, s74, s76
s_lshl_b32 s76, s73, 2
s_add_u32 %s, s76, s75
s_cmp_lt_u32 s74, 28
s_cselect_b32 %s, 1, 0
s_cselect_b32 %s, %s, 0
s_mul_i32 s75, %s, 28
s_lshr_b32 %s, s75, 6
s_add_u32 s75, s75, 27
s_lshr_b32 %s, s75, 6
s_mov_b32 %s, %d
s_mov_b32 %s, 0
""" % (sODD, sH, sODD, sQB, sH, sU0, sCC, sRB2, sP3, sRB2, sRB2, sH, sC0, sC1, sCNT, SPIN, sFB))
    a("s_lshl_b32 s75, %s, 4\ns_add_u32 s75, s75, %s\ns_lshl_b32 %s, s75, 7" % (sJ, sRB, sF12))
    a("s_lshl_b32 s75, %s, 4\ns_add_u32 s75, s75, %s\ns_lshl_b32 %s, s75, 7" % (sH, sQB, sF345))
    a("v_cmp_eq_u32 %s, 0, v1\nv_mov_b32 %s, 0\nv_mov_b32 %s, %d\nv_mov_b32 %s, 1" % (sMZ, vZERO, vRSV, RSV, vONE))
def epoch_load(): a("s_mov_b32 s73, %d\ns_load_dword %s, s[58:59], s73" % (EPOCH_OFF, sTAG))
a("s_lshl_b32 %s, s3, 12\ns_lshl_b32 %s, s3, 11" % (sMX, sMWc))
a("v_lshrrev_b32 v10, 3, v1\nv_and_b32 v11, 7, v1\nv_lshrrev_b32 v12, 4, v1")
a("s_lshl_b32 s75, %s, 7\ns_lshl_b32 s76, s3, 5\ns_add_u32 s75, s75, s76\ns_mul_i32 s75, s75, 896" % sRB)
a("v_mul_u32_u24 v13, 896, v10\nv_add_u32 v14, s75, v13")
for i in range(4):
    a("v_add_u32 v2, %d, v12\nv_and_b32 v2, 7, v2\nv_xor_b32 v2, v2, v11\nv_lshl_add_u32 v%d, v2, 4, v14" % (4 * i, 3 + i))
    if i: a("v_add_u32 v%d, %d, v%d" % (3 + i, i * (8 * 896 - 1024), 3 + i))
a("v_and_b32 v9, 1, v12\nv_lshlrev_b32 v9, 2, v9\nv_xor_b32 v9, v9, v11")
a("s_mul_i32 s76, s3, %d\nv_mul_u32_u24 v14, 2688, v10\nv_add_u32 v14, s76, v14\nv_lshl_add_u32 v7, v9, 4, v14\nv_add_u32 v8, %d, v7" % (16 * 2688, 8 * 2688 - 1024))
a("s_waitcnt lgkmcnt(0)")
stamp("kernarg")
a("s_cmp_lt_u32 s83, 4\ns_cbranch_scc1 L_main")

a.vmq = []; a.lgq = []
srd(X, pX[0], pX[1], 2048 * 896)
a("s_cmp_ge_u32 %s, 14\ns_cbranch_scc1 L_h_gate" % sJ)
if opt("pfwait", 0): a("s_waitcnt vmcnt(0)")
if HDELAY: a("s_sleep %d" % HDELAY)
stamp("h_go")
def other_setup():
    if HPRIO: a("s_setprio %d" % HPRIO)
    epoch_load()
    roles()
    a("s_mul_i32 s76, s3, %d\ns_lshl_b32 s77, %s, 7\ns_add_u32 s76, s76, s77\nv_add_u32 v13, s76, v13\nv_lshl_add_u32 v26, v9, 4, v13" % (112 * 896, sCC))
    w2_srd()
    srd(WS, pWs[0], pWs[1], WS_SIZE)
    srd(OUT, pOut[0], pOut[1], 2048 * 896)
    srd(WOA, pWoA[0], pWoA[1], 448 * 896)
    srd(WOB, pWoB[0], pWoB[1], 448 * 896)
def dma_slab(s):
    slot = SLOT[s]
    a("s_add_u32 m0, %s, %d\ns_mov_b32 s73, %d" % (sMX, slot * 32768, s * 128))
    for i in range(4): a.vm("buffer_load_dwordx4 v%d, %s, s73 offen offset:%d %s lds" % (3 + i, X, 1024 * i, NTX), "slab%d" % s)
    for c, reg in ((0, W0), (1, W1)):
        if s == 0: w_srd(reg, str(c))
        a("s_add_u32 m0, %s, %d\ns_mov_b32 s73, %d" % (sMWc, slot * 32768 + 16384 + c * 8192, s * 64 * 2688))
        for i in range(2): a.vm("buffer_load_dwordx4 v%d, %s, s73 offen offset:%d %s lds" % (7 + i, reg, 1024 * i, NTW), "slab%d" % s)
def dma_w2(s2):
    a("s_add_u32 m0, %s, %d\ns_mov_b32 s73, %d" % (sMWc, W2B + s2 * 8192, s2 * 64 * 2688))
    for i in range(2): a.vm("buffer_load_dwordx4 v%d, %s, s73 offen offset:%d lds" % (7 + i, W2, 1024 * i), "w2")
FIRST = min(AHEAD, opt("first", 2))
for s in range(FIRST): dma_slab(s)
stamp("h_issued")
other_setup()
vmq0 = list(a.vmq)
a("s_cmp_ge_u32 %s, 7\ns_cbranch_scc1 L_h_N" % sJ)
def Xh(g): return vr(144 + 4 * g, 4)
def acc2(ct): return 64 + 16 * ct
def Wh(g, ct, e=None):
    b = 32 + 8 * (g & 3) + 4 * ct
    return vr(b, 4) if e is None else vr(b + 2 * e, 2)
def helper_p1(T):
    a.vmq = list(vmq0); a.lgq = []
    tmp = ["v10", "v11", "v12", "v13"]
    x_addr(96, T, sMX, tmp)
    tr_addr("v13", T, "v10", "v11", "v12")
    a("v_add_u32 v108, %d, v13\nv_xor_b32 v109, 64, v108" % W2B)
    a("s_lshl_b32 s75, %s, 2\ns_add_u32 s75, s75, s3" % sRB)
    if T:
        a("s_mul_i32 s77, s75, %d\ns_add_u32 s78, %s, 14\ns_lshl_b32 s78, s78, 12\ns_add_u32 s78, s78, s77\nv_add_u32 v110, s78, %s\nv_add_u32 v111, 2048, v110" % (T_TILE, sJ, vL16))
    else:
        a("s_lshl_b32 s75, s75, 11\ns_add_u32 s77, s75, %d" % (N_OFF + 2 * N_KIND))
        for ct in range(2):
            a("s_sub_u32 s73, %s, 7\ns_lshl_b32 s73, s73, 6\ns_add_u32 s73, s73, %d\nv_and_b32 v14, 31, v1\nv_add_u32 v14, s73, v14" % (sJ, 32 * ct))
            n_addr("v%d" % (110 + ct), "s77", "v14", False, tmp)
    for s in range(7):
        a.vmwait("slab%d" % s)
        if s: a.dswait_all()
        stamp("h_s%d" % s)
        a("s_barrier")
        slot = SLOT[s]; hi, lo = slot >> 1, (slot & 1) * 32768
        for t in range(4): a.ds("ds_read_b128 %s, v%d offset:%d" % (Xh(4 * s + t), 96 + 4 * hi + t, lo))
        if s == 0:
            for k in range(FIRST, AHEAD): dma_slab(k)
        k = s + AHEAD
        if k < 7: dma_slab(k)
        if s == 4 or (s == 5 and False): pass
        if s == 7 - AHEAD:
            for k2 in range(4): dma_w2(k2)
        if s == 8 - AHEAD:
            for k2 in range(4, 7): dma_w2(k2)
    a.vmwait("w2")
    get_tag()
    arrive(cW2)
    spin(cW2, 4, 0)
    stamp("h_r2_start")
    def reads(g):
        for ct in range(2):
            for e in range(2):
                a.ds("ds_read_b64_tr_b16 %s, v%d offset:%d" % (Wh(g, ct, e), 108 + ct, (g >> 2) * 8192 + (g & 3) * 2048 + e * 512), g)
    reads(0); reads(1)
    for g in range(28):
        a.dswait(g)
        for ct in range(2):
            if T: mfma(vr(acc2(ct), 16), Wh(g, ct), Xh(g), g == 0)
            else: mfma(vr(acc2(ct), 16), Xh(g), Wh(g, ct), g == 0)
            if ct == 0 and g < 26: reads(g + 2)
            if ct == 0 and g == 27: arrive(cH2)
    stamp("h_r2_end")
helper_p1(True)
a("s_branch L_h_phi")
a.label("L_h_N")
helper_p1(False)
a.label("L_h_phi")
a.vmq = []; a.lgq = []
a("s_mov_b32 s84, 0x%x\ns_mov_b32 s85, s84\ns_mov_b32 s94, 0x%x\ns_mov_b32 s95, s94" % (f32(LOG2E), f32(1e-6)))
a.nop(8)
for ct in range(2):
    b = acc2(ct)
    for q in range(8): a("v_pk_mul_f32 %s, %s, %s" % (vr(112 + 2 * q, 2), vr(b + 2 * q, 2), sSCL))
    for q in range(16): a("v_exp_f32_e64 v%d, v%d clamp" % (112 + q, 112 + q))
    for q in range(16): a("v_max_f32 v%d, 0, v%d" % (b + q, b + q))
    for q in range(8): a("v_pk_add_f32 %s, %s, %s" % (vr(b + 2 * q, 2), vr(b + 2 * q, 2), vr(112 + 2 * q, 2)))
    for q in range(8): a("v_pk_add_f32 %s, %s, s[94:95]" % (vr(b + 2 * q, 2), vr(b + 2 * q, 2)))
    for q in range(8): a("v_cvt_pk_bf16_f32 v%d, v%d, v%d" % (32 + 8 * ct + q, b + 2 * q, b + 2 * q + 1))
    for m in range(2): a.vm("buffer_store_dwordx4 %s, v%d, %s, 0 offen offset:%d sc1" % (vr(32 + 8 * ct + 4 * m, 4), 110 + ct, WS, 1024 * m), "st2")
stamp("h_phi")
a("s_branch L_h_join")
a.label("L_h_gate")
other_setup()
get_tag()
a("s_barrier")
arrive(cH2)
a.label("L_h_join")
a.vmq = ["st2"]; a.lgq = []
vB1a, vB1b, vSL, vPQ, vGh, vO, vOUT, vWB, vWA = "v25", "v24", "v23", "v22", "v18", "v15", "v14", 10, 12
a.vmwait_all()
publish(cF2, sF12, F2)
stamp("h_f2sent")
a("s_lshr_b32 s74, s2, 3\ns_mul_i32 s75, s74, 28\ns_mul_i32 s76, s3, 7\ns_add_u32 s75, s75, s76\ns_sub_u32 s76, s75, 448\ns_cmp_lt_u32 s75, 448\ns_cselect_b32 s75, s75, s76")
a("s_cselect_b32 s36, %s, %s\ns_cselect_b32 s37, %s, %s\ns_mul_i32 s75, s75, 896" % (pWoA[0], pWoB[0], pWoA[1], pWoB[1]))
a("v_lshrrev_b32 v2, 3, v1\nv_min_u32 v2, 6, v2\nv_and_b32 v3, 7, v1\nv_min_u32 v3, 6, v3\nv_mul_u32_u24 v2, 896, v2\nv_lshl_add_u32 v2, v3, 7, v2\nv_add_u32 v2, s75, v2")
if opt("woxcd", 1): a("global_load_dword v143, v2, s[36:37]")
def dma_wo(half, reg):
    for i in range(14):
        a("s_add_u32 m0, s75, %d\ns_mov_b32 s74, %d" % (half * 57344 + i * 1024, i * 8 * 896))
        a.vm("buffer_load_dwordx4 v26, %s, s74 offen lds" % reg, "wo"); pace()
a("""
s_add_u32 s73, %s, 23
s_add_u32 s74, %s, 23
s_add_u32 s75, %s, 16
s_add_u32 s76, %s, 16
s_add_u32 s77, %s, 21
s_lshr_b32 s77, s77, 1
s_add_u32 s78, %s, 21
s_lshr_b32 s78, s78, 1
""" % (sC0, sC1, sC0, sC1, sC0, sC1))
lane_select("v2", [(0, "s73"), (1, "s74"), (2, "s75"), (3, "s76"), (4, "s77"), (5, "s78"), (6, "14"), (7, "15")], "v3")
a("s_lshl_b32 s73, %s, 7\ns_add_u32 s73, s73, %d\nv_lshlrev_b32 v2, 11, v2\nv_add_u32 %s, s73, v2" % (sQB, F1, vPOLL))
a("s_lshl_b32 s73, %s, 17\ns_lshl_b32 s74, %s, 13\ns_add_u32 s73, s73, s74\ns_add_u32 s73, s73, %d" % (sH, sQB, N_OFF + N_KIND))
a("v_lshrrev_b32 v2, 4, v1\nv_and_b32 v3, 15, v1\nv_lshlrev_b32 v3, 4, v3\nv_lshl_add_u32 v2, v2, 9, v3")
a("s_and_b32 s74, s3, 1\ns_lshl_b32 s74, s74, 8\ns_add_u32 s74, s74, s73\nv_add_u32 %s, s74, v2" % vB1b)
a("s_lshr_b32 s74, s3, 1\ns_lshl_b32 s74, s74, 8\ns_add_u32 s74, s74, s73\ns_add_u32 s74, s74, %d\nv_add_u32 %s, s74, v2" % (N_KIND, vB1a))
a("s_lshl_b32 s73, %s, 16\ns_lshl_b32 s74, s3, 10\ns_add_u32 s73, s73, s74\ns_add_u32 s73, s73, %d\nv_add_u32 %s, s73, %s" % (sH, SLAB_OFF, vSL, vL16))
a("s_lshl_b32 s73, %s, 2\ns_add_u32 s73, s73, s3\ns_mul_i32 s73, s73, %d\ns_lshl_b32 s74, %s, 9\ns_add_u32 s73, s73, s74\ns_add_u32 s73, s73, %d\nv_add_u32 %s, s73, %s" % (sQB, T_TILE, sU0, T_OFF + 14 * 4096, vPQ, vL16))
o_addr(19, vL16, "v2", "v3")
a("s_lshl_b32 s73, %s, 11\ns_add_u32 s73, s73, %d\nv_and_b32 v2, 15, v1\nv_lshlrev_b32 v3, 7, v2\nv_add_u32 v9, s73, v3" % (sH, F3))
a("s_lshr_b32 s73, %s, 1\ns_lshl_b32 s73, s73, 7\ns_add_u32 s73, s73, %d\nv_lshlrev_b32 v2, 11, v2\nv_add_u32 v8, s73, v2" % (sRB2, F4))
a("s_lshl_b32 s73, %s, 1\ns_and_b32 s74, s3, 1\ns_add_u32 s73, s73, s74\ns_lshr_b32 s74, s3, 1" % sRB2)
a("s_mul_i32 s75, s73, %d\ns_mul_i32 s76, s74, 14336\ns_add_u32 s75, s75, s76\ns_add_u32 s75, s75, %d\nv_add_u32 %s, s75, %s" % (O_TILE, O_OFF, vO, vL16))
a("s_mul_i32 s75, s73, %d\ns_lshl_b32 s76, %s, 7\ns_add_u32 s75, s75, s76\ns_lshl_b32 s76, s74, 6\ns_add_u32 s75, s75, s76" % (32 * 896, sCC))
a("v_and_b32 v2, 31, v1\nv_mul_u32_u24 v2, 896, v2\nv_lshrrev_b32 v3, 5, v1\nv_lshl_add_u32 v2, v3, 4, v2\nv_add_u32 %s, s75, v2" % vOUT)
tr_addr("v4", True, "v2", "v3", "v5")
a("v_xor_b32 v4, s76, v4\ns_mul_i32 s75, s74, 28672\nv_add_u32 v%d, s75, v4\nv_xor_b32 v%d, 64, v%d" % (vWB, vWB + 1, vWB))
a("v_add_u32 v%d, 57344, v%d\nv_add_u32 v%d, 57344, v%d" % (vWA, vWB, vWA + 1, vWB + 1))
a("s_lshl_b32 s73, s74, 2\ns_cmp_eq_u32 %s, 0\ns_cselect_b32 s75, 7, 0\ns_sub_u32 s75, s75, s73" % sODD)
a("v_lshrrev_b32 v2, 4, v1\nv_cmp_eq_u32 %s, s75, v2" % sMA)
a("s_lshl_b32 s73, s73, 8\ns_and_b32 s75, s3, 1\ns_lshl_b32 s75, s75, 8\ns_add_u32 s73, s73, s75\ns_add_u32 s73, s73, %d" % KVX)
a("v_and_b32 v3, 15, v1\nv_lshlrev_b32 v3, 4, v3\nv_and_b32 v4, 1, v2\nv_lshl_add_u32 v3, v4, 9, v3\nv_lshrrev_b32 v4, 1, v2\nv_lshl_add_u32 v3, v4, 3, v3\nv_add_u32 v7, s73, v3")
a("v_add_u32 v6, %d, %s" % (KVX, vL16))
group_poll(1, opt("d2", 0))
stamp("h_f2seen")
for k in range(4):
    a("s_mov_b32 s73, %d" % (2048 * k))
    a.vm("buffer_load_dwordx4 %s, %s, %s, s73 offen sc1" % (vr(64 + 8 * k, 4), vB1a, WS), "b1"); pace()
    a.vm("buffer_load_dwordx4 %s, %s, %s, s73 offen sc1" % (vr(68 + 8 * k, 4), vB1b, WS), "b1"); pace()
a("v_mov_b32 %s, v9" % vPOLL)
a.vmwait_all()
for k in range(4):
    a("v_mfma_f32_16x16x32_bf16 v[96:99], %s, %s, %s" % (vr(64 + 8 * k, 4), vr(68 + 8 * k, 4), "v[96:99]" if k else "0"))
a("s_lshl_b32 s73, %s, 12" % sQB)
a.nop(7)
a.vm("buffer_store_dwordx4 v[96:99], %s, %s, s73 offen sc1" % (vSL, WS), "slab")
for m in range(2): a.vm("buffer_load_dwordx4 %s, %s, %s, 0 offen offset:%d sc1" % (vr(56 + 4 * m, 4), vPQ, WS, 1024 * m), "pq")
load_g(vGh, "v2")
a.vmwait("slab")
publish(cF3, sF345, F3)
stamp("h_f3sent")
spin(cH2, 8)
a("s_mul_i32 s75, s3, %d" % (14 * 1024))
dma_wo(1, WOA); dma_wo(0, WOB)
a.vmwait_all()
arrive(cWO)
stamp("h_wo_landed")
group_poll(2, opt("d3", 0))
stamp("h_f3seen")
for k in range(16):
    a("s_mov_b32 s73, %d" % (4096 * k))
    a.vm("buffer_load_dwordx4 %s, %s, %s, s73 offen sc1" % (vr(64 + 4 * k, 4), vSL, WS), "b2"); pace()
a("v_mov_b32 %s, v8" % vPOLL)
spin(cWO, 4, 1)
def WAf(g, c, e=None):
    b = 144 + 8 * g + 4 * c
    return vr(b, 4) if e is None else vr(b + 2 * e, 2)
for g in range(14):
    for c in range(2):
        for e in range(2): a.ds("ds_read_b64_tr_b16 %s, v%d offset:%d" % (WAf(g, c, e), vWA + c, g * 2048 + e * 512))
    if g % 3 == 2: a.dswait_all()
a.dswait_all()
arrive(cWA)
stamp("h_wa_read")
a.vmwait_all()
for step in (32, 16, 8, 4):
    for k in range(0, step, 2):
        a("v_pk_add_f32 %s, %s, %s" % (vr(64 + k, 2), vr(64 + k, 2), vr(64 + step + k, 2)))
a("v_cvt_pk_bf16_f32 v4, v64, v65\nv_cvt_pk_bf16_f32 v5, v66, v67")
a("v_cndmask_b32 v4, v4, %s, %s\nv_cndmask_b32 v5, v5, %s, %s" % (vZERO, sMA, vZERO, sMA))
a("ds_write_b64 v7, v[4:5]")
arrive(cKV)
spin(cKV, 4, 1)
a("ds_read_b128 v[64:67], v6\nds_read_b128 v[68:71], v6 offset:1024\ns_waitcnt lgkmcnt(0)")
mfma("v[80:95]", "v[64:67]", "v[56:59]", True)
mfma("v[80:95]", "v[68:71]", "v[60:63]")
a("v_sub_f32 v4, 1.0, %s" % vGh)
a.nop(11)
bcast_hi("v2", "v92", "v3")
a("v_add_f32 v2, 0x%x, v2\nv_rcp_f32 v2, v2\ns_nop 0\nv_mul_f32 v2, v2, v4\nv_mov_b32 v3, v2" % f32(1e-6))
for q in range(8): a("v_pk_mul_f32 %s, %s, v[2:3]" % (vr(80 + 2 * q, 2), vr(80 + 2 * q, 2)))
for q in range(8): a("v_cvt_pk_bf16_f32 v%d, v%d, v%d" % (64 + q, 80 + 2 * q, 81 + 2 * q))
store_o(64, 19, 1, "ob")
a.vmwait_all()
publish(cF4, sF345, F4)
stamp("h_f4sent")
a("s_cmp_eq_u32 %s, 0\ns_cbranch_scc1 L_fin" % sP3)
group_poll(3, opt("d4", 16))
stamp("h_f4seen")
def Of(g): return vr(64 + 4 * g, 4)
def acc3(c): return 32 + 16 * c
def WBf(g, c, e=None):
    b = 120 + 8 * (g % 3) + 4 * c
    return vr(b, 4) if e is None else vr(b + 2 * e, 2)
def wb_reads(g):
    for c in range(2):
        for e in range(2): a.ds("ds_read_b64_tr_b16 %s, v%d offset:%d" % (WBf(g, c, e), vWB + c, g * 2048 + e * 512), g)
for g in range(14):
    if g % 4 == 0: a("s_mov_b32 s73, %d" % (28672 + g * 1024))
    a.vm("buffer_load_dwordx4 %s, %s, %s, s73 offen offset:%d sc1" % (Of(g), vO, WS, (g % 4) * 1024)); pace()
a("v_add_u32 %s, %d, %s" % (vPOLL, F5 - F4, vPOLL))
a.vmwait_all()
stamp("h_ob_loaded")
spin(cVT, 4, 2, 0xff) if P3LATE else spin(cRD, 1, 4)
wb_reads(0); wb_reads(1)
for g in range(14):
    a.dswait(g)
    mfma(vr(acc3(0), 16), WBf(g, 0), Of(g), g == 0)
    if g < 12: wb_reads(g + 2)
    mfma(vr(acc3(1), 16), WBf(g, 1), Of(g), g == 0)
stamp("h_p3b_done")
a("s_xor_b32 s73, s3, 2\ns_lshl_b32 s73, s73, 12\ns_add_u32 s73, s73, %d\nv_add_u32 v6, s73, %s\ns_lshl_b32 s73, s3, 12\ns_add_u32 s73, s73, %d\nv_add_u32 v7, s73, %s" % (FIN, vL16, FIN, vL16))
spin(cVT, 4, 2, 0xff)
group_poll(4, P5DELAY, 4)
stamp("h_f5seen")
for g in range(14):
    if g % 4 == 0: a("s_mov_b32 s73, %d" % (g * 1024))
    a.vm("buffer_load_dwordx4 %s, %s, %s, s73 offen offset:%d sc1" % (Of(g), vO, WS, (g % 4) * 1024), g)
for g in range(14):
    a.vmwait(g)
    if g == 0: stamp("h_oa0")
    mfma(vr(acc3(1), 16), WAf(g, 1), Of(g))
    mfma(vr(acc3(0), 16), WAf(g, 0), Of(g))
a.nop(11)
for i in range(4): a.ds("ds_write_b128 v6, %s offset:%d" % (vr(acc3(1) + 4 * i, 4), 1024 * i))
a.dswait_all()
a("s_barrier")
for i in range(4): a.ds("ds_read_b128 %s, v7 offset:%d" % (vr(64 + 4 * i, 4), 1024 * i), i)
for i in range(4):
    a.dswait(i)
    for q in range(2): a("v_pk_add_f32 %s, %s, %s" % (vr(32 + 4 * i + 2 * q, 2), vr(32 + 4 * i + 2 * q, 2), vr(64 + 4 * i + 2 * q, 2)))
for q in range(8): a("v_cvt_pk_bf16_f32 v%d, v%d, v%d" % (80 + q, 32 + 2 * q, 33 + 2 * q))
for m in range(2): a.vm("buffer_store_dwordx4 %s, %s, %s, 0 offen offset:%d" % (vr(80 + 4 * m, 4), vOUT, OUT, 32 * m))
a("s_or_b32 s73, s2, s3\ns_cmp_lg_u32 s73, 0\ns_cbranch_scc1 L_fin")
a("v_mov_b32 v2, %d\nv_mov_b32 v3, %d\nv_cndmask_b32 v2, v2, v3, %s" % (OOB, EPOCH_OFF, sMZ))
a.vm("buffer_store_dword %s, v2, %s, 0 offen sc1" % (vTAG, WS))
a("s_branch L_fin")
def Xm(buf, rtl): return vr(32 + 16 * buf + 4 * rtl, 4)
def Wm(buf, ct, e=None):
    b = 40 + 16 * buf + 4 * ct
    return vr(b, 4) if e is None else vr(b + 2 * e, 2)
def acc1(rtl, ct): return 64 + 32 * rtl + 16 * ct
def main_p1(T):
    a.vmq = []; a.lgq = []
    tmp = ["v2", "v3", "v4", "v5"]
    a("s_and_b32 s73, s3, 1\ns_lshr_b32 s74, s3, 1\ns_lshl_b32 s75, s73, 13")
    x_addr(128, T, "s75", tmp)
    tr_addr("v5", T, "v2", "v3", "v4")
    a("s_lshl_b32 s75, s74, 13\ns_add_u32 s75, s75, 16384\nv_add_u32 v140, s75, v5\nv_xor_b32 v141, 64, v140")
    for ct in range(2): a("v_add_u32 v%d, 65536, v%d" % (142 + ct, 140 + ct))
    a("s_lshl_b32 s75, %s, 2\ns_lshl_b32 s76, s73, 1\ns_add_u32 s75, s75, s76" % sRB)
    a("s_lshl_b32 s76, %s, 1\ns_add_u32 s76, s76, s74" % sJ)
    if T:
        a("s_mul_i32 s77, s75, %d\ns_lshl_b32 s78, s76, 12\ns_add_u32 s78, s78, s77\nv_add_u32 v146, s78, %s" % (T_TILE, vL16))
        a("s_cmp_lt_u32 s76, 7\ns_cselect_b32 s84, 0x%x, 1.0\ns_mov_b32 s85, s84\ns_mov_b32 %s, %d" % (f32(QSCALE), sRTL, T_TILE))
    else:
        a("s_lshl_b32 s75, s75, 11\ns_add_u32 s75, s75, %d" % N_OFF)
        a("s_sub_u32 s76, s76, 14\ns_sub_u32 s77, s76, 7\ns_cmp_lt_u32 s76, 7\ns_cselect_b32 s76, s76, s77\ns_cselect_b32 s77, 0, %d\ns_add_u32 s77, s77, s75" % N_KIND)
        for ct in range(2):
            a("s_lshl_b32 s73, s76, 6\ns_add_u32 s73, s73, %d\nv_and_b32 v6, 31, v1\nv_add_u32 v6, s73, v6" % (32 * ct))
            n_addr("v%d" % (146 + ct), "s77", "v6", True, tmp)
        a("s_lshl_b32 s73, s76, 6\ns_add_u32 s74, s73, 27\ns_mul_i32 s74, s74, 2341\ns_lshr_b32 s74, s74, 16\ns_add_u32 s73, s73, 64")
        a("v_lshrrev_b32 v2, 4, v1\nv_add_u32 v2, s74, v2\nv_mul_u32_u24 v3, 28, v2\nv_cmp_gt_u32 vcc, s73, v3")
        a("v_lshlrev_b32 v2, 17, v2\nv_bfe_u32 v3, v1, 2, 2\nv_lshl_add_u32 v2, v3, 9, v2\nv_and_b32 v3, 3, v1\nv_lshl_add_u32 v2, v3, 4, v2")
        a("v_add_u32 v2, s77, v2\nv_add_u32 v2, %d, v2\nv_mov_b32 v4, %d\nv_cndmask_b32 v148, v4, v2, vcc" % (28 * 16, OOB))
        a("v_cmp_eq_u32 vcc, 0, v3\nv_mov_b32 v4, 0x3f803f80\ns_nop 0\nv_cndmask_b32 v152, %s, v4, vcc" % vZERO)
        a("v_mov_b32 v153, v152\nv_mov_b32 v154, v152\nv_mov_b32 v155, v152")
    def mm(rtl, ct, g):
        if T: mfma(vr(acc1(rtl, ct), 16), Wm(g & 1, ct), Xm(g & 1, rtl), g == 0)
        else: mfma(vr(acc1(rtl, ct), 16), Xm(g & 1, rtl), Wm(g & 1, ct), g == 0)
    def reads(g):
        s, t = g >> 2, g & 3; slot = SLOT[s]; hi, lo = slot >> 1, (slot & 1) * 32768
        rx = [lambda rtl=rtl: a.ds("ds_read_b128 %s, v%d offset:%d" % (Xm(g & 1, rtl), 128 + 4 * hi + t, lo + rtl * 4096), g) for rtl in range(2)]
        rw = [lambda ct=ct, e=e: a.ds("ds_read_b64_tr_b16 %s, v%d offset:%d" % (Wm(g & 1, ct, e), 140 + 2 * hi + ct, lo + t * 2048 + e * 512), g) for ct in range(2) for e in range(2)]
        return [rx[0], rw[0], rw[1], rw[2], rw[3], rx[1]]
    get_tag()
    a("s_barrier")
    stamp("m_slab0")
    for r in reads(0): r()
    for g in range(28):
        a.dswait(g)
        mm(0, 0, g)
        if (g & 3) == 3 and g < 27: a("s_barrier")
        if g == 27: arrive(cH2)
        if g == WOPF: prefetch_wo()
        nxt = reads(g + 1) if g < 27 else []
        for r in nxt[:3]: r()
        mm(0, 1, g)
        for r in nxt[3:]: r()
        mm(1, 0, g)
        mm(1, 1, g)
    stamp("m_r1")
    a("s_cmp_lg_u32 s84, 1.0")
    a.nop(8)
    for rtl in range(2):
        for ct in range(2):
            b = acc1(rtl, ct); o = 160 + 8 * (2 * rtl + ct)
            if T:
                skip = a.newlabel("noscale")
                a("s_cbranch_scc0 %s" % skip)
                if (rtl, ct) == (0, 0): pass
                for q in range(16): a("v_mul_f32 v%d, s84, v%d" % (b + q, b + q))
                a.label(skip)
            for q in range(8):
                a("v_cvt_pk_bf16_f32 v%d, v%d, v%d" % (o + q, b + 2 * q, b + 2 * q + 1))
            for m in range(2):
                if T: a.vm("buffer_store_dwordx4 %s, v146, %s, %s offen offset:%d sc1" % (vr(o + 4 * m, 4), WS, sRTL if rtl else "0", ct * 2048 + m * 1024))
                else: a.vm("buffer_store_dwordx4 %s, v%d, %s, 0 offen offset:%d sc1" % (vr(o + 4 * m, 4), 146 + ct, WS, rtl * 2048 + m * 1024))
    if not T:
        for rtl in range(2): a.vm("buffer_store_dwordx4 v[152:155], v148, %s, 0 offen offset:%d sc1" % (WS, rtl * 2048))
    stamp("m_stored")

a.label("L_main")
if PREF == 2:
    a("s_lshl_b32 s75, s2, 2\ns_add_u32 s75, s75, s3\ns_lshl_b32 s76, s75, 1\ns_mul_i32 s77, s75, 3\ns_sub_u32 s77, s77, 2")
    a("v_add_u32 v2, s76, v1\nv_mul_u32_u24 v2, 896, v2\nv_add_u32 v3, s77, v1\nv_min_u32 v3, 2687, v3\nv_mul_u32_u24 v4, 1561, v3\nv_lshrrev_b32 v4, 16, v4")
    a("v_mul_u32_u24 v5, 42, v4\nv_sub_u32 v5, v3, v5\nv_cmp_gt_u32 s[88:89], 21, v5\nv_subrev_u32 v6, 21, v5\nv_min_u32 v5, v5, v6\nv_mul_u32_u24 v4, 2688, v4\nv_lshl_add_u32 v4, v5, 7, v4")
    a("v_cmp_gt_u32 s[86:87], 2, v1\nv_mov_b32 v21, 0\nv_mov_b32 v7, 0\nv_cndmask_b32 v20, v4, v2, s[86:87]\nv_mov_b32 v2, %d\nv_mov_b32 v3, 128\nv_cndmask_b32 v6, v2, v3, s[86:87]" % (64 * 2688))
    for k in range(2):
        a("v_mov_b32 v2, s%d\nv_mov_b32 v14, s%d\nv_cndmask_b32 v2, v2, v14, s[88:89]\nv_mov_b32 v14, s%d\nv_cndmask_b32 v%d, v2, v14, s[86:87]" % (48 + k, 42 + k, 40 + k, 22 + k))
    a("v_lshl_add_u64 v[22:23], v[20:21], 0, v[22:23]")
    for k in range(7):
        a("s_mov_b64 exec, 0x1f\nglobal_load_dword v254, v[22:23], off\ns_mov_b64 exec, -1\nv_lshl_add_u64 v[22:23], v[6:7], 0, v[22:23]")
        if opt("pfgap", 4) and k < 6: a("s_sleep %d" % opt("pfgap", 4))
if MPRIO: a("s_setprio %d" % MPRIO)
epoch_load()
roles()
srd(WS, pWs[0], pWs[1], WS_SIZE)
a("v_lshlrev_b32 v2, 2, v1\nv_add_u32 v2, %d, v2\nds_write_b32 v2, %s" % (RSV, vZERO))
a("s_lshl_b32 s75, s2, 2\ns_add_u32 s75, s75, s3\ns_lshl_b32 s75, s75, 2\nv_add_u32 v11, s75, v1\nv_min_u32 v11, %d, v11\nv_lshlrev_b32 v11, 7, v11" % (448 * 7 - 1))
def prefetch_wo():
    a("s_mov_b64 exec, 0xf\nglobal_load_dword v254, v11, s[44:45]\nglobal_load_dword v254, v11, s[50:51]\ns_mov_b64 exec, -1")
a("s_cmp_ge_u32 %s, 14\ns_cbranch_scc1 L_m_gate" % sJ)
a("s_cmp_ge_u32 %s, 7\ns_cbranch_scc1 L_m_N" % sJ)
main_p1(True)
a("s_branch L_m_join")
a.label("L_m_N")
main_p1(False)
a("s_branch L_m_join")
a.label("L_m_gate")
srd(X, pX[0], pX[1], 2048 * 896)
srd(GW, pG[0], pG[1], 896)
a.vmq = []
a("s_lshl_b32 s75, %s, 7\ns_sub_u32 s76, %s, 14\ns_lshl_b32 s76, s76, 6\ns_add_u32 s75, s75, s76\ns_lshl_b32 s76, s3, 4\ns_add_u32 s75, s75, s76" % (sRB, sJ))
a("v_lshrrev_b32 v2, 3, v1\nv_add_u32 v2, s75, v2\nv_and_b32 v3, 7, v1\nv_lshlrev_b32 v3, 4, v3")
a("v_mul_u32_u24 v4, 896, v2\nv_add_u32 v4, v4, v3\nv_add_u32 v5, %d, v4" % (8 * 896))
for i in range(7):
    a.vm("buffer_load_dwordx4 %s, v3, %s, 0 offen offset:%d" % (vr(64 + 4 * i, 4), GW, 128 * i))
    a.vm("buffer_load_dwordx4 %s, v4, %s, 0 offen offset:%d" % (vr(96 + 4 * i, 4), X, 128 * i))
    a.vm("buffer_load_dwordx4 %s, v5, %s, 0 offen offset:%d" % (vr(128 + 4 * i, 4), X, 128 * i))
a("v_mov_b32 v6, 0\nv_mov_b32 v7, 0")
a("v_lshlrev_b32 v2, 2, v2\nv_add_u32 v2, %d, v2\nv_mov_b32 v8, %d\nv_cmp_eq_u32 vcc, 0, v3\ns_nop 1\nv_cndmask_b32 v9, v8, v2, vcc" % (G_OFF, OOB))
get_tag()
a("s_barrier")
arrive(cH2)
a.vmwait_all()
prefetch_wo()
for i in range(28):
    a("v_dot2_f32_bf16 v6, v%d, v%d, v6\nv_dot2_f32_bf16 v7, v%d, v%d, v7" % (64 + i, 96 + i, 64 + i, 128 + i))
a.nop(3)
for dpp in ("quad_perm:[1,0,3,2]", "quad_perm:[2,3,0,1]", "row_half_mirror"):
    a("v_add_f32_dpp v6, v6, v6 %s row_mask:0xf bank_mask:0xf\nv_add_f32_dpp v7, v7, v7 %s row_mask:0xf bank_mask:0xf" % (dpp, dpp))
    a.nop(2)
for r in (6, 7):
    a("v_mul_f32 v%d, 0x%x, v%d\nv_exp_f32 v%d, v%d\ns_nop 0\nv_add_f32 v%d, 1.0, v%d\nv_rcp_f32 v%d, v%d\ns_nop 0" % (r, f32(-LOG2E), r, r, r, r, r, r, r))
a.vm("buffer_store_dword v6, v9, %s, 0 offen sc1" % WS)
a.vm("buffer_store_dword v7, v9, %s, 0 offen offset:32 sc1" % WS)

a.label("L_m_join")
a.vmq = ["st"]; a.lgq = []
vK, vV, vQ, vG, vIDX = "v26", "v25", "v24", "v23", "v22"
OAD = 19
def Qf(tau, m): return 32 + 8 * tau + 4 * m
def KV(b, k): return vr(192 + 16 * b + 4 * k, 4)
def Oa(tau): return 128 + 16 * tau
def Sb(tau): return 64 + 16 * tau
a("""
s_add_u32 s73, %s, 7
s_lshr_b32 s73, s73, 1
s_add_u32 s74, %s, 7
s_lshr_b32 s74, s74, 1
s_add_u32 s75, %s, 14
s_lshr_b32 s75, s75, 1
s_add_u32 s76, %s, 14
s_lshr_b32 s76, s76, 1
s_lshr_b32 s77, %s, 1
s_lshr_b32 s78, %s, 1
s_lshr_b32 s83, s3, 1
s_add_u32 s83, s83, 14
""" % (sC0, sC1, sC0, sC1, sC0, sC1))
lane_select("v2", [(0, "s73"), (4, "s74"), (8, "s75"), (12, "s76"), (16, "s77"), (17, "s78"), (18, "s83")], "v3")
a("s_lshl_b32 s73, s3, 2\nv_and_b32 v3, 3, v1\nv_add_u32 v3, s73, v3\nv_mov_b32 v4, %s\nv_cmp_le_u32 vcc, 16, v1\ns_nop 1\nv_cndmask_b32 v3, v3, v4, vcc" % sQB)
a("v_lshl_add_u32 v2, v2, 4, v3\nv_lshlrev_b32 v2, 7, v2\nv_add_u32 %s, %d, v2" % (vPOLL, F1))
a("s_lshl_b32 s73, %s, 9" % sU0)
a("s_mul_i32 s74, s3, %d\ns_add_u32 s74, s74, s73\ns_add_u32 s74, s74, %d\nv_add_u32 %s, s74, %s" % (16 * T_TILE, T_OFF + 7 * 4096, vK, vL16))
a("s_lshl_b32 s74, %s, 17\ns_lshl_b32 s75, s3, 15\ns_add_u32 s74, s74, s75\ns_add_u32 s74, s74, %d\nv_add_u32 %s, s74, %s" % (sH, N_OFF, vV, vL16))
a("s_mul_i32 s74, %s, %d\ns_add_u32 s74, s74, s73\nv_add_u32 %s, s74, %s" % (sQB, 4 * T_TILE, vQ, vL16))
o_addr(OAD, vL16, "v2", "v3")
a("s_cmp_eq_u32 %s, 0\ns_mov_b32 s86, 0\ns_cselect_b32 s87, -1, 0\ns_cselect_b32 s88, 0, -1\ns_mov_b32 s89, 0" % sODD)
a("v_mov_b32 %s, 0xdddddddd" % vIDX)
def zero_o():
    for i in range(64): a("v_mov_b32 v%d, 0" % (128 + i))
zero_o()
for tau in range(4):
    a("s_add_u32 s73, s3, %d\ns_and_b32 s73, s73, 3\ns_mul_i32 s%d, s73, %d" % (1 + tau, 74 + tau, T_TILE))
if MPRIO: a("s_setprio 0")
a.vmwait_all()
stamp("m_drained")
publish(cM1, sF12, F1)
if PDELAY: a("s_sleep %d" % PDELAY)
poll(4, 1, vPOLL, PSLEEP)
stamp("m_f1seen")
def kv_load(kt, k):
    if k < 2: a.vm("buffer_load_dwordx4 %s, %s, %s, %s offen offset:%d sc1" % (KV(kt & 3, k), vK, WS, sSK, 1024 * k), "k%d" % kt)
    else: a.vm("buffer_load_dwordx4 %s, %s, %s, %s offen offset:%d sc1" % (KV(kt & 3, k), vV, WS, sSV, 1024 * (k - 2)), "v%d" % kt)
def kv_off(kt, k): a("s_mov_b32 %s, %d" % ((sSK, kt * T_TILE) if k == 0 else (sSV, kt * 2048)))
def q_load(tau):
    for m in range(2): a.vm("buffer_load_dwordx4 %s, %s, %s, s%d offen offset:%d sc1" % (vr(Qf(tau, m), 4), vQ, WS, 74 + tau, 1024 * m), "q%d" % tau)
def q_fix(tau):
    for k in (0, 1): a("v_cndmask_b32 v%d, v%d, %s, %s" % (Qf(tau, 0) + k, Qf(tau, 0) + k, vZERO, sMB))
    for k in (2, 3): a("v_cndmask_b32 v%d, v%d, %s, %s" % (Qf(tau, 1) + k, Qf(tau, 1) + k, vZERO, sMA))
kv_off(0, 0); kv_off(0, 1)
kv_load(0, 0); kv_load(0, 1); q_load(0); q_load(1); kv_load(0, 2); kv_load(0, 3); q_load(2); q_load(3)
kv_off(1, 0); kv_off(1, 1)
for k in range(4): kv_load(1, k)
load_g(vG, "v2")
def M(n, m):
    kt, tau = n >> 2, n & 3
    mfma(vr(Sb(tau), 16), KV(kt & 3, m), vr(Qf(tau, m), 4), m == 0)
def P(n, m):
    kt, tau = n >> 2, n & 3
    a("v_smfmac_f32_32x32x32_bf16 %s, %s, %s, %s" % (vr(Oa(tau), 16), KV(kt & 3, 2 + m), vr(Sb(tau) + 8 * m, 8), vIDX))
def E(n, q):
    for k in range(4 * q, 4 * q + 4): a("v_exp_f32 v%d, v%d" % (Sb(n & 3) + k, Sb(n & 3) + k))
a.vmwait("q0"); q_fix(0)
stamp("m_attn0"); rstamp("R_attn0")
a.nop(1)
M(0, 0); M(0, 1)
a.vmwait("q1"); q_fix(1)
a.nop(6)
sched = {n: [] for n in range(64)}
for i, (kt, k) in enumerate([(2, 0), (2, 1), (2, 2), (2, 3), (3, 0), (3, 1), (3, 2), (3, 3)]): sched[i // 2].append((kt, k))
for kt in range(4, 16):
    for k in range(4): sched[4 * (kt - 3) + k].append((kt, k))
for n in range(64):
    ld = sched[n]
    if n < 63: M(n + 1, 0)
    for kt, k in ld:
        if k in (0, 2): kv_off(kt, k >> 1)
    E(n, 0)
    if n < 63: M(n + 1, 1)
    if n == 0: a.vmwait("v0")
    E(n, 1)
    if n > 0: P(n - 1, 1)
    if ld: kv_load(*ld[0])
    E(n, 2)
    P(n, 0)
    if len(ld) > 1: kv_load(*ld[1])
    if n < 2: a.vmwait("q%d" % (n + 2))
    elif NOWAIT: pass
    elif (n & 3) == 2 and n + 2 < 64: a.vmwait("k%d" % ((n + 2) // 4))
    elif (n & 3) == 3 and n + 1 < 64: a.vmwait("v%d" % ((n + 1) // 4))
    E(n, 3)
    if n < 2: q_fix(n + 2)
    if n in (7, 15, 31, 47): stamp("m_slot%d" % n)
a.nop(2)
P(63, 1)
stamp("m_attn_end"); rstamp("R_attn_end")
spin(cWA, 4)
a("s_mov_b32 s77, 4")
a.label("L_reduce")
for tau in range(3):
    a("s_add_u32 s73, s3, %d\ns_and_b32 s73, s73, 3\ns_mul_i32 s73, s73, 12288\ns_add_u32 s73, s73, %d\nv_add_u32 v2, s73, %s" % (1 + tau, RED + tau * 4096, vL16))
    for i in range(4):
        a.ds("ds_write_b128 v2, %s offset:%d" % (vr(Oa(tau) + 4 * i, 4), 1024 * i))
a("s_mul_i32 s73, s3, 12288\ns_add_u32 s73, s73, %d\nv_add_u32 v2, s73, %s" % (RED, vL16))
a("v_mov_b32 v3, v2")
arrive(cRD)
spin(cRD, "s77", 0)
for k in range(12):
    a.ds("ds_read_b128 %s, v3 offset:%d" % (vr(64 + 4 * k, 4), 1024 * k), k // 4)
O3 = Oa(3)
for s in range(3):
    a.dswait(s)
    for q in range(8):
        a("v_pk_add_f32 %s, %s, %s" % (vr(O3 + 2 * q, 2), vr(O3 + 2 * q, 2), vr(64 + 16 * s + 2 * q, 2)))
bcast_hi("v4", vr(O3 + 12), "v5")
a("v_rcp_f32 v6, v4\nv_mov_b32 v8, 0\nv_mov_b32 v9, 0\nv_mul_f32 v6, v6, %s\nv_mov_b32 v7, v6" % vG)
for q in range(8):
    a("v_pk_mul_f32 %s, %s, v[6:7]" % (vr(64 + 2 * q, 2), vr(O3 + 2 * q, 2)))
for q in range(8):
    a("v_cvt_pk_bf16_f32 v%d, v%d, v%d" % (80 + q, 64 + 2 * q, 65 + 2 * q))
store_o(80, OAD, 0, "oa")
stamp("m_oa_stored")
for q in range(8):
    a("v_pk_fma_f32 v[8:9], %s, 0, v[8:9] op_sel_hi:[1,0,1]" % vr(O3 + 2 * q, 2))
a("v_add_f32 v8, v8, v9\nv_add_f32 v4, v4, v8")
a("v_cmp_nle_f32 vcc, 0x%x, v4\ns_mov_b64 s[94:95], vcc\nv_cmp_nge_f32 vcc, 0x%x, v4\ns_or_b64 vcc, vcc, s[94:95]" % (f32(2.0 ** -64), f32(2.0 ** 64)))
a("s_cmp_lg_u64 vcc, 0\ns_cselect_b32 s74, 0x101, %d\ns_andn2_b32 s74, s74, %s\nv_mov_b32 v3, s74" % (0x101 if FORCE_FB else 1, sFB))
a.vmwait_all()
arrive(cVT, True, "v3")
a("s_add_u32 s75, s83, s74\ns_and_b32 s76, s75, 0xff\ns_cmp_lg_u32 s76, s77\ns_cbranch_scc1 L_notlast")
a("s_lshr_b32 s75, s75, 8\ns_cmp_lg_u32 s75, 0\ns_cselect_b32 s75, 0x100, 0\ns_andn2_b32 s75, s75, %s\ns_cmp_lg_u32 s75, 0\ns_cbranch_scc1 L_fallback" % sFB)
flag_store(sF345, F5)
stamp("m_f5sent")
a("s_branch L_fin")
a.label("L_notlast")
a("s_cmp_lg_u32 %s, 0\ns_cbranch_scc1 L_fin" % sFB)
spin(cVT, 4, 1, 0xff)
a("s_lshr_b32 s73, s83, 8\ns_cmp_eq_u32 s73, 0\ns_cbranch_scc1 L_fin")

a.label("L_fallback")
a("s_mov_b32 %s, 0x100\ns_mov_b32 s77, 8\ns_waitcnt vmcnt(0)" % sFB)
for t in range(4): a("v_mov_b32 v%d, 0xff800000" % (8 + t))
a("s_mov_b32 %s, 0" % sSK)
a.label("L_fb1")
for m in range(2): kv_load(0, m)
a("s_waitcnt vmcnt(0)")
for t in range(4):
    M(t, 0); M(t, 1)
a.nop(12)
for t in range(4):
    for q in range(8): a("v_max3_f32 v%d, v%d, v%d, v%d" % (8 + t, Sb(t) + 2 * q, Sb(t) + 2 * q + 1, 8 + t))
a("s_add_u32 %s, %s, %d\ns_cmp_lt_u32 %s, %d\ns_cbranch_scc1 L_fb1" % (sSK, sSK, T_TILE, sSK, 16 * T_TILE))
for t in range(4):
    a("v_mov_b32 v2, v%d\nv_mov_b32 v3, v%d\ns_nop 1\nv_permlane32_swap_b32 v2, v3\nv_max_f32 v2, v2, v3" % (8 + t, 8 + t))
    a("s_add_u32 s73, s3, %d\ns_and_b32 s73, s73, 3\ns_lshl_b32 s73, s73, 10\ns_add_u32 s73, s73, %d\nv_lshlrev_b32 v4, 2, v1\nv_add_u32 v%d, s73, v4" % (1 + t, RED, 12 + t))
    a("s_lshl_b32 s73, s3, 8\nv_add_u32 v4, s73, v%d\nds_write_b32 v4, v2" % (12 + t))
arrive(cFB0)
spin(cFB0, 4)
for t in range(4):
    for k in range(4): a("ds_read_b32 v%d, v%d offset:%d" % (2 + k, 12 + t, 256 * k))
    a("s_waitcnt lgkmcnt(0)\nv_max3_f32 v2, v2, v3, v4\nv_max_f32 v%d, v2, v5" % (8 + t))
arrive(cFB1)
spin(cFB1, 4)
zero_o()
a("s_mov_b32 %s, 0\ns_mov_b32 %s, 0" % (sSK, sSV))
a.label("L_fb2")
for k in range(4): kv_load(0, k)
a("s_waitcnt vmcnt(0)")
for t in range(4):
    M(t, 0); M(t, 1)
a.nop(12)
for t in range(4):
    for q in range(16): a("v_sub_f32 v%d, v%d, v%d" % (Sb(t) + q, Sb(t) + q, 8 + t))
    for q in range(16): a("v_exp_f32 v%d, v%d" % (Sb(t) + q, Sb(t) + q))
a.nop(2)
for t in range(4):
    P(t, 0); P(t, 1)
a.nop(12)
a("s_add_u32 %s, %s, %d\ns_add_u32 %s, %s, 2048\ns_cmp_lt_u32 %s, %d\ns_cbranch_scc1 L_fb2" % (sSK, sSK, T_TILE, sSV, sSV, sSV, 16 * 2048))
a("s_branch L_reduce")
a.label("L_fin")
stamp("end")
if STAMP:
    a("s_getreg_b32 s74, hwreg(HW_REG_HW_ID)\ns_getreg_b32 s75, hwreg(HW_REG_XCC_ID)\nv_writelane_b32 %s, s74, 62\nv_writelane_b32 %s, s75, 63" % (vSTAMP, vSTAMP))
    a("s_cmp_lg_u32 %s, 0xdddddddd" % "s98")
    a("v_lshlrev_b32 v2, 2, v1\ns_lshl_b32 s73, s2, 3\ns_add_u32 s73, s73, s39\ns_lshl_b32 s73, s73, 8\ns_add_u32 s73, s73, %d\ns_nop 4" % STAMP_OFF)
    a("buffer_store_dword %s, v2, %s, s73 offen" % (vSTAMP, WS))
if SPINTO or ENC >= 0:
    a("s_waitcnt vmcnt(0)")
    if ENC >= 0: a("s_sub_u32 s100, s100, s98\ns_min_u32 s100, s100, 5000\ns_add_u32 s100, s100, 4000")
    else: a("s_mov_b32 s100, %d" % SPINTO)
    a.label("L_spinto")
    a("s_memrealtime s[74:75]\ns_waitcnt lgkmcnt(0)\ns_sub_u32 s74, s74, s98\ns_cmp_lt_u32 s74, s100\ns_cbranch_scc1 L_spinto")
a.label("L_end")
a("s_endpgm")
a.label("L_codeend")

if STAMP:
    i = a.lines.index("v_readfirstlane_b32 s83, v2")
    a.lines.insert(i + 3, "s_mov_b32 s39, s83")
if ENC >= 0 and FILL < 0:
    i = a.lines.index("v_readfirstlane_b32 s83, v2")
    a.lines[i + 2:i + 2] = ["s_waitcnt lgkmcnt(0)", "s_mov_b32 s100, s98"]
probs = check(a.lines)
for p in sorted(set(probs)): print(p, file=sys.stderr)
hdr = open("cdna_kernels/%s.s.ref" % NAME).read().split("; Override launch")[0]
out = hdr + """; Fused single-launch kernel: QKV projections -> softmax attention + linear attention -> gated output projection.
; @launch grid=(256,1,1) block=(512,1,1) lds=%d
.amdgcn_target "amdgcn-amd-amdhsa--gfx950"
.text
.globl %s_kernel
.p2align 8
.type %s_kernel,@function
%s_kernel:
""" % (LDS_BYTES, NAME, NAME, NAME) + a.text() + """.section .rodata,"a"
.p2align 6
.amdhsa_kernel %s_kernel
  .amdhsa_next_free_vgpr 256
  .amdhsa_next_free_sgpr 102
  .amdhsa_accum_offset 256
  .amdhsa_group_segment_fixed_size 0
  .amdhsa_kernarg_size 80
  .amdhsa_user_sgpr_count 2
  .amdhsa_user_sgpr_kernarg_segment_ptr 1
  .amdhsa_system_sgpr_workgroup_id_x 1
.end_amdhsa_kernel
""" % NAME
dst = [x for x in sys.argv[1:] if not x.startswith("--")]
open(dst[0] if dst else "cdna_kernels/%s.s" % NAME, "w").write(out)
open("stamps.txt", "w").write("\n".join(STAMPS))
print("hazards:", len(set(probs)), "lines:", len(a.lines), file=sys.stderr)
```

```python
import sys, struct
from asmlib import Asm, check

NAME = "gated_mix__mha_block__linear_attn_block__prompt"
def flag(n): return ("--" + n) in sys.argv
def opt(n, d):
    for x in sys.argv:
        if x.startswith("--%s=" % n): return int(x.split("=")[1])
    return d
STAMP, FORCE_FB = flag("stamp"), flag("force-fallback")
SPINTO = opt("spinto", 0); ENC = opt("enc", -1)
AHEAD = opt("ahead", 2)
NTX = ["", "nt", "sc1", "sc0 sc1", "sc0 sc1 nt"][opt("ntx", 0)]; NTW = ["", "nt", "sc1", "sc0 sc1", "sc0 sc1 nt"][opt("ntw", 0)]
WOPF = opt("wopf", 6)
PDELAY = opt("pdelay", 16); PSLEEP = opt("psleep", 6); PACE = opt("pace", 4); HDELAY = opt("hdelay", 0); PREF = opt("pref", 1)
P5DELAY = opt("p5delay", 24); P3LATE = opt("p3late", 1); MPRIO = opt("mprio", 2)
HPRIO = opt("hprio", 1)
NOWAIT = flag("nowait")

T_OFF, T_TILE = 0, 21 * 4096
N_OFF, N_KIND = 0x540000, 0x200000
O_OFF, O_TILE = 0xB40000, 112 * 512
SLAB_OFF = 0xEC0000
G_OFF = 0xFC0000
F1, F2, F3, F4, F5 = [0xFC8000 + i * 0x8000 for i in range(5)]
EPOCH_OFF = 0xFF0000
STAMP_OFF = 0x1000000
WS_SIZE = 0x1100000
OOB = 0x40000000
RED = 106496
W2B = 98304
RSV = 155648
KVX = RSV + 1024
FIN = 57344
cM1, cW2, cH2, cF2, cWO, cWA, cF3, cKV, cF4, cREL, cRD, cVT, cFB0, cFB1, cFB2 = range(15)
LDS_BYTES = 163840
SPIN = 1 << 18

def f32(x): return struct.unpack("<I", struct.pack("<f", x))[0]
LOG2E = 1.4426950408889634
QSCALE = 28 ** -0.5 * LOG2E

X, W0, W1, W2, WS, OUT, WOA, WOB = ["s[%d:%d]" % (4 + 4 * i, 7 + 4 * i) for i in range(8)]
GW = W0
sTAG, sRB, sJ, sH, sQB, sU0, sODD, sRB2, sCC, sP3 = ["s%d" % i for i in range(60, 70)]
sC0, sC1, sRTL = "s70", "s71", "s72"
sCNT, sFB, sMX, sMWc = "s79", "s80", "s81", "s82"
sSCL = "s[84:85]"
sMA, sMB, sMZ = "s[86:87]", "s[88:89]", "s[90:91]"
sSK, sSV = "s92", "s93"
sF12, sF345 = "s97", "s96"
STAMPS = {}
vTAG, vFL, vPOLL, vZERO, vSTAMP, vRSV, vONE = "v30", "v29", "v28", "v27", "v31", "v17", "v16"

a = Asm()
def stamp(name):
    if name not in STAMPS: STAMPS[name] = len(STAMPS)
    if STAMP:
        a("s_memrealtime s[98:99]\ns_waitcnt lgkmcnt(0)\nv_writelane_b32 %s, s98, %d" % (vSTAMP, STAMPS[name]))
        a.lgq = []
    if ENC == STAMPS[name]:
        a("s_memrealtime s[100:101]\ns_waitcnt lgkmcnt(0)")
        a.lgq = []

def rstamp(name):
    if name not in STAMPS: STAMPS[name] = len(STAMPS)
    if STAMP:
        a("s_memtime s[98:99]\ns_waitcnt lgkmcnt(0)\nv_writelane_b32 %s, s98, %d" % (vSTAMP, STAMPS[name]))
def vr(b, n=1): return "v%d" % b if n == 1 else "v[%d:%d]" % (b, b + n - 1)
def mfma(d, A, B, zero=False): a("v_mfma_f32_32x32x16_bf16 %s, %s, %s, %s" % (d, A, B, "0" if zero else d))
def srd(reg, lo, hi, size):
    n = int(reg[2:].split(":")[0])
    a("s_mov_b32 s%d, %s\ns_mov_b32 s%d, %s\ns_mov_b32 s%d, %d\ns_mov_b32 s%d, 0x20000" % (n, lo, n + 1, hi, n + 2, size, n + 3))
def swap23(dst, src, t):
    a("v_and_b32 %s, 0x13, %s" % (dst, src))
    a("v_and_b32 %s, 4, %s" % (t, src))
    a("v_lshl_or_b32 %s, %s, 1, %s" % (dst, t, dst))
    a("v_lshrrev_b32 %s, 1, %s" % (t, src))
    a("v_and_or_b32 %s, %s, 4, %s" % (dst, t, dst))
def lane_select(dst, items, t):
    a("v_mov_b32 %s, %s" % (dst, items[0][1]))
    for lo, s in items[1:]:
        a("v_cmp_le_u32 vcc, %d, v1\nv_mov_b32 %s, %s\ns_nop 0\nv_cndmask_b32 %s, %s, %s, vcc" % (lo, t, s, dst, dst, t))
def poll(vdata, n, vaddr, sleep=0):
    top, done = a.newlabel("poll"), a.newlabel("polled")
    a.label(top)
    a("buffer_load_dword%s %s, %s, %s, 0 offen sc1" % ("x4" if n == 4 else "", vr(vdata, n), vaddr, WS))
    a("s_waitcnt vmcnt(0)")
    a.vmq = []
    a("v_cmp_ne_u32 vcc, %s, %s" % (sTAG, vr(vdata)))
    for k in range(1, n):
        a("v_cmp_ne_u32 s[94:95], %s, %s\ns_or_b64 vcc, vcc, s[94:95]" % (sTAG, vr(vdata + k)))
    a("s_cmp_eq_u64 vcc, 0\ns_cbranch_scc1 %s" % done)
    if sleep: a("s_sleep %d" % sleep)
    a("s_sub_u32 %s, %s, 1\ns_cbranch_scc0 %s\ns_mov_b32 %s, 0" % (sCNT, sCNT, top, sCNT))
    a.label(done)
def flag_store(soff, base, t0="v2", t1="v3"):
    a("s_add_u32 s73, %s, %d\nv_mov_b32 %s, %d\nv_mov_b32 %s, s73\nv_cndmask_b32 %s, %s, %s, %s" % (soff, base, t0, OOB, t1, vFL, t0, t1, sMZ))
    a.vm("buffer_store_dword %s, %s, %s, 0 offen sc1" % (vTAG, vFL, WS), "flag")
def arrive(c, rtn=False, val=None):
    a("s_mov_b64 exec, 1")
    if rtn: a("ds_add_rtn_u32 v2, %s, %s offset:%d" % (vRSV, val or vONE, 4 * c))
    else: a.ds("ds_add_u32 %s, %s offset:%d" % (vRSV, val or vONE, 4 * c))
    a("s_mov_b64 exec, -1")
    if rtn:
        a("s_waitcnt lgkmcnt(0)\nv_readfirstlane_b32 s83, v2"); a.lgq = []
def spin(c, target, sleep=1, mask=None):
    top, done = a.newlabel("spin"), a.newlabel("spun")
    a.label(top)
    a("ds_read_b32 v2, %s offset:%d\ns_waitcnt lgkmcnt(0)\nv_readfirstlane_b32 s83, v2" % (vRSV, 4 * c)); a.lgq = []
    if mask: a("s_and_b32 s94, s83, %d\ns_cmp_ge_u32 s94, %s" % (mask, target))
    else: a("s_cmp_ge_u32 s83, %s" % target)
    a("s_cbranch_scc1 %s" % done)
    if sleep: a("s_sleep %d" % sleep)
    a("s_sub_u32 %s, %s, 1\ns_cbranch_scc0 %s\ns_mov_b32 %s, 0" % (sCNT, sCNT, top, sCNT))
    a.label(done)
def publish(c, soff, base):
    skip = a.newlabel("nopub")
    arrive(c, True)
    a("s_cmp_lg_u32 s83, 3\ns_cbranch_scc1 %s" % skip)
    flag_store(soff, base)
    a.label(skip)
def group_poll(phase, delay=0, sleep=4):
    oth, done = a.newlabel("rel"), a.newlabel("reld")
    a("s_cmp_lg_u32 s3, 0\ns_cbranch_scc1 %s" % oth)
    if delay: a("s_sleep %d" % delay)
    poll(4, 1, vPOLL, sleep)
    arrive(cREL)
    a("s_branch %s" % done)
    a.label(oth)
    a("s_waitcnt vmcnt(0)")
    spin(cREL, phase, 3)
    a.label(done)
    a.vmq = []; a.lgq = []
def pace():
    if PACE and len(a.vmq) > PACE:
        a("s_waitcnt vmcnt(%d)" % PACE); a.vmq = a.vmq[-PACE:]
def get_tag():
    a("s_waitcnt lgkmcnt(0)"); a.lgq = []
    a("s_add_u32 %s, %s, 0x9e3779b1\nv_mov_b32 %s, %s" % (sTAG, sTAG, vTAG, sTAG))
def bcast_hi(dst, src, t):
    a("v_mov_b32 %s, %s\nv_mov_b32 %s, %s\ns_nop 1\nv_permlane32_swap_b32 %s, %s" % (t, src, dst, src, t, dst))
def tr_addr(dst, perm, t0, t1, t2):
    a("v_and_b32 %s, 3, v1" % t0)
    if perm: a("v_and_b32 %s, 1, %s\nv_lshrrev_b32 %s, 1, %s\nv_lshl_or_b32 %s, %s, 1, %s" % (t1, t0, t0, t0, t0, t1, t0))
    a("v_bfe_u32 %s, v1, 4, 1\nv_lshl_or_b32 %s, %s, 2, %s" % (t1, t0, t1, t0))
    a("v_bfe_u32 %s, v1, 2, 2\nv_lshrrev_b32 %s, 5, v1\nv_lshl_add_u32 %s, %s, 3, %s" % (t1, t2, t1, t2, t1))
    a("v_lshlrev_b32 %s, 7, %s\nv_lshl_add_u32 %s, %s, 3, %s" % (t1, t1, t1, t0, t1))
    a("v_bfe_u32 %s, v1, 3, 1\nv_lshl_or_b32 %s, %s, 6, %s" % (t0, dst, t0, t1))
def x_addr(base, T, srow, t):
    a("v_and_b32 %s, 31, v1" % t[0])
    if T: a("v_mov_b32 %s, %s" % (t[1], t[0]))
    else: swap23(t[1], t[0], t[2])
    a("v_lshrrev_b32 %s, 5, v1\nv_lshrrev_b32 %s, 1, %s\nv_and_b32 %s, 7, %s" % (t[2], t[3], t[1], t[3], t[3]))
    a("v_lshlrev_b32 %s, 7, %s\nv_add_u32 %s, %s, %s" % (t[1], t[1], t[1], srow, t[1]))
    for k in range(4):
        a("v_add_u32 %s, %d, %s\nv_xor_b32 %s, %s, %s\nv_lshl_add_u32 v%d, %s, 4, %s" % (t[0], 2 * k, t[2], t[0], t[0], t[3], base + k, t[0], t[1]))
        a("v_add_u32 v%d, 65536, v%d" % (base + 4 + k, base + k))
def n_addr(dst, sbase, vf, isV, t):
    a("s_mov_b32 s78, 2341")
    a("v_mul_lo_u32 %s, s78, %s\nv_lshrrev_b32 %s, 16, %s" % (t[0], vf, t[0], t[0]))
    a("v_mul_u32_u24 %s, 28, %s\nv_sub_u32 %s, %s, %s" % (t[1], t[0], t[1], vf, t[1]))
    a("v_and_b32 %s, 1, %s\nv_lshlrev_b32 %s, 2, %s" % (t[2], t[0], t[2], t[2]))
    if isV: a("v_sub_u32 %s, %s, %s\nv_add_u32 %s, 28, %s\nv_min_u32 %s, %s, %s" % (t[1], t[1], t[2], t[3], t[1], t[1], t[1], t[3]))
    else: a("v_add_u32 %s, %s, %s" % (t[1], t[1], t[2]))
    swap23(t[3], t[1], t[2])
    a("v_lshlrev_b32 %s, 17, %s\nv_lshl_add_u32 %s, %s, 4, %s\nv_lshrrev_b32 %s, 5, v1\nv_lshl_add_u32 %s, %s, 9, %s\nv_add_u32 %s, %s, %s" % (t[0], t[0], t[0], t[3], t[0], t[1], t[0], t[1], t[0], dst, sbase, t[0]))
def o_addr(b, vL16, t0, t1):
    a("s_lshl_b32 s73, %s, 2\ns_add_u32 s73, s73, s3\ns_mul_i32 s73, s73, %d\ns_add_u32 s73, s73, %d" % (sQB, O_TILE, O_OFF))
    a("s_add_u32 s74, %s, %s\ns_lshl_b32 s74, s74, 9\ns_add_u32 s74, s74, s73\nv_add_u32 v%d, s74, %s" % (sU0, sODD, b, vL16))
    a("v_cmp_gt_u32 vcc, 32, v1\nv_mov_b32 %s, %d\nv_add_u32 %s, 1024, v%d\nv_cndmask_b32 v%d, %s, %s, vcc" % (t0, OOB, t1, b, b + 1, t0, t1))
    a("s_cmp_eq_u32 %s, 0\ns_cselect_b32 s74, %d, 8\ns_lshl_b32 s75, %s, 9\ns_add_u32 s74, s74, s75\ns_add_u32 s74, s74, s73\ns_sub_u32 s74, s74, 512" % (sODD, 3 * 512, sU0))
    a("v_add_u32 %s, s74, %s\nv_cndmask_b32 v%d, %s, %s, vcc" % (t1, vL16, b + 2, t1, t0))
def store_o(c, b, half, tag):
    a("s_mov_b32 s73, %d" % (half * 56 * 512))
    a.vm("buffer_store_dwordx4 %s, v%d, %s, s73 offen sc1" % (vr(c, 4), b, WS), tag)
    a.vm("buffer_store_dwordx4 %s, v%d, %s, s73 offen sc1" % (vr(c + 4, 4), b + 1, WS), tag)
    a.vm("buffer_store_dwordx2 %s, v%d, %s, s73 offen sc1" % (vr(c + 4, 2), b + 2, WS), tag)
def load_g(dst, t):
    a("s_lshl_b32 s73, %s, 2\ns_add_u32 s73, s73, s3\ns_lshl_b32 s73, s73, 7\ns_add_u32 s73, s73, %d\nv_and_b32 %s, 31, v1\nv_lshlrev_b32 %s, 2, %s" % (sQB, G_OFF, t, t, t))
    a.vm("buffer_load_dword %s, %s, %s, s73 offen sc1" % (dst, t, WS), "g")

a("s_cmp_ge_u32 s2, 256\ns_cbranch_scc1 L_end")
a("s_load_dwordx16 s[40:55], s[0:1], 0\ns_load_dwordx4 s[56:59], s[0:1], 64")
if SPINTO or ENC >= 0: a("s_memrealtime s[98:99]")
if STAMP: a("v_mov_b32 %s, 0" % vSTAMP)
FILL = -1
stamp("entry")
pX, pWA, pWoA, pWB, pWoB, pG, pOut, pWs = [("s%d" % i, "s%d" % (i + 1)) for i in (40, 42, 44, 48, 50, 52, 54, 58)]
WBYTES = 448 * 2688
SLOT = [0, 1, 2, 3, 0, 1, 2]
vL16 = "v0"
if PREF == 1:
    a("""
v_lshrrev_b32 v2, 6, v0
v_and_b32 v1, 63, v0
v_lshl_add_u32 v3, s2, 3, v2
v_mad_u32_u24 v4, v3, 7, v1
v_mad_u32_u24 v5, v3, 5, v1
v_lshlrev_b32 v4, 7, v4
v_min_u32 v5, %d, v5
v_lshlrev_b32 v5, 7, v5
s_mov_b64 exec, 0x7f
s_waitcnt lgkmcnt(0)
global_load_dword v254, v4, s[40:41]
s_mov_b64 exec, 0x1f
global_load_dword v254, v5, s[42:43]
global_load_dword v254, v5, s[48:49]
s_mov_b64 exec, -1
""" % (448 * 21 - 1))
stamp("pf_issued")
a("s_getpc_b64 s[36:37]")
a.label("L_pc")
a("""
s_lshr_b32 s74, s2, 3
v_lshrrev_b32 v2, 6, v0
v_and_b32 v1, 63, v0
v_readfirstlane_b32 s83, v2
v_lshlrev_b32 v2, 3, v2
v_and_or_b32 v2, v1, 7, v2
s_and_b32 s75, s74, 7
v_lshl_add_u32 v2, s75, 6, v2
v_lshlrev_b32 v2, 7, v2
s_mov_b32 s75, L_codeend-L_pc-4
v_min_u32 v2, s75, v2
s_mov_b64 exec, 0xff
global_load_dword v255, v2, s[36:37]
s_mov_b64 exec, -1
v_lshlrev_b32 v0, 4, v1
s_and_b32 s73, s2, 7
s_and_b32 s3, s83, 3
s_and_b32 s75, s73, 1
s_lshl_b32 s75, s75, 3
s_and_b32 s76, s74, 7
s_add_u32 %s, s75, s76
s_lshr_b32 s75, s73, 1
s_lshl_b32 s75, s75, 2
s_lshr_b32 s76, s74, 3
s_add_u32 %s, s75, s76
""" % (sRB, sJ))
def w_srd(reg, sc):
    n = int(reg[2:].split(":")[0])
    a("""
s_lshl_b32 s75, %s, 1
s_add_u32 s75, s75, %s
s_sub_u32 s76, s75, 7
s_cmp_lt_u32 s75, 21
s_cselect_b32 s75, s75, s76
s_cselect_b32 s%d, %s, %s
s_cselect_b32 s%d, %s, %s
s_min_u32 s75, s75, 20
s_lshl_b32 s75, s75, 7
s_add_u32 s%d, s%d, s75
s_addc_u32 s%d, s%d, 0
s_sub_u32 s%d, %d, s75
s_mov_b32 s%d, 0x20000
""" % (sJ, sc, n, pWA[0], pWB[0], n + 1, pWA[1], pWB[1], n, n, n + 1, n + 1, n + 2, WBYTES, n + 3))
def w2_srd():
    a("s_lshl_b32 s75, %s, 7\ns_add_u32 s16, %s, s75\ns_addc_u32 s17, %s, 0\ns_sub_u32 s18, %d, s75\ns_mov_b32 s19, 0x20000" % (sJ, pWB[0], pWB[1], WBYTES))
def roles():
    a("s_and_b32 s73, s2, 7\ns_lshr_b32 s74, s2, 3")
    a("""
s_and_b32 %s, s74, 1
s_lshl_b32 s75, s73, 1
s_add_u32 %s, s75, %s
s_lshr_b32 %s, s74, 1
s_mul_i32 s75, %s, 7
s_lshr_b32 %s, s75, 1
s_mul_i32 s75, s74, 37
s_lshr_b32 s75, s75, 8
s_mul_i32 s76, s75, 7
s_sub_u32 %s, s74, s76
s_lshl_b32 s76, s73, 2
s_add_u32 %s, s76, s75
s_cmp_lt_u32 s74, 28
s_cselect_b32 %s, 1, 0
s_cselect_b32 %s, %s, 0
s_mul_i32 s75, %s, 28
s_lshr_b32 %s, s75, 6
s_add_u32 s75, s75, 27
s_lshr_b32 %s, s75, 6
s_mov_b32 %s, %d
s_mov_b32 %s, 0
""" % (sODD, sH, sODD, sQB, sH, sU0, sCC, sRB2, sP3, sRB2, sRB2, sH, sC0, sC1, sCNT, SPIN, sFB))
    a("s_lshl_b32 s75, %s, 4\ns_add_u32 s75, s75, %s\ns_lshl_b32 %s, s75, 7" % (sJ, sRB, sF12))
    a("s_lshl_b32 s75, %s, 4\ns_add_u32 s75, s75, %s\ns_lshl_b32 %s, s75, 7" % (sH, sQB, sF345))
    a("v_cmp_eq_u32 %s, 0, v1\nv_mov_b32 %s, 0\nv_mov_b32 %s, %d\nv_mov_b32 %s, 1" % (sMZ, vZERO, vRSV, RSV, vONE))
def epoch_load(): a("s_mov_b32 s73, %d\ns_load_dword %s, s[58:59], s73" % (EPOCH_OFF, sTAG))
a("s_lshl_b32 %s, s3, 12\ns_lshl_b32 %s, s3, 11" % (sMX, sMWc))
a("v_lshrrev_b32 v10, 3, v1\nv_and_b32 v11, 7, v1\nv_lshrrev_b32 v12, 4, v1")
a("s_lshl_b32 s75, %s, 7\ns_lshl_b32 s76, s3, 5\ns_add_u32 s75, s75, s76\ns_mul_i32 s75, s75, 896" % sRB)
a("v_mul_u32_u24 v13, 896, v10\nv_add_u32 v14, s75, v13")
for i in range(4):
    a("v_add_u32 v2, %d, v12\nv_and_b32 v2, 7, v2\nv_xor_b32 v2, v2, v11\nv_lshl_add_u32 v%d, v2, 4, v14" % (4 * i, 3 + i))
    if i: a("v_add_u32 v%d, %d, v%d" % (3 + i, i * (8 * 896 - 1024), 3 + i))
a("v_and_b32 v9, 1, v12\nv_lshlrev_b32 v9, 2, v9\nv_xor_b32 v9, v9, v11")
a("s_mul_i32 s76, s3, %d\nv_mul_u32_u24 v14, 2688, v10\nv_add_u32 v14, s76, v14\nv_lshl_add_u32 v7, v9, 4, v14\nv_add_u32 v8, %d, v7" % (16 * 2688, 8 * 2688 - 1024))
a("s_waitcnt lgkmcnt(0)")
stamp("kernarg")
SKEW = opt("skew", -1)
if SKEW >= 0:
    a("s_cmp_lg_u32 s83, 0\ns_cbranch_scc1 L_sk1\ns_not_b32 s75, s98\nv_mov_b32 v2, s75\nv_mov_b32 v14, 0\ns_mov_b64 exec, 1\nglobal_atomic_umax v14, v2, s[56:57] sc1\ns_mov_b64 exec, -1")
    a.label("L_sk1")
a("s_cmp_lt_u32 s83, 4\ns_cbranch_scc1 L_main")

a.vmq = []; a.lgq = []
srd(X, pX[0], pX[1], 2048 * 896)
a("s_cmp_ge_u32 %s, 14\ns_cbranch_scc1 L_h_gate" % sJ)
if opt("pfwait", 0): a("s_waitcnt vmcnt(0)")
if HDELAY: a("s_sleep %d" % HDELAY)
stamp("h_go")
def other_setup():
    if HPRIO: a("s_setprio %d" % HPRIO)
    epoch_load()
    roles()
    a("s_mul_i32 s76, s3, %d\ns_lshl_b32 s77, %s, 7\ns_add_u32 s76, s76, s77\nv_add_u32 v13, s76, v13\nv_lshl_add_u32 v26, v9, 4, v13" % (112 * 896, sCC))
    w2_srd()
    srd(WS, pWs[0], pWs[1], WS_SIZE)
    srd(OUT, pOut[0], pOut[1], 2048 * 896)
    srd(WOA, pWoA[0], pWoA[1], 448 * 896)
    srd(WOB, pWoB[0], pWoB[1], 448 * 896)
def dma_slab(s):
    slot = SLOT[s]
    a("s_add_u32 m0, %s, %d\ns_mov_b32 s73, %d" % (sMX, slot * 32768, s * 128))
    for i in range(4): a.vm("buffer_load_dwordx4 v%d, %s, s73 offen offset:%d %s lds" % (3 + i, X, 1024 * i, NTX), "slab%d" % s)
    for c, reg in ((0, W0), (1, W1)):
        if s == 0: w_srd(reg, str(c))
        a("s_add_u32 m0, %s, %d\ns_mov_b32 s73, %d" % (sMWc, slot * 32768 + 16384 + c * 8192, s * 64 * 2688))
        for i in range(2): a.vm("buffer_load_dwordx4 v%d, %s, s73 offen offset:%d %s lds" % (7 + i, reg, 1024 * i, NTW), "slab%d" % s)
def dma_w2(s2):
    a("s_add_u32 m0, %s, %d\ns_mov_b32 s73, %d" % (sMWc, W2B + s2 * 8192, s2 * 64 * 2688))
    for i in range(2): a.vm("buffer_load_dwordx4 v%d, %s, s73 offen offset:%d lds" % (7 + i, W2, 1024 * i), "w2")
FIRST = min(AHEAD, opt("first", 2))
for s in range(FIRST): dma_slab(s)
stamp("h_issued")
other_setup()
vmq0 = list(a.vmq)
a("s_cmp_ge_u32 %s, 7\ns_cbranch_scc1 L_h_N" % sJ)
def Xh(g): return vr(144 + 4 * g, 4)
def acc2(ct): return 64 + 16 * ct
def Wh(g, ct, e=None):
    b = 32 + 8 * (g & 3) + 4 * ct
    return vr(b, 4) if e is None else vr(b + 2 * e, 2)
def helper_p1(T):
    a.vmq = list(vmq0); a.lgq = []
    tmp = ["v10", "v11", "v12", "v13"]
    x_addr(96, T, sMX, tmp)
    tr_addr("v13", T, "v10", "v11", "v12")
    a("v_add_u32 v108, %d, v13\nv_xor_b32 v109, 64, v108" % W2B)
    a("s_lshl_b32 s75, %s, 2\ns_add_u32 s75, s75, s3" % sRB)
    if T:
        a("s_mul_i32 s77, s75, %d\ns_add_u32 s78, %s, 14\ns_lshl_b32 s78, s78, 12\ns_add_u32 s78, s78, s77\nv_add_u32 v110, s78, %s\nv_add_u32 v111, 2048, v110" % (T_TILE, sJ, vL16))
    else:
        a("s_lshl_b32 s75, s75, 11\ns_add_u32 s77, s75, %d" % (N_OFF + 2 * N_KIND))
        for ct in range(2):
            a("s_sub_u32 s73, %s, 7\ns_lshl_b32 s73, s73, 6\ns_add_u32 s73, s73, %d\nv_and_b32 v14, 31, v1\nv_add_u32 v14, s73, v14" % (sJ, 32 * ct))
            n_addr("v%d" % (110 + ct), "s77", "v14", False, tmp)
    for s in range(7):
        a.vmwait("slab%d" % s)
        if s: a.dswait_all()
        stamp("h_s%d" % s)
        a("s_barrier")
        slot = SLOT[s]; hi, lo = slot >> 1, (slot & 1) * 32768
        for t in range(4): a.ds("ds_read_b128 %s, v%d offset:%d" % (Xh(4 * s + t), 96 + 4 * hi + t, lo))
        if s == 0:
            for k in range(FIRST, AHEAD): dma_slab(k)
        k = s + AHEAD
        if k < 7: dma_slab(k)
        if s == 4 or (s == 5 and False): pass
        if s == 7 - AHEAD:
            for k2 in range(4): dma_w2(k2)
        if s == 8 - AHEAD:
            for k2 in range(4, 7): dma_w2(k2)
    a.vmwait("w2")
    get_tag()
    arrive(cW2)
    spin(cW2, 4, 0)
    stamp("h_r2_start")
    def reads(g):
        for ct in range(2):
            for e in range(2):
                a.ds("ds_read_b64_tr_b16 %s, v%d offset:%d" % (Wh(g, ct, e), 108 + ct, (g >> 2) * 8192 + (g & 3) * 2048 + e * 512), g)
    reads(0); reads(1)
    for g in range(28):
        a.dswait(g)
        for ct in range(2):
            if T: mfma(vr(acc2(ct), 16), Wh(g, ct), Xh(g), g == 0)
            else: mfma(vr(acc2(ct), 16), Xh(g), Wh(g, ct), g == 0)
            if ct == 0 and g < 26: reads(g + 2)
            if ct == 0 and g == 27: arrive(cH2)
    stamp("h_r2_end")
helper_p1(True)
a("s_branch L_h_phi")
a.label("L_h_N")
helper_p1(False)
a.label("L_h_phi")
a.vmq = []; a.lgq = []
a("s_mov_b32 s84, 0x%x\ns_mov_b32 s85, s84\ns_mov_b32 s94, 0x%x\ns_mov_b32 s95, s94" % (f32(LOG2E), f32(1e-6)))
a.nop(8)
for ct in range(2):
    b = acc2(ct)
    for q in range(8): a("v_pk_mul_f32 %s, %s, %s" % (vr(112 + 2 * q, 2), vr(b + 2 * q, 2), sSCL))
    for q in range(16): a("v_exp_f32_e64 v%d, v%d clamp" % (112 + q, 112 + q))
    for q in range(16): a("v_max_f32 v%d, 0, v%d" % (b + q, b + q))
    for q in range(8): a("v_pk_add_f32 %s, %s, %s" % (vr(b + 2 * q, 2), vr(b + 2 * q, 2), vr(112 + 2 * q, 2)))
    for q in range(8): a("v_pk_add_f32 %s, %s, s[94:95]" % (vr(b + 2 * q, 2), vr(b + 2 * q, 2)))
    for q in range(8): a("v_cvt_pk_bf16_f32 v%d, v%d, v%d" % (32 + 8 * ct + q, b + 2 * q, b + 2 * q + 1))
    for m in range(2): a.vm("buffer_store_dwordx4 %s, v%d, %s, 0 offen offset:%d sc1" % (vr(32 + 8 * ct + 4 * m, 4), 110 + ct, WS, 1024 * m), "st2")
stamp("h_phi")
a("s_branch L_h_join")
a.label("L_h_gate")
other_setup()
get_tag()
a("s_barrier")
arrive(cH2)
a.label("L_h_join")
a.vmq = ["st2"]; a.lgq = []
vB1a, vB1b, vSL, vPQ, vGh, vO, vOUT, vWB, vWA = "v25", "v24", "v23", "v22", "v18", "v15", "v14", 10, 12
a.vmwait_all()
publish(cF2, sF12, F2)
stamp("h_f2sent")
a("s_lshr_b32 s74, s2, 3\ns_mul_i32 s75, s74, 28\ns_mul_i32 s76, s3, 7\ns_add_u32 s75, s75, s76\ns_sub_u32 s76, s75, 448\ns_cmp_lt_u32 s75, 448\ns_cselect_b32 s75, s75, s76")
a("s_cselect_b32 s36, %s, %s\ns_cselect_b32 s37, %s, %s\ns_mul_i32 s75, s75, 896" % (pWoA[0], pWoB[0], pWoA[1], pWoB[1]))
a("v_lshrrev_b32 v2, 3, v1\nv_min_u32 v2, 6, v2\nv_and_b32 v3, 7, v1\nv_min_u32 v3, 6, v3\nv_mul_u32_u24 v2, 896, v2\nv_lshl_add_u32 v2, v3, 7, v2\nv_add_u32 v2, s75, v2")
if opt("woxcd", 1): a("global_load_dword v143, v2, s[36:37]")
def dma_wo(half, reg):
    for i in range(14):
        a("s_add_u32 m0, s75, %d\ns_mov_b32 s74, %d" % (half * 57344 + i * 1024, i * 8 * 896))
        a.vm("buffer_load_dwordx4 v26, %s, s74 offen lds" % reg, "wo"); pace()
a("""
s_add_u32 s73, %s, 23
s_add_u32 s74, %s, 23
s_add_u32 s75, %s, 16
s_add_u32 s76, %s, 16
s_add_u32 s77, %s, 21
s_lshr_b32 s77, s77, 1
s_add_u32 s78, %s, 21
s_lshr_b32 s78, s78, 1
""" % (sC0, sC1, sC0, sC1, sC0, sC1))
lane_select("v2", [(0, "s73"), (1, "s74"), (2, "s75"), (3, "s76"), (4, "s77"), (5, "s78"), (6, "14"), (7, "15")], "v3")
a("s_lshl_b32 s73, %s, 7\ns_add_u32 s73, s73, %d\nv_lshlrev_b32 v2, 11, v2\nv_add_u32 %s, s73, v2" % (sQB, F1, vPOLL))
a("s_lshl_b32 s73, %s, 17\ns_lshl_b32 s74, %s, 13\ns_add_u32 s73, s73, s74\ns_add_u32 s73, s73, %d" % (sH, sQB, N_OFF + N_KIND))
a("v_lshrrev_b32 v2, 4, v1\nv_and_b32 v3, 15, v1\nv_lshlrev_b32 v3, 4, v3\nv_lshl_add_u32 v2, v2, 9, v3")
a("s_and_b32 s74, s3, 1\ns_lshl_b32 s74, s74, 8\ns_add_u32 s74, s74, s73\nv_add_u32 %s, s74, v2" % vB1b)
a("s_lshr_b32 s74, s3, 1\ns_lshl_b32 s74, s74, 8\ns_add_u32 s74, s74, s73\ns_add_u32 s74, s74, %d\nv_add_u32 %s, s74, v2" % (N_KIND, vB1a))
a("s_lshl_b32 s73, %s, 16\ns_lshl_b32 s74, s3, 10\ns_add_u32 s73, s73, s74\ns_add_u32 s73, s73, %d\nv_add_u32 %s, s73, %s" % (sH, SLAB_OFF, vSL, vL16))
a("s_lshl_b32 s73, %s, 2\ns_add_u32 s73, s73, s3\ns_mul_i32 s73, s73, %d\ns_lshl_b32 s74, %s, 9\ns_add_u32 s73, s73, s74\ns_add_u32 s73, s73, %d\nv_add_u32 %s, s73, %s" % (sQB, T_TILE, sU0, T_OFF + 14 * 4096, vPQ, vL16))
o_addr(19, vL16, "v2", "v3")
a("s_lshl_b32 s73, %s, 11\ns_add_u32 s73, s73, %d\nv_and_b32 v2, 15, v1\nv_lshlrev_b32 v3, 7, v2\nv_add_u32 v9, s73, v3" % (sH, F3))
a("s_lshr_b32 s73, %s, 1\ns_lshl_b32 s73, s73, 7\ns_add_u32 s73, s73, %d\nv_lshlrev_b32 v2, 11, v2\nv_add_u32 v8, s73, v2" % (sRB2, F4))
a("s_lshl_b32 s73, %s, 1\ns_and_b32 s74, s3, 1\ns_add_u32 s73, s73, s74\ns_lshr_b32 s74, s3, 1" % sRB2)
a("s_mul_i32 s75, s73, %d\ns_mul_i32 s76, s74, 14336\ns_add_u32 s75, s75, s76\ns_add_u32 s75, s75, %d\nv_add_u32 %s, s75, %s" % (O_TILE, O_OFF, vO, vL16))
a("s_mul_i32 s75, s73, %d\ns_lshl_b32 s76, %s, 7\ns_add_u32 s75, s75, s76\ns_lshl_b32 s76, s74, 6\ns_add_u32 s75, s75, s76" % (32 * 896, sCC))
a("v_and_b32 v2, 31, v1\nv_mul_u32_u24 v2, 896, v2\nv_lshrrev_b32 v3, 5, v1\nv_lshl_add_u32 v2, v3, 4, v2\nv_add_u32 %s, s75, v2" % vOUT)
tr_addr("v4", True, "v2", "v3", "v5")
a("v_xor_b32 v4, s76, v4\ns_mul_i32 s75, s74, 28672\nv_add_u32 v%d, s75, v4\nv_xor_b32 v%d, 64, v%d" % (vWB, vWB + 1, vWB))
a("v_add_u32 v%d, 57344, v%d\nv_add_u32 v%d, 57344, v%d" % (vWA, vWB, vWA + 1, vWB + 1))
a("s_lshl_b32 s73, s74, 2\ns_cmp_eq_u32 %s, 0\ns_cselect_b32 s75, 7, 0\ns_sub_u32 s75, s75, s73" % sODD)
a("v_lshrrev_b32 v2, 4, v1\nv_cmp_eq_u32 %s, s75, v2" % sMA)
a("s_lshl_b32 s73, s73, 8\ns_and_b32 s75, s3, 1\ns_lshl_b32 s75, s75, 8\ns_add_u32 s73, s73, s75\ns_add_u32 s73, s73, %d" % KVX)
a("v_and_b32 v3, 15, v1\nv_lshlrev_b32 v3, 4, v3\nv_and_b32 v4, 1, v2\nv_lshl_add_u32 v3, v4, 9, v3\nv_lshrrev_b32 v4, 1, v2\nv_lshl_add_u32 v3, v4, 3, v3\nv_add_u32 v7, s73, v3")
a("v_add_u32 v6, %d, %s" % (KVX, vL16))
group_poll(1, opt("d2", 0))
stamp("h_f2seen")
for k in range(4):
    a("s_mov_b32 s73, %d" % (2048 * k))
    a.vm("buffer_load_dwordx4 %s, %s, %s, s73 offen sc1" % (vr(64 + 8 * k, 4), vB1a, WS), "b1"); pace()
    a.vm("buffer_load_dwordx4 %s, %s, %s, s73 offen sc1" % (vr(68 + 8 * k, 4), vB1b, WS), "b1"); pace()
a("v_mov_b32 %s, v9" % vPOLL)
a.vmwait_all()
for k in range(4):
    a("v_mfma_f32_16x16x32_bf16 v[96:99], %s, %s, %s" % (vr(64 + 8 * k, 4), vr(68 + 8 * k, 4), "v[96:99]" if k else "0"))
a("s_lshl_b32 s73, %s, 12" % sQB)
a.nop(7)
a.vm("buffer_store_dwordx4 v[96:99], %s, %s, s73 offen sc1" % (vSL, WS), "slab")
for m in range(2): a.vm("buffer_load_dwordx4 %s, %s, %s, 0 offen offset:%d sc1" % (vr(56 + 4 * m, 4), vPQ, WS, 1024 * m), "pq")
load_g(vGh, "v2")
a.vmwait("slab")
publish(cF3, sF345, F3)
stamp("h_f3sent")
spin(cH2, 8)
a("s_mul_i32 s75, s3, %d" % (14 * 1024))
dma_wo(1, WOA); dma_wo(0, WOB)
a.vmwait_all()
arrive(cWO)
stamp("h_wo_landed")
group_poll(2, opt("d3", 0))
stamp("h_f3seen")
for k in range(16):
    a("s_mov_b32 s73, %d" % (4096 * k))
    a.vm("buffer_load_dwordx4 %s, %s, %s, s73 offen sc1" % (vr(64 + 4 * k, 4), vSL, WS), "b2"); pace()
a("v_mov_b32 %s, v8" % vPOLL)
spin(cWO, 4, 1)
def WAf(g, c, e=None):
    b = 144 + 8 * g + 4 * c
    return vr(b, 4) if e is None else vr(b + 2 * e, 2)
for g in range(14):
    for c in range(2):
        for e in range(2): a.ds("ds_read_b64_tr_b16 %s, v%d offset:%d" % (WAf(g, c, e), vWA + c, g * 2048 + e * 512))
    if g % 3 == 2: a.dswait_all()
a.dswait_all()
arrive(cWA)
stamp("h_wa_read")
a.vmwait_all()
for step in (32, 16, 8, 4):
    for k in range(0, step, 2):
        a("v_pk_add_f32 %s, %s, %s" % (vr(64 + k, 2), vr(64 + k, 2), vr(64 + step + k, 2)))
a("v_cvt_pk_bf16_f32 v4, v64, v65\nv_cvt_pk_bf16_f32 v5, v66, v67")
a("v_cndmask_b32 v4, v4, %s, %s\nv_cndmask_b32 v5, v5, %s, %s" % (vZERO, sMA, vZERO, sMA))
a("ds_write_b64 v7, v[4:5]")
arrive(cKV)
spin(cKV, 4, 1)
a("ds_read_b128 v[64:67], v6\nds_read_b128 v[68:71], v6 offset:1024\ns_waitcnt lgkmcnt(0)")
mfma("v[80:95]", "v[64:67]", "v[56:59]", True)
mfma("v[80:95]", "v[68:71]", "v[60:63]")
a("v_sub_f32 v4, 1.0, %s" % vGh)
a.nop(11)
bcast_hi("v2", "v92", "v3")
a("v_add_f32 v2, 0x%x, v2\nv_rcp_f32 v2, v2\ns_nop 0\nv_mul_f32 v2, v2, v4\nv_mov_b32 v3, v2" % f32(1e-6))
for q in range(8): a("v_pk_mul_f32 %s, %s, v[2:3]" % (vr(80 + 2 * q, 2), vr(80 + 2 * q, 2)))
for q in range(8): a("v_cvt_pk_bf16_f32 v%d, v%d, v%d" % (64 + q, 80 + 2 * q, 81 + 2 * q))
store_o(64, 19, 1, "ob")
a.vmwait_all()
publish(cF4, sF345, F4)
stamp("h_f4sent")
a("s_cmp_eq_u32 %s, 0\ns_cbranch_scc1 L_fin" % sP3)
group_poll(3, opt("d4", 16))
stamp("h_f4seen")
def Of(g): return vr(64 + 4 * g, 4)
def acc3(c): return 32 + 16 * c
def WBf(g, c, e=None):
    b = 120 + 8 * (g % 3) + 4 * c
    return vr(b, 4) if e is None else vr(b + 2 * e, 2)
def wb_reads(g):
    for c in range(2):
        for e in range(2): a.ds("ds_read_b64_tr_b16 %s, v%d offset:%d" % (WBf(g, c, e), vWB + c, g * 2048 + e * 512), g)
for g in range(14):
    if g % 4 == 0: a("s_mov_b32 s73, %d" % (28672 + g * 1024))
    a.vm("buffer_load_dwordx4 %s, %s, %s, s73 offen offset:%d sc1" % (Of(g), vO, WS, (g % 4) * 1024)); pace()
a("v_add_u32 %s, %d, %s" % (vPOLL, F5 - F4, vPOLL))
a.vmwait_all()
stamp("h_ob_loaded")
spin(cVT, 4, 2, 0xff) if P3LATE else spin(cRD, 1, 4)
wb_reads(0); wb_reads(1)
for g in range(14):
    a.dswait(g)
    mfma(vr(acc3(0), 16), WBf(g, 0), Of(g), g == 0)
    if g < 12: wb_reads(g + 2)
    mfma(vr(acc3(1), 16), WBf(g, 1), Of(g), g == 0)
stamp("h_p3b_done")
a("s_xor_b32 s73, s3, 2\ns_lshl_b32 s73, s73, 12\ns_add_u32 s73, s73, %d\nv_add_u32 v6, s73, %s\ns_lshl_b32 s73, s3, 12\ns_add_u32 s73, s73, %d\nv_add_u32 v7, s73, %s" % (FIN, vL16, FIN, vL16))
spin(cVT, 4, 2, 0xff)
group_poll(4, P5DELAY, 4)
stamp("h_f5seen")
for g in range(14):
    if g % 4 == 0: a("s_mov_b32 s73, %d" % (g * 1024))
    a.vm("buffer_load_dwordx4 %s, %s, %s, s73 offen offset:%d sc1" % (Of(g), vO, WS, (g % 4) * 1024), g)
for g in range(14):
    a.vmwait(g)
    if g == 0: stamp("h_oa0")
    mfma(vr(acc3(1), 16), WAf(g, 1), Of(g))
    mfma(vr(acc3(0), 16), WAf(g, 0), Of(g))
a.nop(11)
for i in range(4): a.ds("ds_write_b128 v6, %s offset:%d" % (vr(acc3(1) + 4 * i, 4), 1024 * i))
a.dswait_all()
a("s_barrier")
for i in range(4): a.ds("ds_read_b128 %s, v7 offset:%d" % (vr(64 + 4 * i, 4), 1024 * i), i)
for i in range(4):
    a.dswait(i)
    for q in range(2): a("v_pk_add_f32 %s, %s, %s" % (vr(32 + 4 * i + 2 * q, 2), vr(32 + 4 * i + 2 * q, 2), vr(64 + 4 * i + 2 * q, 2)))
for q in range(8): a("v_cvt_pk_bf16_f32 v%d, v%d, v%d" % (80 + q, 32 + 2 * q, 33 + 2 * q))
for m in range(2): a.vm("buffer_store_dwordx4 %s, %s, %s, 0 offen offset:%d" % (vr(80 + 4 * m, 4), vOUT, OUT, 32 * m))
a("s_or_b32 s73, s2, s3\ns_cmp_lg_u32 s73, 0\ns_cbranch_scc1 L_fin")
a("v_mov_b32 v2, %d\nv_mov_b32 v3, %d\nv_cndmask_b32 v2, v2, v3, %s" % (OOB, EPOCH_OFF, sMZ))
a.vm("buffer_store_dword %s, v2, %s, 0 offen sc1" % (vTAG, WS))
a("s_branch L_fin")
def Xm(buf, rtl): return vr(32 + 16 * buf + 4 * rtl, 4)
def Wm(buf, ct, e=None):
    b = 40 + 16 * buf + 4 * ct
    return vr(b, 4) if e is None else vr(b + 2 * e, 2)
def acc1(rtl, ct): return 64 + 32 * rtl + 16 * ct
def main_p1(T):
    a.vmq = []; a.lgq = []
    tmp = ["v2", "v3", "v4", "v5"]
    a("s_and_b32 s73, s3, 1\ns_lshr_b32 s74, s3, 1\ns_lshl_b32 s75, s73, 13")
    x_addr(128, T, "s75", tmp)
    tr_addr("v5", T, "v2", "v3", "v4")
    a("s_lshl_b32 s75, s74, 13\ns_add_u32 s75, s75, 16384\nv_add_u32 v140, s75, v5\nv_xor_b32 v141, 64, v140")
    for ct in range(2): a("v_add_u32 v%d, 65536, v%d" % (142 + ct, 140 + ct))
    a("s_lshl_b32 s75, %s, 2\ns_lshl_b32 s76, s73, 1\ns_add_u32 s75, s75, s76" % sRB)
    a("s_lshl_b32 s76, %s, 1\ns_add_u32 s76, s76, s74" % sJ)
    if T:
        a("s_mul_i32 s77, s75, %d\ns_lshl_b32 s78, s76, 12\ns_add_u32 s78, s78, s77\nv_add_u32 v146, s78, %s" % (T_TILE, vL16))
        a("s_cmp_lt_u32 s76, 7\ns_cselect_b32 s84, 0x%x, 1.0\ns_mov_b32 s85, s84\ns_mov_b32 %s, %d" % (f32(QSCALE), sRTL, T_TILE))
    else:
        a("s_lshl_b32 s75, s75, 11\ns_add_u32 s75, s75, %d" % N_OFF)
        a("s_sub_u32 s76, s76, 14\ns_sub_u32 s77, s76, 7\ns_cmp_lt_u32 s76, 7\ns_cselect_b32 s76, s76, s77\ns_cselect_b32 s77, 0, %d\ns_add_u32 s77, s77, s75" % N_KIND)
        for ct in range(2):
            a("s_lshl_b32 s73, s76, 6\ns_add_u32 s73, s73, %d\nv_and_b32 v6, 31, v1\nv_add_u32 v6, s73, v6" % (32 * ct))
            n_addr("v%d" % (146 + ct), "s77", "v6", True, tmp)
        a("s_lshl_b32 s73, s76, 6\ns_add_u32 s74, s73, 27\ns_mul_i32 s74, s74, 2341\ns_lshr_b32 s74, s74, 16\ns_add_u32 s73, s73, 64")
        a("v_lshrrev_b32 v2, 4, v1\nv_add_u32 v2, s74, v2\nv_mul_u32_u24 v3, 28, v2\nv_cmp_gt_u32 vcc, s73, v3")
        a("v_lshlrev_b32 v2, 17, v2\nv_bfe_u32 v3, v1, 2, 2\nv_lshl_add_u32 v2, v3, 9, v2\nv_and_b32 v3, 3, v1\nv_lshl_add_u32 v2, v3, 4, v2")
        a("v_add_u32 v2, s77, v2\nv_add_u32 v2, %d, v2\nv_mov_b32 v4, %d\nv_cndmask_b32 v148, v4, v2, vcc" % (28 * 16, OOB))
        a("v_cmp_eq_u32 vcc, 0, v3\nv_mov_b32 v4, 0x3f803f80\ns_nop 0\nv_cndmask_b32 v152, %s, v4, vcc" % vZERO)
        a("v_mov_b32 v153, v152\nv_mov_b32 v154, v152\nv_mov_b32 v155, v152")
    def mm(rtl, ct, g):
        if T: mfma(vr(acc1(rtl, ct), 16), Wm(g & 1, ct), Xm(g & 1, rtl), g == 0)
        else: mfma(vr(acc1(rtl, ct), 16), Xm(g & 1, rtl), Wm(g & 1, ct), g == 0)
    def reads(g):
        s, t = g >> 2, g & 3; slot = SLOT[s]; hi, lo = slot >> 1, (slot & 1) * 32768
        rx = [lambda rtl=rtl: a.ds("ds_read_b128 %s, v%d offset:%d" % (Xm(g & 1, rtl), 128 + 4 * hi + t, lo + rtl * 4096), g) for rtl in range(2)]
        rw = [lambda ct=ct, e=e: a.ds("ds_read_b64_tr_b16 %s, v%d offset:%d" % (Wm(g & 1, ct, e), 140 + 2 * hi + ct, lo + t * 2048 + e * 512), g) for ct in range(2) for e in range(2)]
        return [rx[0], rw[0], rw[1], rw[2], rw[3], rx[1]]
    get_tag()
    a("s_barrier")
    stamp("m_slab0")
    for r in reads(0): r()
    for g in range(28):
        a.dswait(g)
        mm(0, 0, g)
        if (g & 3) == 3 and g < 27: a("s_barrier")
        if g == 27: arrive(cH2)
        if g == WOPF: prefetch_wo()
        nxt = reads(g + 1) if g < 27 else []
        for r in nxt[:3]: r()
        mm(0, 1, g)
        for r in nxt[3:]: r()
        mm(1, 0, g)
        mm(1, 1, g)
    stamp("m_r1")
    a("s_cmp_lg_u32 s84, 1.0")
    a.nop(8)
    for rtl in range(2):
        for ct in range(2):
            b = acc1(rtl, ct); o = 160 + 8 * (2 * rtl + ct)
            if T:
                skip = a.newlabel("noscale")
                a("s_cbranch_scc0 %s" % skip)
                if (rtl, ct) == (0, 0): pass
                for q in range(16): a("v_mul_f32 v%d, s84, v%d" % (b + q, b + q))
                a.label(skip)
            for q in range(8):
                a("v_cvt_pk_bf16_f32 v%d, v%d, v%d" % (o + q, b + 2 * q, b + 2 * q + 1))
            for m in range(2):
                if T: a.vm("buffer_store_dwordx4 %s, v146, %s, %s offen offset:%d sc1" % (vr(o + 4 * m, 4), WS, sRTL if rtl else "0", ct * 2048 + m * 1024))
                else: a.vm("buffer_store_dwordx4 %s, v%d, %s, 0 offen offset:%d sc1" % (vr(o + 4 * m, 4), 146 + ct, WS, rtl * 2048 + m * 1024))
    if not T:
        for rtl in range(2): a.vm("buffer_store_dwordx4 v[152:155], v148, %s, 0 offen offset:%d sc1" % (WS, rtl * 2048))
    stamp("m_stored")

a.label("L_main")
if PREF == 2:
    a("s_lshl_b32 s75, s2, 2\ns_add_u32 s75, s75, s3\ns_lshl_b32 s76, s75, 1\ns_mul_i32 s77, s75, 3\ns_sub_u32 s77, s77, 2")
    a("v_add_u32 v2, s76, v1\nv_mul_u32_u24 v2, 896, v2\nv_add_u32 v3, s77, v1\nv_min_u32 v3, 2687, v3\nv_mul_u32_u24 v4, 1561, v3\nv_lshrrev_b32 v4, 16, v4")
    a("v_mul_u32_u24 v5, 42, v4\nv_sub_u32 v5, v3, v5\nv_cmp_gt_u32 s[88:89], 21, v5\nv_subrev_u32 v6, 21, v5\nv_min_u32 v5, v5, v6\nv_mul_u32_u24 v4, 2688, v4\nv_lshl_add_u32 v4, v5, 7, v4")
    a("v_cmp_gt_u32 s[86:87], 2, v1\nv_mov_b32 v21, 0\nv_mov_b32 v7, 0\nv_cndmask_b32 v20, v4, v2, s[86:87]\nv_mov_b32 v2, %d\nv_mov_b32 v3, 128\nv_cndmask_b32 v6, v2, v3, s[86:87]" % (64 * 2688))
    for k in range(2):
        a("v_mov_b32 v2, s%d\nv_mov_b32 v14, s%d\nv_cndmask_b32 v2, v2, v14, s[88:89]\nv_mov_b32 v14, s%d\nv_cndmask_b32 v%d, v2, v14, s[86:87]" % (48 + k, 42 + k, 40 + k, 22 + k))
    a("v_lshl_add_u64 v[22:23], v[20:21], 0, v[22:23]")
    for k in range(7):
        a("s_mov_b64 exec, 0x1f\nglobal_load_dword v254, v[22:23], off\ns_mov_b64 exec, -1\nv_lshl_add_u64 v[22:23], v[6:7], 0, v[22:23]")
        if opt("pfgap", 4) and k < 6: a("s_sleep %d" % opt("pfgap", 4))
if MPRIO: a("s_setprio %d" % MPRIO)
epoch_load()
roles()
srd(WS, pWs[0], pWs[1], WS_SIZE)
a("v_lshlrev_b32 v2, 2, v1\nv_add_u32 v2, %d, v2\nds_write_b32 v2, %s" % (RSV, vZERO))
a("s_lshl_b32 s75, s2, 2\ns_add_u32 s75, s75, s3\ns_lshl_b32 s75, s75, 2\nv_add_u32 v11, s75, v1\nv_min_u32 v11, %d, v11\nv_lshlrev_b32 v11, 7, v11" % (448 * 7 - 1))
def prefetch_wo():
    a("s_mov_b64 exec, 0xf\nglobal_load_dword v254, v11, s[44:45]\nglobal_load_dword v254, v11, s[50:51]\ns_mov_b64 exec, -1")
a("s_cmp_ge_u32 %s, 14\ns_cbranch_scc1 L_m_gate" % sJ)
a("s_cmp_ge_u32 %s, 7\ns_cbranch_scc1 L_m_N" % sJ)
main_p1(True)
a("s_branch L_m_join")
a.label("L_m_N")
main_p1(False)
a("s_branch L_m_join")
a.label("L_m_gate")
srd(X, pX[0], pX[1], 2048 * 896)
srd(GW, pG[0], pG[1], 896)
a.vmq = []
a("s_lshl_b32 s75, %s, 7\ns_sub_u32 s76, %s, 14\ns_lshl_b32 s76, s76, 6\ns_add_u32 s75, s75, s76\ns_lshl_b32 s76, s3, 4\ns_add_u32 s75, s75, s76" % (sRB, sJ))
a("v_lshrrev_b32 v2, 3, v1\nv_add_u32 v2, s75, v2\nv_and_b32 v3, 7, v1\nv_lshlrev_b32 v3, 4, v3")
a("v_mul_u32_u24 v4, 896, v2\nv_add_u32 v4, v4, v3\nv_add_u32 v5, %d, v4" % (8 * 896))
for i in range(7):
    a.vm("buffer_load_dwordx4 %s, v3, %s, 0 offen offset:%d" % (vr(64 + 4 * i, 4), GW, 128 * i))
    a.vm("buffer_load_dwordx4 %s, v4, %s, 0 offen offset:%d" % (vr(96 + 4 * i, 4), X, 128 * i))
    a.vm("buffer_load_dwordx4 %s, v5, %s, 0 offen offset:%d" % (vr(128 + 4 * i, 4), X, 128 * i))
a("v_mov_b32 v6, 0\nv_mov_b32 v7, 0")
a("v_lshlrev_b32 v2, 2, v2\nv_add_u32 v2, %d, v2\nv_mov_b32 v8, %d\nv_cmp_eq_u32 vcc, 0, v3\ns_nop 1\nv_cndmask_b32 v9, v8, v2, vcc" % (G_OFF, OOB))
get_tag()
a("s_barrier")
arrive(cH2)
a.vmwait_all()
prefetch_wo()
for i in range(28):
    a("v_dot2_f32_bf16 v6, v%d, v%d, v6\nv_dot2_f32_bf16 v7, v%d, v%d, v7" % (64 + i, 96 + i, 64 + i, 128 + i))
a.nop(3)
for dpp in ("quad_perm:[1,0,3,2]", "quad_perm:[2,3,0,1]", "row_half_mirror"):
    a("v_add_f32_dpp v6, v6, v6 %s row_mask:0xf bank_mask:0xf\nv_add_f32_dpp v7, v7, v7 %s row_mask:0xf bank_mask:0xf" % (dpp, dpp))
    a.nop(2)
for r in (6, 7):
    a("v_mul_f32 v%d, 0x%x, v%d\nv_exp_f32 v%d, v%d\ns_nop 0\nv_add_f32 v%d, 1.0, v%d\nv_rcp_f32 v%d, v%d\ns_nop 0" % (r, f32(-LOG2E), r, r, r, r, r, r, r))
a.vm("buffer_store_dword v6, v9, %s, 0 offen sc1" % WS)
a.vm("buffer_store_dword v7, v9, %s, 0 offen offset:32 sc1" % WS)

a.label("L_m_join")
a.vmq = ["st"]; a.lgq = []
vK, vV, vQ, vG, vIDX = "v26", "v25", "v24", "v23", "v22"
OAD = 19
def Qf(tau, m): return 32 + 8 * tau + 4 * m
def KV(b, k): return vr(192 + 16 * b + 4 * k, 4)
def Oa(tau): return 128 + 16 * tau
def Sb(tau): return 64 + 16 * tau
a("""
s_add_u32 s73, %s, 7
s_lshr_b32 s73, s73, 1
s_add_u32 s74, %s, 7
s_lshr_b32 s74, s74, 1
s_add_u32 s75, %s, 14
s_lshr_b32 s75, s75, 1
s_add_u32 s76, %s, 14
s_lshr_b32 s76, s76, 1
s_lshr_b32 s77, %s, 1
s_lshr_b32 s78, %s, 1
s_lshr_b32 s83, s3, 1
s_add_u32 s83, s83, 14
""" % (sC0, sC1, sC0, sC1, sC0, sC1))
lane_select("v2", [(0, "s73"), (4, "s74"), (8, "s75"), (12, "s76"), (16, "s77"), (17, "s78"), (18, "s83")], "v3")
a("s_lshl_b32 s73, s3, 2\nv_and_b32 v3, 3, v1\nv_add_u32 v3, s73, v3\nv_mov_b32 v4, %s\nv_cmp_le_u32 vcc, 16, v1\ns_nop 1\nv_cndmask_b32 v3, v3, v4, vcc" % sQB)
a("v_lshl_add_u32 v2, v2, 4, v3\nv_lshlrev_b32 v2, 7, v2\nv_add_u32 %s, %d, v2" % (vPOLL, F1))
a("s_lshl_b32 s73, %s, 9" % sU0)
a("s_mul_i32 s74, s3, %d\ns_add_u32 s74, s74, s73\ns_add_u32 s74, s74, %d\nv_add_u32 %s, s74, %s" % (16 * T_TILE, T_OFF + 7 * 4096, vK, vL16))
a("s_lshl_b32 s74, %s, 17\ns_lshl_b32 s75, s3, 15\ns_add_u32 s74, s74, s75\ns_add_u32 s74, s74, %d\nv_add_u32 %s, s74, %s" % (sH, N_OFF, vV, vL16))
a("s_mul_i32 s74, %s, %d\ns_add_u32 s74, s74, s73\nv_add_u32 %s, s74, %s" % (sQB, 4 * T_TILE, vQ, vL16))
o_addr(OAD, vL16, "v2", "v3")
a("s_cmp_eq_u32 %s, 0\ns_mov_b32 s86, 0\ns_cselect_b32 s87, -1, 0\ns_cselect_b32 s88, 0, -1\ns_mov_b32 s89, 0" % sODD)
a("v_mov_b32 %s, 0xdddddddd" % vIDX)
def zero_o():
    for i in range(64): a("v_mov_b32 v%d, 0" % (128 + i))
zero_o()
for tau in range(4):
    a("s_add_u32 s73, s3, %d\ns_and_b32 s73, s73, 3\ns_mul_i32 s%d, s73, %d" % (1 + tau, 74 + tau, T_TILE))
if MPRIO: a("s_setprio 0")
a.vmwait_all()
stamp("m_drained")
publish(cM1, sF12, F1)
if PDELAY: a("s_sleep %d" % PDELAY)
poll(4, 1, vPOLL, PSLEEP)
stamp("m_f1seen")
def kv_load(kt, k):
    if k < 2: a.vm("buffer_load_dwordx4 %s, %s, %s, %s offen offset:%d sc1" % (KV(kt & 3, k), vK, WS, sSK, 1024 * k), "k%d" % kt)
    else: a.vm("buffer_load_dwordx4 %s, %s, %s, %s offen offset:%d sc1" % (KV(kt & 3, k), vV, WS, sSV, 1024 * (k - 2)), "v%d" % kt)
def kv_off(kt, k): a("s_mov_b32 %s, %d" % ((sSK, kt * T_TILE) if k == 0 else (sSV, kt * 2048)))
def q_load(tau):
    for m in range(2): a.vm("buffer_load_dwordx4 %s, %s, %s, s%d offen offset:%d sc1" % (vr(Qf(tau, m), 4), vQ, WS, 74 + tau, 1024 * m), "q%d" % tau)
def q_fix(tau):
    for k in (0, 1): a("v_cndmask_b32 v%d, v%d, %s, %s" % (Qf(tau, 0) + k, Qf(tau, 0) + k, vZERO, sMB))
    for k in (2, 3): a("v_cndmask_b32 v%d, v%d, %s, %s" % (Qf(tau, 1) + k, Qf(tau, 1) + k, vZERO, sMA))
kv_off(0, 0); kv_off(0, 1)
kv_load(0, 0); kv_load(0, 1); q_load(0); q_load(1); kv_load(0, 2); kv_load(0, 3); q_load(2); q_load(3)
kv_off(1, 0); kv_off(1, 1)
for k in range(4): kv_load(1, k)
load_g(vG, "v2")
def M(n, m):
    kt, tau = n >> 2, n & 3
    mfma(vr(Sb(tau), 16), KV(kt & 3, m), vr(Qf(tau, m), 4), m == 0)
def P(n, m):
    kt, tau = n >> 2, n & 3
    a("v_smfmac_f32_32x32x32_bf16 %s, %s, %s, %s" % (vr(Oa(tau), 16), KV(kt & 3, 2 + m), vr(Sb(tau) + 8 * m, 8), vIDX))
def E(n, q):
    for k in range(4 * q, 4 * q + 4): a("v_exp_f32 v%d, v%d" % (Sb(n & 3) + k, Sb(n & 3) + k))
a.vmwait("q0"); q_fix(0)
stamp("m_attn0"); rstamp("R_attn0")
a.nop(1)
M(0, 0); M(0, 1)
a.vmwait("q1"); q_fix(1)
a.nop(6)
sched = {n: [] for n in range(64)}
for i, (kt, k) in enumerate([(2, 0), (2, 1), (2, 2), (2, 3), (3, 0), (3, 1), (3, 2), (3, 3)]): sched[i // 2].append((kt, k))
for kt in range(4, 16):
    for k in range(4): sched[4 * (kt - 3) + k].append((kt, k))
for n in range(64):
    ld = sched[n]
    if n < 63: M(n + 1, 0)
    for kt, k in ld:
        if k in (0, 2): kv_off(kt, k >> 1)
    E(n, 0)
    if n < 63: M(n + 1, 1)
    if n == 0: a.vmwait("v0")
    E(n, 1)
    if n > 0: P(n - 1, 1)
    if ld: kv_load(*ld[0])
    E(n, 2)
    P(n, 0)
    if len(ld) > 1: kv_load(*ld[1])
    if n < 2: a.vmwait("q%d" % (n + 2))
    elif NOWAIT: pass
    elif (n & 3) == 2 and n + 2 < 64: a.vmwait("k%d" % ((n + 2) // 4))
    elif (n & 3) == 3 and n + 1 < 64: a.vmwait("v%d" % ((n + 1) // 4))
    E(n, 3)
    if n < 2: q_fix(n + 2)
    if n in (7, 15, 31, 47): stamp("m_slot%d" % n)
a.nop(2)
P(63, 1)
stamp("m_attn_end"); rstamp("R_attn_end")
spin(cWA, 4)
a("s_mov_b32 s77, 4")
a.label("L_reduce")
for tau in range(3):
    a("s_add_u32 s73, s3, %d\ns_and_b32 s73, s73, 3\ns_mul_i32 s73, s73, 12288\ns_add_u32 s73, s73, %d\nv_add_u32 v2, s73, %s" % (1 + tau, RED + tau * 4096, vL16))
    for i in range(4):
        a.ds("ds_write_b128 v2, %s offset:%d" % (vr(Oa(tau) + 4 * i, 4), 1024 * i))
a("s_mul_i32 s73, s3, 12288\ns_add_u32 s73, s73, %d\nv_add_u32 v2, s73, %s" % (RED, vL16))
a("v_mov_b32 v3, v2")
arrive(cRD)
spin(cRD, "s77", 0)
for k in range(12):
    a.ds("ds_read_b128 %s, v3 offset:%d" % (vr(64 + 4 * k, 4), 1024 * k), k // 4)
O3 = Oa(3)
for s in range(3):
    a.dswait(s)
    for q in range(8):
        a("v_pk_add_f32 %s, %s, %s" % (vr(O3 + 2 * q, 2), vr(O3 + 2 * q, 2), vr(64 + 16 * s + 2 * q, 2)))
bcast_hi("v4", vr(O3 + 12), "v5")
a("v_rcp_f32 v6, v4\nv_mov_b32 v8, 0\nv_mov_b32 v9, 0\nv_mul_f32 v6, v6, %s\nv_mov_b32 v7, v6" % vG)
for q in range(8):
    a("v_pk_mul_f32 %s, %s, v[6:7]" % (vr(64 + 2 * q, 2), vr(O3 + 2 * q, 2)))
for q in range(8):
    a("v_cvt_pk_bf16_f32 v%d, v%d, v%d" % (80 + q, 64 + 2 * q, 65 + 2 * q))
store_o(80, OAD, 0, "oa")
stamp("m_oa_stored")
for q in range(8):
    a("v_pk_fma_f32 v[8:9], %s, 0, v[8:9] op_sel_hi:[1,0,1]" % vr(O3 + 2 * q, 2))
a("v_add_f32 v8, v8, v9\nv_add_f32 v4, v4, v8")
a("v_cmp_nle_f32 vcc, 0x%x, v4\ns_mov_b64 s[94:95], vcc\nv_cmp_nge_f32 vcc, 0x%x, v4\ns_or_b64 vcc, vcc, s[94:95]" % (f32(2.0 ** -64), f32(2.0 ** 64)))
a("s_cmp_lg_u64 vcc, 0\ns_cselect_b32 s74, 0x101, %d\ns_andn2_b32 s74, s74, %s\nv_mov_b32 v3, s74" % (0x101 if FORCE_FB else 1, sFB))
a.vmwait_all()
arrive(cVT, True, "v3")
a("s_add_u32 s75, s83, s74\ns_and_b32 s76, s75, 0xff\ns_cmp_lg_u32 s76, s77\ns_cbranch_scc1 L_notlast")
a("s_lshr_b32 s75, s75, 8\ns_cmp_lg_u32 s75, 0\ns_cselect_b32 s75, 0x100, 0\ns_andn2_b32 s75, s75, %s\ns_cmp_lg_u32 s75, 0\ns_cbranch_scc1 L_fallback" % sFB)
flag_store(sF345, F5)
stamp("m_f5sent")
a("s_branch L_fin")
a.label("L_notlast")
a("s_cmp_lg_u32 %s, 0\ns_cbranch_scc1 L_fin" % sFB)
spin(cVT, 4, 1, 0xff)
a("s_lshr_b32 s73, s83, 8\ns_cmp_eq_u32 s73, 0\ns_cbranch_scc1 L_fin")

a.label("L_fallback")
a("s_mov_b32 %s, 0x100\ns_mov_b32 s77, 8\ns_waitcnt vmcnt(0)" % sFB)
for t in range(4): a("v_mov_b32 v%d, 0xff800000" % (8 + t))
a("s_mov_b32 %s, 0" % sSK)
a.label("L_fb1")
for m in range(2): kv_load(0, m)
a("s_waitcnt vmcnt(0)")
for t in range(4):
    M(t, 0); M(t, 1)
a.nop(12)
for t in range(4):
    for q in range(8): a("v_max3_f32 v%d, v%d, v%d, v%d" % (8 + t, Sb(t) + 2 * q, Sb(t) + 2 * q + 1, 8 + t))
a("s_add_u32 %s, %s, %d\ns_cmp_lt_u32 %s, %d\ns_cbranch_scc1 L_fb1" % (sSK, sSK, T_TILE, sSK, 16 * T_TILE))
for t in range(4):
    a("v_mov_b32 v2, v%d\nv_mov_b32 v3, v%d\ns_nop 1\nv_permlane32_swap_b32 v2, v3\nv_max_f32 v2, v2, v3" % (8 + t, 8 + t))
    a("s_add_u32 s73, s3, %d\ns_and_b32 s73, s73, 3\ns_lshl_b32 s73, s73, 10\ns_add_u32 s73, s73, %d\nv_lshlrev_b32 v4, 2, v1\nv_add_u32 v%d, s73, v4" % (1 + t, RED, 12 + t))
    a("s_lshl_b32 s73, s3, 8\nv_add_u32 v4, s73, v%d\nds_write_b32 v4, v2" % (12 + t))
arrive(cFB0)
spin(cFB0, 4)
for t in range(4):
    for k in range(4): a("ds_read_b32 v%d, v%d offset:%d" % (2 + k, 12 + t, 256 * k))
    a("s_waitcnt lgkmcnt(0)\nv_max3_f32 v2, v2, v3, v4\nv_max_f32 v%d, v2, v5" % (8 + t))
arrive(cFB1)
spin(cFB1, 4)
zero_o()
a("s_mov_b32 %s, 0\ns_mov_b32 %s, 0" % (sSK, sSV))
a.label("L_fb2")
for k in range(4): kv_load(0, k)
a("s_waitcnt vmcnt(0)")
for t in range(4):
    M(t, 0); M(t, 1)
a.nop(12)
for t in range(4):
    for q in range(16): a("v_sub_f32 v%d, v%d, v%d" % (Sb(t) + q, Sb(t) + q, 8 + t))
    for q in range(16): a("v_exp_f32 v%d, v%d" % (Sb(t) + q, Sb(t) + q))
a.nop(2)
for t in range(4):
    P(t, 0); P(t, 1)
a.nop(12)
a("s_add_u32 %s, %s, %d\ns_add_u32 %s, %s, 2048\ns_cmp_lt_u32 %s, %d\ns_cbranch_scc1 L_fb2" % (sSK, sSK, T_TILE, sSV, sSV, sSV, 16 * 2048))
a("s_branch L_reduce")
a.label("L_fin")
stamp("end")
if STAMP:
    a("s_getreg_b32 s74, hwreg(HW_REG_HW_ID)\ns_getreg_b32 s75, hwreg(HW_REG_XCC_ID)\nv_writelane_b32 %s, s74, 62\nv_writelane_b32 %s, s75, 63" % (vSTAMP, vSTAMP))
    a("s_cmp_lg_u32 %s, 0xdddddddd" % "s98")
    a("v_lshlrev_b32 v2, 2, v1\ns_lshl_b32 s73, s2, 3\ns_add_u32 s73, s73, s39\ns_lshl_b32 s73, s73, 8\ns_add_u32 s73, s73, %d\ns_nop 4" % STAMP_OFF)
    a("buffer_store_dword %s, v2, %s, s73 offen" % (vSTAMP, WS))
if SPINTO or ENC >= 0:
    a("s_waitcnt vmcnt(0)")
    if ENC >= 0: a("s_sub_u32 s100, s100, s98\ns_min_u32 s100, s100, 5000\ns_add_u32 s100, s100, 4000")
    else: a("s_mov_b32 s100, %d" % SPINTO)
    if SKEW >= 0:
        a("v_mov_b32 v2, 0\nglobal_load_dword v3, v2, s[56:57] sc1\ns_waitcnt vmcnt(0)\nv_readfirstlane_b32 s75, v3\ns_not_b32 s75, s75\ns_sub_u32 s75, s98, s75\ns_mul_i32 s75, s75, %d\ns_add_u32 s100, s100, s75" % SKEW)
    a.label("L_spinto")
    a("s_memrealtime s[74:75]\ns_waitcnt lgkmcnt(0)\ns_sub_u32 s74, s74, s98\ns_cmp_lt_u32 s74, s100\ns_cbranch_scc1 L_spinto")
a.label("L_end")
a("s_endpgm")
a.label("L_codeend")

if STAMP:
    i = a.lines.index("v_readfirstlane_b32 s83, v2")
    a.lines.insert(i + 3, "s_mov_b32 s39, s83")
if ENC >= 0 and FILL < 0:
    i = a.lines.index("v_readfirstlane_b32 s83, v2")
    a.lines[i + 2:i + 2] = ["s_waitcnt lgkmcnt(0)", "s_mov_b32 s100, s98"]
probs = check(a.lines)
for p in sorted(set(probs)): print(p, file=sys.stderr)
hdr = open("cdna_kernels/%s.s.ref" % NAME).read().split("; Override launch")[0]
out = hdr + """; Fused single-launch kernel: QKV projections -> softmax attention + linear attention -> gated output projection.
; @launch grid=(256,1,1) block=(512,1,1) lds=%d
.amdgcn_target "amdgcn-amd-amdhsa--gfx950"
.text
.globl %s_kernel
.p2align 8
.type %s_kernel,@function
%s_kernel:
""" % (LDS_BYTES, NAME, NAME, NAME) + a.text() + """.section .rodata,"a"
.p2align 6
.amdhsa_kernel %s_kernel
  .amdhsa_next_free_vgpr 256
  .amdhsa_next_free_sgpr 102
  .amdhsa_accum_offset 256
  .amdhsa_group_segment_fixed_size 0
  .amdhsa_kernarg_size 80
  .amdhsa_user_sgpr_count 2
  .amdhsa_user_sgpr_kernarg_segment_ptr 1
  .amdhsa_system_sgpr_workgroup_id_x 1
.end_amdhsa_kernel
""" % NAME
dst = [x for x in sys.argv[1:] if not x.startswith("--")]
open(dst[0] if dst else "cdna_kernels/%s.s" % NAME, "w").write(out)
open("stamps.txt", "w").write("\n".join(STAMPS))
print("hazards:", len(set(probs)), "lines:", len(a.lines), file=sys.stderr)
```

```python
import sys, struct
from asmlib import Asm, check

NAME = "gated_mix__mha_block__linear_attn_block__prompt"
def flag(n): return ("--" + n) in sys.argv
def opt(n, d):
    for x in sys.argv:
        if x.startswith("--%s=" % n): return int(x.split("=")[1])
    return d
STAMP, FORCE_FB = flag("stamp"), flag("force-fallback")
SPINTO = opt("spinto", 0); ENC = opt("enc", -1)
AHEAD = opt("ahead", 2)
NTX = ["", "nt", "sc1", "sc0 sc1", "sc0 sc1 nt"][opt("ntx", 0)]; NTW = ["", "nt", "sc1", "sc0 sc1", "sc0 sc1 nt"][opt("ntw", 0)]
WOPF = opt("wopf", 6)
PDELAY = opt("pdelay", 16); PSLEEP = opt("psleep", 6); HOLD = opt("hold", 1); PACE = opt("pace", 5); HDELAY = opt("hdelay", 0); PREF = opt("pref", 1)
P5DELAY = opt("p5delay", 0); P3LATE = opt("p3late", 1); MPRIO = opt("mprio", 2)
HPRIO = opt("hprio", 1)
NOWAIT = flag("nowait")

T_OFF, T_TILE = 0, 21 * 4096
N_OFF, N_KIND = 0x540000, 0x200000
O_OFF, O_TILE = 0xB40000, 112 * 512
SLAB_OFF = 0xEC0000
G_OFF = 0xFC0000
F1, F2, F3, F4, F5 = [0xFC8000 + i * 0x8000 for i in range(5)]
EPOCH_OFF = 0xFF0000
STAMP_OFF = 0x1000000
WS_SIZE = 0x1100000
OOB = 0x40000000
RED = 106496
W2B = 98304
RSV = 155648
KVX = RSV + 1024
FIN = 114688
cM1, cW2, cH2, cF2, cWO, cDONE, cF3, cKV, cF4, cREL, cRD, cVT, cFB0, cFB1, cWB, cGO = range(16)
LDS_BYTES = 163840
SPIN = 1 << 18

def f32(x): return struct.unpack("<I", struct.pack("<f", x))[0]
LOG2E = 1.4426950408889634
QSCALE = 28 ** -0.5 * LOG2E

X, W0, W1, W2, WS, OUT, WOA, WOB = ["s[%d:%d]" % (4 + 4 * i, 7 + 4 * i) for i in range(8)]
GW = W0
sTAG, sRB, sJ, sH, sQB, sU0, sODD, sRB2, sCC, sP3 = ["s%d" % i for i in range(60, 70)]
sC0, sC1, sRTL = "s70", "s71", "s72"
sCNT, sFB, sMX, sMWc = "s79", "s80", "s81", "s82"
sSCL = "s[84:85]"
sMA, sMB, sMZ = "s[86:87]", "s[88:89]", "s[90:91]"
sSK, sSV = "s92", "s93"
sF12, sF345 = "s97", "s96"
STAMPS = {}
vTAG, vFL, vPOLL, vZERO, vSTAMP, vRSV, vONE = "v30", "v29", "v28", "v27", "v31", "v17", "v16"

a = Asm()
def stamp(name):
    if name not in STAMPS: STAMPS[name] = len(STAMPS)
    if STAMP:
        a("s_memrealtime s[98:99]\ns_waitcnt lgkmcnt(0)\nv_writelane_b32 %s, s98, %d" % (vSTAMP, STAMPS[name]))
        a.lgq = []
    if ENC == STAMPS[name]:
        a("s_memrealtime s[100:101]\ns_waitcnt lgkmcnt(0)")
        a.lgq = []

def rstamp(name):
    if name not in STAMPS: STAMPS[name] = len(STAMPS)
    if STAMP:
        a("s_memtime s[98:99]\ns_waitcnt lgkmcnt(0)\nv_writelane_b32 %s, s98, %d" % (vSTAMP, STAMPS[name]))
def vr(b, n=1): return "v%d" % b if n == 1 else "v[%d:%d]" % (b, b + n - 1)
def mfma(d, A, B, zero=False): a("v_mfma_f32_32x32x16_bf16 %s, %s, %s, %s" % (d, A, B, "0" if zero else d))
def srd(reg, lo, hi, size):
    n = int(reg[2:].split(":")[0])
    a("s_mov_b32 s%d, %s\ns_mov_b32 s%d, %s\ns_mov_b32 s%d, %d\ns_mov_b32 s%d, 0x20000" % (n, lo, n + 1, hi, n + 2, size, n + 3))
def swap23(dst, src, t):
    a("v_and_b32 %s, 0x13, %s" % (dst, src))
    a("v_and_b32 %s, 4, %s" % (t, src))
    a("v_lshl_or_b32 %s, %s, 1, %s" % (dst, t, dst))
    a("v_lshrrev_b32 %s, 1, %s" % (t, src))
    a("v_and_or_b32 %s, %s, 4, %s" % (dst, t, dst))
def lane_select(dst, items, t):
    a("v_mov_b32 %s, %s" % (dst, items[0][1]))
    for lo, s in items[1:]:
        a("v_cmp_le_u32 vcc, %d, v1\nv_mov_b32 %s, %s\ns_nop 0\nv_cndmask_b32 %s, %s, %s, vcc" % (lo, t, s, dst, dst, t))
def poll(vdata, n, vaddr, sleep=0):
    top, done = a.newlabel("poll"), a.newlabel("polled")
    a.label(top)
    a("buffer_load_dword%s %s, %s, %s, 0 offen sc1" % ("x4" if n == 4 else "", vr(vdata, n), vaddr, WS))
    a("s_waitcnt vmcnt(0)")
    a.vmq = []
    a("v_cmp_ne_u32 vcc, %s, %s" % (sTAG, vr(vdata)))
    for k in range(1, n):
        a("v_cmp_ne_u32 s[94:95], %s, %s\ns_or_b64 vcc, vcc, s[94:95]" % (sTAG, vr(vdata + k)))
    a("s_cmp_eq_u64 vcc, 0\ns_cbranch_scc1 %s" % done)
    if sleep: a("s_sleep %d" % sleep)
    a("s_sub_u32 %s, %s, 1\ns_cbranch_scc0 %s\ns_mov_b32 %s, 0" % (sCNT, sCNT, top, sCNT))
    a.label(done)
def flag_store(soff, base, t0="v2", t1="v3"):
    a("s_add_u32 s73, %s, %d\nv_mov_b32 %s, %d\nv_mov_b32 %s, s73\nv_cndmask_b32 %s, %s, %s, %s" % (soff, base, t0, OOB, t1, vFL, t0, t1, sMZ))
    a.vm("buffer_store_dword %s, %s, %s, 0 offen sc1" % (vTAG, vFL, WS), "flag")
def arrive(c, rtn=False, val=None):
    a("s_mov_b64 exec, 1")
    if rtn: a("ds_add_rtn_u32 v2, %s, %s offset:%d" % (vRSV, val or vONE, 4 * c))
    else: a.ds("ds_add_u32 %s, %s offset:%d" % (vRSV, val or vONE, 4 * c))
    a("s_mov_b64 exec, -1")
    if rtn:
        a("s_waitcnt lgkmcnt(0)\nv_readfirstlane_b32 s83, v2"); a.lgq = []
def spin(c, target, sleep=1, mask=None):
    top, done = a.newlabel("spin"), a.newlabel("spun")
    a.label(top)
    a("ds_read_b32 v2, %s offset:%d\ns_waitcnt lgkmcnt(0)\nv_readfirstlane_b32 s83, v2" % (vRSV, 4 * c)); a.lgq = []
    if mask: a("s_and_b32 s94, s83, %d\ns_cmp_ge_u32 s94, %s" % (mask, target))
    else: a("s_cmp_ge_u32 s83, %s" % target)
    a("s_cbranch_scc1 %s" % done)
    if sleep: a("s_sleep %d" % sleep)
    a("s_sub_u32 %s, %s, 1\ns_cbranch_scc0 %s\ns_mov_b32 %s, 0" % (sCNT, sCNT, top, sCNT))
    a.label(done)
def publish(c, soff, base):
    skip = a.newlabel("nopub")
    arrive(c, True)
    a("s_cmp_lg_u32 s83, 3\ns_cbranch_scc1 %s" % skip)
    flag_store(soff, base)
    a.label(skip)
def group_poll(phase, delay=0, sleep=4):
    oth, done = a.newlabel("rel"), a.newlabel("reld")
    a("s_cmp_lg_u32 s3, 0\ns_cbranch_scc1 %s" % oth)
    if delay: a("s_sleep %d" % delay)
    poll(4, 1, vPOLL, sleep)
    arrive(cREL)
    a("s_branch %s" % done)
    a.label(oth)
    a("s_waitcnt vmcnt(0)")
    spin(cREL, phase, 3)
    a.label(done)
    a.vmq = []; a.lgq = []
def pace():
    if PACE and len(a.vmq) > PACE:
        a("s_waitcnt vmcnt(%d)" % PACE); a.vmq = a.vmq[-PACE:]
def get_tag():
    a("s_waitcnt lgkmcnt(0)"); a.lgq = []
    a("s_add_u32 %s, %s, 0x9e3779b1\nv_mov_b32 %s, %s" % (sTAG, sTAG, vTAG, sTAG))
def bcast_hi(dst, src, t):
    a("v_mov_b32 %s, %s\nv_mov_b32 %s, %s\ns_nop 1\nv_permlane32_swap_b32 %s, %s" % (t, src, dst, src, t, dst))
def tr_addr(dst, perm, t0, t1, t2):
    a("v_and_b32 %s, 3, v1" % t0)
    if perm: a("v_and_b32 %s, 1, %s\nv_lshrrev_b32 %s, 1, %s\nv_lshl_or_b32 %s, %s, 1, %s" % (t1, t0, t0, t0, t0, t1, t0))
    a("v_bfe_u32 %s, v1, 4, 1\nv_lshl_or_b32 %s, %s, 2, %s" % (t1, t0, t1, t0))
    a("v_bfe_u32 %s, v1, 2, 2\nv_lshrrev_b32 %s, 5, v1\nv_lshl_add_u32 %s, %s, 3, %s" % (t1, t2, t1, t2, t1))
    a("v_lshlrev_b32 %s, 7, %s\nv_lshl_add_u32 %s, %s, 3, %s" % (t1, t1, t1, t0, t1))
    a("v_bfe_u32 %s, v1, 3, 1\nv_lshl_or_b32 %s, %s, 6, %s" % (t0, dst, t0, t1))
def x_addr(base, T, srow, t):
    a("v_and_b32 %s, 31, v1" % t[0])
    if T: a("v_mov_b32 %s, %s" % (t[1], t[0]))
    else: swap23(t[1], t[0], t[2])
    a("v_lshrrev_b32 %s, 5, v1\nv_lshrrev_b32 %s, 1, %s\nv_and_b32 %s, 7, %s" % (t[2], t[3], t[1], t[3], t[3]))
    a("v_lshlrev_b32 %s, 7, %s\nv_add_u32 %s, %s, %s" % (t[1], t[1], t[1], srow, t[1]))
    for k in range(4):
        a("v_add_u32 %s, %d, %s\nv_xor_b32 %s, %s, %s\nv_lshl_add_u32 v%d, %s, 4, %s" % (t[0], 2 * k, t[2], t[0], t[0], t[3], base + k, t[0], t[1]))
        a("v_add_u32 v%d, 65536, v%d" % (base + 4 + k, base + k))
def n_addr(dst, sbase, vf, isV, t):
    a("s_mov_b32 s78, 2341")
    a("v_mul_lo_u32 %s, s78, %s\nv_lshrrev_b32 %s, 16, %s" % (t[0], vf, t[0], t[0]))
    a("v_mul_u32_u24 %s, 28, %s\nv_sub_u32 %s, %s, %s" % (t[1], t[0], t[1], vf, t[1]))
    a("v_and_b32 %s, 1, %s\nv_lshlrev_b32 %s, 2, %s" % (t[2], t[0], t[2], t[2]))
    if isV: a("v_sub_u32 %s, %s, %s\nv_add_u32 %s, 28, %s\nv_min_u32 %s, %s, %s" % (t[1], t[1], t[2], t[3], t[1], t[1], t[1], t[3]))
    else: a("v_add_u32 %s, %s, %s" % (t[1], t[1], t[2]))
    swap23(t[3], t[1], t[2])
    a("v_lshlrev_b32 %s, 17, %s\nv_lshl_add_u32 %s, %s, 4, %s\nv_lshrrev_b32 %s, 5, v1\nv_lshl_add_u32 %s, %s, 9, %s\nv_add_u32 %s, %s, %s" % (t[0], t[0], t[0], t[3], t[0], t[1], t[0], t[1], t[0], dst, sbase, t[0]))
def o_addr(b, vL16, t0, t1):
    a("s_lshl_b32 s73, %s, 2\ns_add_u32 s73, s73, s3\ns_mul_i32 s73, s73, %d\ns_add_u32 s73, s73, %d" % (sQB, O_TILE, O_OFF))
    a("s_add_u32 s74, %s, %s\ns_lshl_b32 s74, s74, 9\ns_add_u32 s74, s74, s73\nv_add_u32 v%d, s74, %s" % (sU0, sODD, b, vL16))
    a("v_cmp_gt_u32 vcc, 32, v1\nv_mov_b32 %s, %d\nv_add_u32 %s, 1024, v%d\nv_cndmask_b32 v%d, %s, %s, vcc" % (t0, OOB, t1, b, b + 1, t0, t1))
    a("s_cmp_eq_u32 %s, 0\ns_cselect_b32 s74, %d, 8\ns_lshl_b32 s75, %s, 9\ns_add_u32 s74, s74, s75\ns_add_u32 s74, s74, s73\ns_sub_u32 s74, s74, 512" % (sODD, 3 * 512, sU0))
    a("v_add_u32 %s, s74, %s\nv_cndmask_b32 v%d, %s, %s, vcc" % (t1, vL16, b + 2, t1, t0))
def store_o(c, b, half, tag):
    a("s_mov_b32 s73, %d" % (half * 56 * 512))
    a.vm("buffer_store_dwordx4 %s, v%d, %s, s73 offen sc1" % (vr(c, 4), b, WS), tag)
    a.vm("buffer_store_dwordx4 %s, v%d, %s, s73 offen sc1" % (vr(c + 4, 4), b + 1, WS), tag)
    a.vm("buffer_store_dwordx2 %s, v%d, %s, s73 offen sc1" % (vr(c + 4, 2), b + 2, WS), tag)
def load_g(dst, t):
    a("s_lshl_b32 s73, %s, 2\ns_add_u32 s73, s73, s3\ns_lshl_b32 s73, s73, 7\ns_add_u32 s73, s73, %d\nv_and_b32 %s, 31, v1\nv_lshlrev_b32 %s, 2, %s" % (sQB, G_OFF, t, t, t))
    a.vm("buffer_load_dword %s, %s, %s, s73 offen sc1" % (dst, t, WS), "g")

a("s_cmp_ge_u32 s2, 256\ns_cbranch_scc1 L_end")
a("s_load_dwordx16 s[40:55], s[0:1], 0\ns_load_dwordx4 s[56:59], s[0:1], 64")
if SPINTO or ENC >= 0: a("s_memrealtime s[98:99]")
if STAMP: a("v_mov_b32 %s, 0" % vSTAMP)
FILL = -1
stamp("entry")
pX, pWA, pWoA, pWB, pWoB, pG, pOut, pWs = [("s%d" % i, "s%d" % (i + 1)) for i in (40, 42, 44, 48, 50, 52, 54, 58)]
WBYTES = 448 * 2688
SLOT = [0, 1, 2, 3, 0, 1, 2]
vL16 = "v0"
if PREF == 1:
    a("""
v_lshrrev_b32 v2, 6, v0
v_and_b32 v1, 63, v0
v_lshl_add_u32 v3, s2, 3, v2
v_mad_u32_u24 v4, v3, 7, v1
v_mad_u32_u24 v5, v3, 5, v1
v_lshlrev_b32 v4, 7, v4
v_min_u32 v5, %d, v5
v_lshlrev_b32 v5, 7, v5
s_mov_b64 exec, 0x7f
s_waitcnt lgkmcnt(0)
global_load_dword v18, v4, s[40:41]
s_mov_b64 exec, 0x1f
global_load_dword v18, v5, s[42:43]
global_load_dword v18, v5, s[48:49]
s_mov_b64 exec, -1
""" % (448 * 21 - 1))
stamp("pf_issued")
a("s_getpc_b64 s[36:37]")
a.label("L_pc")
a("""
s_lshr_b32 s74, s2, 3
v_lshrrev_b32 v2, 6, v0
v_and_b32 v1, 63, v0
v_readfirstlane_b32 s83, v2
v_lshlrev_b32 v2, 3, v2
v_and_or_b32 v2, v1, 7, v2
s_and_b32 s75, s74, 7
v_lshl_add_u32 v2, s75, 6, v2
v_lshlrev_b32 v2, 7, v2
s_mov_b32 s75, L_codeend-L_pc-4
v_min_u32 v2, s75, v2
s_mov_b64 exec, 0xff
global_load_dword v18, v2, s[36:37]
s_mov_b64 exec, -1
v_lshlrev_b32 v0, 4, v1
s_and_b32 s73, s2, 7
s_and_b32 s3, s83, 3
s_and_b32 s75, s73, 1
s_lshl_b32 s75, s75, 3
s_and_b32 s76, s74, 7
s_add_u32 %s, s75, s76
s_lshr_b32 s75, s73, 1
s_lshl_b32 s75, s75, 2
s_lshr_b32 s76, s74, 3
s_add_u32 %s, s75, s76
""" % (sRB, sJ))
def w_srd(reg, sc):
    n = int(reg[2:].split(":")[0])
    a("""
s_lshl_b32 s75, %s, 1
s_add_u32 s75, s75, %s
s_sub_u32 s76, s75, 7
s_cmp_lt_u32 s75, 21
s_cselect_b32 s75, s75, s76
s_cselect_b32 s%d, %s, %s
s_cselect_b32 s%d, %s, %s
s_min_u32 s75, s75, 20
s_lshl_b32 s75, s75, 7
s_add_u32 s%d, s%d, s75
s_addc_u32 s%d, s%d, 0
s_sub_u32 s%d, %d, s75
s_mov_b32 s%d, 0x20000
""" % (sJ, sc, n, pWA[0], pWB[0], n + 1, pWA[1], pWB[1], n, n, n + 1, n + 1, n + 2, WBYTES, n + 3))
def w2_srd():
    a("s_lshl_b32 s75, %s, 7\ns_add_u32 s16, %s, s75\ns_addc_u32 s17, %s, 0\ns_sub_u32 s18, %d, s75\ns_mov_b32 s19, 0x20000" % (sJ, pWB[0], pWB[1], WBYTES))
def roles():
    a("s_and_b32 s73, s2, 7\ns_lshr_b32 s74, s2, 3")
    a("""
s_and_b32 %s, s74, 1
s_lshl_b32 s75, s73, 1
s_add_u32 %s, s75, %s
s_lshr_b32 %s, s74, 1
s_mul_i32 s75, %s, 7
s_lshr_b32 %s, s75, 1
s_mul_i32 s75, s74, 37
s_lshr_b32 s75, s75, 8
s_mul_i32 s76, s75, 7
s_sub_u32 %s, s74, s76
s_lshl_b32 s76, s73, 2
s_add_u32 %s, s76, s75
s_cmp_lt_u32 s74, 28
s_cselect_b32 %s, 1, 0
s_cselect_b32 %s, %s, 0
s_mul_i32 s75, %s, 28
s_lshr_b32 %s, s75, 6
s_add_u32 s75, s75, 27
s_lshr_b32 %s, s75, 6
s_mov_b32 %s, %d
s_mov_b32 %s, 0
""" % (sODD, sH, sODD, sQB, sH, sU0, sCC, sRB2, sP3, sRB2, sRB2, sH, sC0, sC1, sCNT, SPIN, sFB))
    a("s_lshl_b32 s75, %s, 4\ns_add_u32 s75, s75, %s\ns_lshl_b32 %s, s75, 7" % (sJ, sRB, sF12))
    a("s_lshl_b32 s75, %s, 4\ns_add_u32 s75, s75, %s\ns_lshl_b32 %s, s75, 7" % (sH, sQB, sF345))
    a("v_cmp_eq_u32 %s, 0, v1\nv_mov_b32 %s, 0\nv_mov_b32 %s, %d\nv_mov_b32 %s, 1" % (sMZ, vZERO, vRSV, RSV, vONE))
def epoch_load(): a("s_mov_b32 s73, %d\ns_load_dword %s, s[58:59], s73" % (EPOCH_OFF, sTAG))
a("s_lshl_b32 %s, s3, 12\ns_lshl_b32 %s, s3, 11" % (sMX, sMWc))
a("v_lshrrev_b32 v10, 3, v1\nv_and_b32 v11, 7, v1\nv_lshrrev_b32 v12, 4, v1")
a("s_lshl_b32 s75, %s, 7\ns_lshl_b32 s76, s3, 5\ns_add_u32 s75, s75, s76\ns_mul_i32 s75, s75, 896" % sRB)
a("v_mul_u32_u24 v13, 896, v10\nv_add_u32 v14, s75, v13")
for i in range(4):
    a("v_add_u32 v2, %d, v12\nv_and_b32 v2, 7, v2\nv_xor_b32 v2, v2, v11\nv_lshl_add_u32 v%d, v2, 4, v14" % (4 * i, 3 + i))
    if i: a("v_add_u32 v%d, %d, v%d" % (3 + i, i * (8 * 896 - 1024), 3 + i))
a("v_and_b32 v9, 1, v12\nv_lshlrev_b32 v9, 2, v9\nv_xor_b32 v9, v9, v11")
a("s_mul_i32 s76, s3, %d\nv_mul_u32_u24 v14, 2688, v10\nv_add_u32 v14, s76, v14\nv_lshl_add_u32 v7, v9, 4, v14\nv_add_u32 v8, %d, v7" % (16 * 2688, 8 * 2688 - 1024))
a("s_waitcnt lgkmcnt(0)")
stamp("kernarg")
SKEW = opt("skew", -1)
if SKEW >= 0:
    a("s_cmp_lg_u32 s83, 0\ns_cbranch_scc1 L_sk1\ns_not_b32 s75, s98\nv_mov_b32 v2, s75\nv_mov_b32 v14, 0\ns_mov_b64 exec, 1\nglobal_atomic_umax v14, v2, s[56:57] sc1\ns_mov_b64 exec, -1")
    a.label("L_sk1")
a("s_cmp_lt_u32 s83, 4\ns_cbranch_scc1 L_main")

a.vmq = []; a.lgq = []
srd(X, pX[0], pX[1], 2048 * 896)
a("s_cmp_ge_u32 %s, 14\ns_cbranch_scc1 L_h_gate" % sJ)
if opt("pfwait", 0): a("s_waitcnt vmcnt(0)")
if HDELAY: a("s_sleep %d" % HDELAY)
stamp("h_go")
def other_setup():
    if HPRIO: a("s_setprio %d" % HPRIO)
    epoch_load()
    roles()
    a("s_lshl_b32 s77, %s, 7\nv_add_u32 v13, s77, v13\nv_lshl_add_u32 v26, v9, 4, v13" % sCC)
    w2_srd()
    srd(WS, pWs[0], pWs[1], WS_SIZE)
    srd(OUT, pOut[0], pOut[1], 2048 * 896)
    srd(WOA, pWoA[0], pWoA[1], 448 * 896)
    srd(WOB, pWoB[0], pWoB[1], 448 * 896)
def dma_slab(s):
    slot = SLOT[s]
    a("s_add_u32 m0, %s, %d\ns_mov_b32 s73, %d" % (sMX, slot * 32768, s * 128))
    for i in range(4): a.vm("buffer_load_dwordx4 v%d, %s, s73 offen offset:%d %s lds" % (3 + i, X, 1024 * i, NTX), "slab%d" % s)
    for c, reg in ((0, W0), (1, W1)):
        if s == 0: w_srd(reg, str(c))
        a("s_add_u32 m0, %s, %d\ns_mov_b32 s73, %d" % (sMWc, slot * 32768 + 16384 + c * 8192, s * 64 * 2688))
        for i in range(2): a.vm("buffer_load_dwordx4 v%d, %s, s73 offen offset:%d %s lds" % (7 + i, reg, 1024 * i, NTW), "slab%d" % s)
def dma_w2(s2):
    a("s_add_u32 m0, %s, %d\ns_mov_b32 s73, %d" % (sMWc, W2B + s2 * 8192, s2 * 64 * 2688))
    for i in range(2): a.vm("buffer_load_dwordx4 v%d, %s, s73 offen offset:%d lds" % (7 + i, W2, 1024 * i), "w2")
FIRST = min(AHEAD, opt("first", 2))
for s in range(FIRST): dma_slab(s)
stamp("h_issued")
other_setup()
vmq0 = list(a.vmq)
a("s_cmp_ge_u32 %s, 7\ns_cbranch_scc1 L_h_N" % sJ)
def Xh(g): return vr(144 + 4 * g, 4)
def acc2(ct): return 64 + 16 * ct
def Wh(g, ct, e=None):
    b = 32 + 8 * (g & 3) + 4 * ct
    return vr(b, 4) if e is None else vr(b + 2 * e, 2)
def helper_p1(T):
    a.vmq = list(vmq0); a.lgq = []
    tmp = ["v10", "v11", "v12", "v13"]
    x_addr(96, T, sMX, tmp)
    tr_addr("v13", T, "v10", "v11", "v12")
    a("v_add_u32 v108, %d, v13\nv_xor_b32 v109, 64, v108" % W2B)
    a("s_lshl_b32 s75, %s, 2\ns_add_u32 s75, s75, s3" % sRB)
    if T:
        a("s_mul_i32 s77, s75, %d\ns_add_u32 s78, %s, 14\ns_lshl_b32 s78, s78, 12\ns_add_u32 s78, s78, s77\nv_add_u32 v110, s78, %s\nv_add_u32 v111, 2048, v110" % (T_TILE, sJ, vL16))
    else:
        a("s_lshl_b32 s75, s75, 11\ns_add_u32 s77, s75, %d" % (N_OFF + 2 * N_KIND))
        for ct in range(2):
            a("s_sub_u32 s73, %s, 7\ns_lshl_b32 s73, s73, 6\ns_add_u32 s73, s73, %d\nv_and_b32 v14, 31, v1\nv_add_u32 v14, s73, v14" % (sJ, 32 * ct))
            n_addr("v%d" % (110 + ct), "s77", "v14", False, tmp)
    for s in range(7):
        a.vmwait("slab%d" % s)
        if s: a.dswait_all()
        stamp("h_s%d" % s)
        a("s_barrier")
        slot = SLOT[s]; hi, lo = slot >> 1, (slot & 1) * 32768
        for t in range(4): a.ds("ds_read_b128 %s, v%d offset:%d" % (Xh(4 * s + t), 96 + 4 * hi + t, lo))
        if s == 0:
            for k in range(FIRST, AHEAD): dma_slab(k)
        k = s + AHEAD
        if k < 7: dma_slab(k)
        if s == 4 or (s == 5 and False): pass
        if s == 7 - AHEAD:
            for k2 in range(4): dma_w2(k2)
        if s == 8 - AHEAD:
            for k2 in range(4, 7): dma_w2(k2)
    a.vmwait("w2")
    get_tag()
    arrive(cW2)
    spin(cW2, 4, 0)
    stamp("h_r2_start")
    def reads(g):
        for ct in range(2):
            for e in range(2):
                a.ds("ds_read_b64_tr_b16 %s, v%d offset:%d" % (Wh(g, ct, e), 108 + ct, (g >> 2) * 8192 + (g & 3) * 2048 + e * 512), g)
    reads(0); reads(1)
    for g in range(28):
        a.dswait(g)
        for ct in range(2):
            if T: mfma(vr(acc2(ct), 16), Wh(g, ct), Xh(g), g == 0)
            else: mfma(vr(acc2(ct), 16), Xh(g), Wh(g, ct), g == 0)
            if ct == 0 and g < 26: reads(g + 2)
            if ct == 0 and g == 27: arrive(cH2)
    stamp("h_r2_end")
helper_p1(True)
a("s_branch L_h_phi")
a.label("L_h_N")
helper_p1(False)
a.label("L_h_phi")
a.vmq = []; a.lgq = []
a("s_mov_b32 s84, 0x%x\ns_mov_b32 s85, s84\ns_mov_b32 s94, 0x%x\ns_mov_b32 s95, s94" % (f32(LOG2E), f32(1e-6)))
a.nop(8)
for ct in range(2):
    b = acc2(ct)
    for q in range(8): a("v_pk_mul_f32 %s, %s, %s" % (vr(112 + 2 * q, 2), vr(b + 2 * q, 2), sSCL))
    for q in range(16): a("v_exp_f32_e64 v%d, v%d clamp" % (112 + q, 112 + q))
    for q in range(16): a("v_max_f32 v%d, 0, v%d" % (b + q, b + q))
    for q in range(8): a("v_pk_add_f32 %s, %s, %s" % (vr(b + 2 * q, 2), vr(b + 2 * q, 2), vr(112 + 2 * q, 2)))
    for q in range(8): a("v_pk_add_f32 %s, %s, s[94:95]" % (vr(b + 2 * q, 2), vr(b + 2 * q, 2)))
    for q in range(8): a("v_cvt_pk_bf16_f32 v%d, v%d, v%d" % (32 + 8 * ct + q, b + 2 * q, b + 2 * q + 1))
stamp("h_phi")
a("s_branch L_h_join")
a.label("L_h_gate")
other_setup()
a("v_mov_b32 v110, %d\nv_mov_b32 v111, %d" % (OOB, OOB))
get_tag()
a("s_barrier")
arrive(cH2)
a.label("L_h_join")
a.vmq = ["st2"]; a.lgq = []
vB1a, vB1b, vSL, vPQ, vGh, vO, vOUT, vWB, vWA = "v25", "v24", "v23", "v22", "v18", "v15", "v14", 10, 12
def dma_wo(half, reg, first, per, paced=True):
    a("s_mul_i32 s75, s3, %d\ns_mul_i32 s76, s3, %d" % (per * 1024, per * 8 * 896))
    for i in range(per):
        a("s_add_u32 m0, s75, %d\ns_add_u32 s74, s76, %d" % (half * 57344 + (first + i) * 1024, (first + i) * 8 * 896))
        a.vm("buffer_load_dwordx4 v26, %s, s74 offen lds" % reg, "wo")
        if paced: pace()
a("""
s_add_u32 s73, %s, 23
s_add_u32 s74, %s, 23
s_add_u32 s75, %s, 16
s_add_u32 s76, %s, 16
s_add_u32 s77, %s, 21
s_lshr_b32 s77, s77, 1
s_add_u32 s78, %s, 21
s_lshr_b32 s78, s78, 1
""" % (sC0, sC1, sC0, sC1, sC0, sC1))
lane_select("v2", [(0, "s73"), (1, "s74"), (2, "s75"), (3, "s76"), (4, "s77"), (5, "s78"), (6, "14"), (7, "15")], "v3")
a("s_lshl_b32 s73, %s, 7\ns_add_u32 s73, s73, %d\nv_lshlrev_b32 v2, 11, v2\nv_add_u32 %s, s73, v2" % (sQB, F1, vPOLL))
a("s_lshl_b32 s73, %s, 17\ns_lshl_b32 s74, %s, 13\ns_add_u32 s73, s73, s74\ns_add_u32 s73, s73, %d" % (sH, sQB, N_OFF + N_KIND))
a("v_lshrrev_b32 v2, 4, v1\nv_and_b32 v3, 15, v1\nv_lshlrev_b32 v3, 4, v3\nv_lshl_add_u32 v2, v2, 9, v3")
a("s_and_b32 s74, s3, 1\ns_lshl_b32 s74, s74, 8\ns_add_u32 s74, s74, s73\nv_add_u32 %s, s74, v2" % vB1b)
a("s_lshr_b32 s74, s3, 1\ns_lshl_b32 s74, s74, 8\ns_add_u32 s74, s74, s73\ns_add_u32 s74, s74, %d\nv_add_u32 %s, s74, v2" % (N_KIND, vB1a))
a("s_lshl_b32 s73, %s, 15\ns_lshl_b32 s74, s3, 13\ns_add_u32 s73, s73, s74\ns_add_u32 s73, s73, %d" % (sH, SLAB_OFF))
a("v_and_b32 v2, 15, v1\nv_lshlrev_b32 v2, 5, v2\nv_lshrrev_b32 v3, 4, v1\nv_lshl_add_u32 v4, v3, 3, v2\ns_lshl_b32 s74, %s, 9\ns_add_u32 s74, s74, s73\nv_add_u32 v141, s74, v4" % sQB)
a("v_and_b32 v4, 1, v3\nv_lshl_add_u32 v2, v4, 4, v2\nv_lshrrev_b32 v3, 1, v3\nv_lshl_add_u32 v2, v3, 9, v2\nv_add_u32 %s, s73, v2" % vSL)
a("v_and_b32 v2, 15, v1\nv_lshlrev_b32 v4, 3, v4\nv_sub_u32 v2, v2, v4\nv_and_b32 v3, 1, v2\nv_lshlrev_b32 v3, 4, v3\nv_mov_b32 v4, 0x3f80\nv_lshlrev_b32 v3, v3, v4\nv_lshrrev_b32 v2, 1, v2")
for k in range(4): a("v_cmp_eq_u32 vcc, %d, v2\ns_nop 1\nv_cndmask_b32 v%d, %s, v3, vcc" % (k, 136 + k, vZERO))
a("s_lshl_b32 s73, %s, 2\ns_add_u32 s73, s73, s3\ns_mul_i32 s73, s73, %d\ns_lshl_b32 s74, %s, 9\ns_add_u32 s73, s73, s74\ns_add_u32 s73, s73, %d\nv_add_u32 %s, s73, %s" % (sQB, T_TILE, sU0, T_OFF + 14 * 4096, vPQ, vL16))
o_addr(19, vL16, "v2", "v3")
a("s_lshl_b32 s73, %s, 11\ns_add_u32 s73, s73, %d\nv_and_b32 v2, 15, v1\nv_lshlrev_b32 v3, 7, v2\nv_add_u32 v9, s73, v3" % (sH, F3))
a("s_lshr_b32 s73, %s, 1\ns_lshl_b32 s73, s73, 7\ns_add_u32 s73, s73, %d\nv_lshlrev_b32 v2, 11, v2\nv_add_u32 v8, s73, v2" % (sRB2, F4))
a("s_lshl_b32 s73, %s, 1\ns_and_b32 s74, s3, 1\ns_add_u32 s73, s73, s74\ns_lshr_b32 s74, s3, 1" % sRB2)
a("s_mul_i32 s75, s73, %d\ns_mul_i32 s76, s74, 14336\ns_add_u32 s75, s75, s76\ns_add_u32 s75, s75, %d\nv_add_u32 %s, s75, %s" % (O_TILE, O_OFF, vO, vL16))
a("s_mul_i32 s75, s73, %d\ns_lshl_b32 s76, %s, 7\ns_add_u32 s75, s75, s76\ns_lshl_b32 s76, s74, 6\ns_add_u32 s75, s75, s76" % (32 * 896, sCC))
a("v_and_b32 v2, 31, v1\nv_mul_u32_u24 v2, 896, v2\nv_lshrrev_b32 v3, 5, v1\nv_lshl_add_u32 v2, v3, 4, v2\nv_add_u32 %s, s75, v2" % vOUT)
tr_addr("v4", True, "v2", "v3", "v5")
a("v_xor_b32 v4, s76, v4\ns_mul_i32 s75, s74, 28672\nv_add_u32 v%d, s75, v4\nv_xor_b32 v%d, 64, v%d" % (vWB, vWB + 1, vWB))
a("v_add_u32 v%d, 57344, v%d\nv_add_u32 v%d, 57344, v%d" % (vWA, vWB, vWA + 1, vWB + 1))
a("s_lshl_b32 s73, s74, 2\ns_cmp_eq_u32 %s, 0\ns_cselect_b32 s75, 7, 0\ns_sub_u32 s75, s75, s73" % sODD)
a("v_lshrrev_b32 v2, 4, v1\nv_cmp_eq_u32 %s, s75, v2" % sMA)
a("s_lshl_b32 s73, s73, 8\ns_and_b32 s75, s3, 1\ns_lshl_b32 s75, s75, 8\ns_add_u32 s73, s73, s75\ns_add_u32 s73, s73, %d" % KVX)
a("v_and_b32 v3, 15, v1\nv_lshlrev_b32 v3, 4, v3\nv_and_b32 v4, 1, v2\nv_lshl_add_u32 v3, v4, 9, v3\nv_lshrrev_b32 v4, 1, v2\nv_lshl_add_u32 v3, v4, 3, v3\nv_add_u32 v7, s73, v3")
a("v_add_u32 v6, %d, %s" % (KVX, vL16))
if HOLD: spin(cGO, 4, 2)
for ct in range(2):
    for m in range(2): a.vm("buffer_store_dwordx4 %s, v%d, %s, 0 offen offset:%d sc1" % (vr(32 + 8 * ct + 4 * m, 4), 110 + ct, WS, 1024 * m), "st2")
a.vmwait_all()
publish(cF2, sF12, F2)
stamp("h_f2sent")
group_poll(1, opt("d2", 12))
stamp("h_f2seen")
for k in range(4):
    a("s_mov_b32 s73, %d" % (2048 * k))
    a.vm("buffer_load_dwordx4 %s, %s, %s, s73 offen sc1" % (vr(64 + 8 * k, 4), vB1a, WS), "b1"); pace()
    a.vm("buffer_load_dwordx4 %s, %s, %s, s73 offen sc1" % (vr(68 + 8 * k, 4), vB1b, WS), "b1"); pace()
a("v_mov_b32 %s, v9" % vPOLL)
a.vmwait_all()
for k in range(4):
    a("v_mfma_f32_16x16x32_bf16 v[96:99], %s, %s, %s" % (vr(64 + 8 * k, 4), vr(68 + 8 * k, 4), "v[96:99]" if k else "0"))
a.nop(8)
a("v_cvt_pk_bf16_f32 v96, v96, v97\nv_cvt_pk_bf16_f32 v97, v98, v99")
a("v_cndmask_b32 v96, v96, %s, %s\nv_cndmask_b32 v97, v97, %s, %s" % (vZERO, sMA, vZERO, sMA))
a.vm("buffer_store_dwordx2 v[96:97], v141, %s, 0 offen sc1" % WS, "slab")
for m in range(2): a.vm("buffer_load_dwordx4 %s, %s, %s, 0 offen offset:%d sc1" % (vr(56 + 4 * m, 4), vPQ, WS, 1024 * m), "pq")
load_g(vGh, "v2")
a.vmwait("slab")
publish(cF3, sF345, F3)
stamp("h_f3sent")
spin(cH2, 8)
dma_wo(0, WOB, 0, 14)
a.vmwait_all()
arrive(cWB)
stamp("h_wb_landed")
group_poll(2, opt("d3", 0))
stamp("h_f3seen")
for k in range(8):
    if k % 4 == 0: a("s_mov_b32 s73, %d" % (1024 * k))
    a.vm("buffer_load_dwordx4 %s, %s, %s, s73 offen offset:%d sc1" % (vr(72 + 4 * k, 4), vSL, WS, 1024 * (k % 4)), "b2"); pace()
a("v_mov_b32 %s, v8" % vPOLL)
a.vmwait_all()
for k in range(8):
    a("v_mfma_f32_16x16x32_bf16 v[64:67], v[136:139], %s, %s" % (vr(72 + 4 * k, 4), "v[64:67]" if k else "0"))
a.nop(8)
a("v_cvt_pk_bf16_f32 v4, v64, v65\nv_cvt_pk_bf16_f32 v5, v66, v67")
a("ds_write_b64 v7, v[4:5]")
arrive(cKV)
spin(cKV, 4, 1)
a("ds_read_b128 v[64:67], v6\nds_read_b128 v[68:71], v6 offset:1024\ns_waitcnt lgkmcnt(0)")
mfma("v[80:95]", "v[64:67]", "v[56:59]", True)
mfma("v[80:95]", "v[68:71]", "v[60:63]")
a("v_sub_f32 v4, 1.0, %s" % vGh)
a.nop(11)
bcast_hi("v2", "v92", "v3")
a("v_add_f32 v2, 0x%x, v2\nv_rcp_f32 v2, v2\ns_nop 0\nv_mul_f32 v2, v2, v4" % f32(1e-6))
for q in range(16): a("v_mul_f32 v%d, v2, v%d" % (80 + q, 80 + q))
for q in range(8): a("v_cvt_pk_bf16_f32 v%d, v%d, v%d" % (64 + q, 80 + 2 * q, 81 + 2 * q))
store_o(64, 19, 1, "ob")
a.vmwait_all()
publish(cF4, sF345, F4)
stamp("h_f4sent")
a("s_cmp_eq_u32 %s, 0\ns_cbranch_scc1 L_fin" % sP3)
dma_wo(1, WOA, 0, 12)
a.vmwait_all()
stamp("h_wa_landed")
group_poll(3, opt("d4", 0))
stamp("h_f4seen")
def Of(g): return vr(64 + 4 * g, 4)
def acc3(c): return 32 + 16 * c
def WBf(g, c, e=None):
    b = 120 + 8 * (g % 3) + 4 * c
    return vr(b, 4) if e is None else vr(b + 2 * e, 2)
def wb_reads(g):
    for c in range(2):
        for e in range(2): a.ds("ds_read_b64_tr_b16 %s, v%d offset:%d" % (WBf(g, c, e), vWB + c, g * 2048 + e * 512), g)
for g in range(14):
    if g % 4 == 0: a("s_mov_b32 s73, %d" % (28672 + g * 1024))
    a.vm("buffer_load_dwordx4 %s, %s, %s, s73 offen offset:%d sc1" % (Of(g), vO, WS, (g % 4) * 1024), ("ob", g))
    if opt("obpace", 0): pace()
a("v_add_u32 %s, %d, %s" % (vPOLL, F5 - F4, vPOLL))
stamp("h_ob_issued")
spin(cDONE, 4, 2)
dma_wo(1, WOA, 48, 2, False)
spin(cWB, 4, 1)
def w_reads(base, g):
    for c in range(2):
        for e in range(2): a.ds("ds_read_b64_tr_b16 %s, v%d offset:%d" % (WBf(g, c, e), base + c, g * 2048 + e * 512), (base, g))
w_reads(vWB, 0); w_reads(vWB, 1)
for g in range(14):
    a.vmwait(("ob", g)); a.dswait((vWB, g))
    mfma(vr(acc3(0), 16), WBf(g, 0), Of(g), g == 0)
    if g < 12: w_reads(vWB, g + 2)
    mfma(vr(acc3(1), 16), WBf(g, 1), Of(g), g == 0)
a.vmwait_all()
arrive(cWO)
stamp("h_p3b_done")
a("s_xor_b32 s73, s3, 2\ns_lshl_b32 s73, s73, 12\ns_add_u32 s73, s73, %d\nv_add_u32 v6, s73, %s\ns_lshl_b32 s73, s3, 12\ns_add_u32 s73, s73, %d\nv_add_u32 v7, s73, %s" % (FIN, vL16, FIN, vL16))
group_poll(4, P5DELAY, 3)
stamp("h_f5seen")
for g in range(14):
    if g % 4 == 0: a("s_mov_b32 s73, %d" % (g * 1024))
    a.vm("buffer_load_dwordx4 %s, %s, %s, s73 offen offset:%d sc1" % (Of(g), vO, WS, (g % 4) * 1024), g)
spin(cWO, 4, 0)
w_reads(vWA, 0); w_reads(vWA, 1)
for g in range(14):
    a.vmwait(g); a.dswait((vWA, g))
    if g == 0: stamp("h_oa0")
    mfma(vr(acc3(1), 16), WBf(g, 1), Of(g))
    if g < 12: w_reads(vWA, g + 2)
    mfma(vr(acc3(0), 16), WBf(g, 0), Of(g))
a.nop(11)
for i in range(4): a.ds("ds_write_b128 v6, %s offset:%d" % (vr(acc3(1) + 4 * i, 4), 1024 * i))
a.dswait_all()
a("s_barrier")
for i in range(4): a.ds("ds_read_b128 %s, v7 offset:%d" % (vr(64 + 4 * i, 4), 1024 * i), i)
for i in range(4):
    a.dswait(i)
    for q in range(2): a("v_pk_add_f32 %s, %s, %s" % (vr(32 + 4 * i + 2 * q, 2), vr(32 + 4 * i + 2 * q, 2), vr(64 + 4 * i + 2 * q, 2)))
for q in range(8): a("v_cvt_pk_bf16_f32 v%d, v%d, v%d" % (80 + q, 32 + 2 * q, 33 + 2 * q))
for m in range(2): a.vm("buffer_store_dwordx4 %s, %s, %s, 0 offen offset:%d" % (vr(80 + 4 * m, 4), vOUT, OUT, 32 * m))
a("s_or_b32 s73, s2, s3\ns_cmp_lg_u32 s73, 0\ns_cbranch_scc1 L_fin")
a("v_mov_b32 v2, %d\nv_mov_b32 v3, %d\nv_cndmask_b32 v2, v2, v3, %s" % (OOB, EPOCH_OFF, sMZ))
a.vm("buffer_store_dword %s, v2, %s, 0 offen sc1" % (vTAG, WS))
a("s_branch L_fin")
def Xm(buf, rtl): return vr(32 + 16 * buf + 4 * rtl, 4)
def Wm(buf, ct, e=None):
    b = 40 + 16 * buf + 4 * ct
    return vr(b, 4) if e is None else vr(b + 2 * e, 2)
def acc1(rtl, ct): return 64 + 32 * rtl + 16 * ct
def main_p1(T):
    a.vmq = []; a.lgq = []
    tmp = ["v2", "v3", "v4", "v5"]
    a("s_and_b32 s73, s3, 1\ns_lshr_b32 s74, s3, 1\ns_lshl_b32 s75, s73, 13")
    x_addr(128, T, "s75", tmp)
    tr_addr("v5", T, "v2", "v3", "v4")
    a("s_lshl_b32 s75, s74, 13\ns_add_u32 s75, s75, 16384\nv_add_u32 v140, s75, v5\nv_xor_b32 v141, 64, v140")
    for ct in range(2): a("v_add_u32 v%d, 65536, v%d" % (142 + ct, 140 + ct))
    a("s_lshl_b32 s75, %s, 2\ns_lshl_b32 s76, s73, 1\ns_add_u32 s75, s75, s76" % sRB)
    a("s_lshl_b32 s76, %s, 1\ns_add_u32 s76, s76, s74" % sJ)
    if T:
        a("s_mul_i32 s77, s75, %d\ns_lshl_b32 s78, s76, 12\ns_add_u32 s78, s78, s77\nv_add_u32 v146, s78, %s" % (T_TILE, vL16))
        a("s_cmp_lt_u32 s76, 7\ns_cselect_b32 s84, 0x%x, 1.0\ns_mov_b32 s85, s84\ns_mov_b32 %s, %d" % (f32(QSCALE), sRTL, T_TILE))
    else:
        a("s_lshl_b32 s75, s75, 11\ns_add_u32 s75, s75, %d" % N_OFF)
        a("s_sub_u32 s76, s76, 14\ns_sub_u32 s77, s76, 7\ns_cmp_lt_u32 s76, 7\ns_cselect_b32 s76, s76, s77\ns_cselect_b32 s77, 0, %d\ns_add_u32 s77, s77, s75" % N_KIND)
        for ct in range(2):
            a("s_lshl_b32 s73, s76, 6\ns_add_u32 s73, s73, %d\nv_and_b32 v6, 31, v1\nv_add_u32 v6, s73, v6" % (32 * ct))
            n_addr("v%d" % (146 + ct), "s77", "v6", True, tmp)
        a("s_lshl_b32 s73, s76, 6\ns_add_u32 s74, s73, 27\ns_mul_i32 s74, s74, 2341\ns_lshr_b32 s74, s74, 16\ns_add_u32 s73, s73, 64")
        a("v_lshrrev_b32 v2, 4, v1\nv_add_u32 v2, s74, v2\nv_mul_u32_u24 v3, 28, v2\nv_cmp_gt_u32 vcc, s73, v3")
        a("v_lshlrev_b32 v2, 17, v2\nv_bfe_u32 v3, v1, 2, 2\nv_lshl_add_u32 v2, v3, 9, v2\nv_and_b32 v3, 3, v1\nv_lshl_add_u32 v2, v3, 4, v2")
        a("v_add_u32 v2, s77, v2\nv_add_u32 v2, %d, v2\nv_mov_b32 v4, %d\nv_cndmask_b32 v148, v4, v2, vcc" % (28 * 16, OOB))
        a("v_cmp_eq_u32 vcc, 0, v3\nv_mov_b32 v4, 0x3f803f80\ns_nop 0\nv_cndmask_b32 v152, %s, v4, vcc" % vZERO)
        a("v_mov_b32 v153, v152\nv_mov_b32 v154, v152\nv_mov_b32 v155, v152")
    def mm(rtl, ct, g):
        if T: mfma(vr(acc1(rtl, ct), 16), Wm(g & 1, ct), Xm(g & 1, rtl), g == 0)
        else: mfma(vr(acc1(rtl, ct), 16), Xm(g & 1, rtl), Wm(g & 1, ct), g == 0)
    def reads(g):
        s, t = g >> 2, g & 3; slot = SLOT[s]; hi, lo = slot >> 1, (slot & 1) * 32768
        rx = [lambda rtl=rtl: a.ds("ds_read_b128 %s, v%d offset:%d" % (Xm(g & 1, rtl), 128 + 4 * hi + t, lo + rtl * 4096), g) for rtl in range(2)]
        rw = [lambda ct=ct, e=e: a.ds("ds_read_b64_tr_b16 %s, v%d offset:%d" % (Wm(g & 1, ct, e), 140 + 2 * hi + ct, lo + t * 2048 + e * 512), g) for ct in range(2) for e in range(2)]
        return [rx[0], rw[0], rw[1], rw[2], rw[3], rx[1]]
    get_tag()
    a("s_barrier")
    stamp("m_slab0")
    for r in reads(0): r()
    xpf(3)
    def XL(t, rtl): return vr(192 + 16 * t + 4 * rtl, 4)
    def WL(t, ct, e=None):
        b = 200 + 16 * t + 4 * ct
        return vr(b, 4) if e is None else vr(b + 2 * e, 2)
    def reads_last(t):
        slot = SLOT[6]; hi, lo = slot >> 1, (slot & 1) * 32768
        rx = [lambda rtl=rtl: a.ds("ds_read_b128 %s, v%d offset:%d" % (XL(t, rtl), 128 + 4 * hi + t, lo + rtl * 4096), ("x", rtl, t)) for rtl in range(2)]
        rw = [lambda ct=ct, e=e: a.ds("ds_read_b64_tr_b16 %s, v%d offset:%d" % (WL(t, ct, e), 140 + 2 * hi + ct, lo + t * 2048 + e * 512), ("w", ct, t)) for ct in range(2) for e in range(2)]
        return rx, rw
    RL = [reads_last(t) for t in range(4)]
    lastq = sum([[RL[t][0][0], RL[t][1][0], RL[t][1][1]] for t in range(4)], []) + sum([[RL[t][1][2], RL[t][1][3]] for t in range(4)], []) + [RL[t][0][1] for t in range(4)]
    for g in range(24):
        a.dswait(g)
        mm(0, 0, g)
        if (g & 3) == 0 and g: xpf(3 + (g >> 2))
        if (g & 3) == 3: a("s_barrier")
        if g == WOPF: prefetch_wo()
        nxt = reads(g + 1) if g < 23 else lastq[:9]
        h = len(nxt) // 2 if g < 23 else 3
        for r in nxt[:h]: r()
        mm(0, 1, g)
        for r in nxt[h:2 * h]: r()
        mm(1, 0, g)
        for r in nxt[2 * h:]: r()
        mm(1, 1, g)
    lastq = lastq[9:]
    def epi(rtl, ct):
        b = acc1(rtl, ct); o = 160 + 8 * (2 * rtl + ct); th = []
        for m in range(2):
            for q in range(4 * m, 4 * m + 4):
                if T:
                    th += [lambda k=k: a("v_mul_f32 v%d, s84, v%d" % (k, k)) for k in (b + 2 * q, b + 2 * q + 1)]
                th.append(lambda q=q: a("v_cvt_pk_bf16_f32 v%d, v%d, v%d" % (o + q, b + 2 * q, b + 2 * q + 1)))
            if T: th.append(lambda m=m: a.vm("buffer_store_dwordx4 %s, v146, %s, %s offen offset:%d sc1" % (vr(o + 4 * m, 4), WS, sRTL if rtl else "0", ct * 2048 + m * 1024)))
            else: th.append(lambda m=m: a.vm("buffer_store_dwordx4 %s, v%d, %s, 0 offen offset:%d sc1" % (vr(o + 4 * m, 4), 146 + ct, WS, rtl * 2048 + m * 1024)))
        return th
    pend = []
    tiles = [(0, 0), (0, 1), (1, 1), (1, 0)]
    for ti, (rtl, ct) in enumerate(tiles):
        for t in range(4):
            a.dswait(("x", rtl, t)); a.dswait(("w", ct, t))
            if T: mfma(vr(acc1(rtl, ct), 16), WL(t, ct), XL(t, rtl))
            else: mfma(vr(acc1(rtl, ct), 16), XL(t, rtl), WL(t, ct))
            for _ in range(4):
                if lastq: lastq.pop(0)()
            if ti == 2 and t == 3: arrive(cH2)
            if ti == 1 and t == 3: a.nop(1)
            if ti >= 2 or (ti == 1 and t == 3):
                for _ in range(6 if T else 3):
                    if pend: pend.pop(0)()
        pend += epi(rtl, ct)
    stamp("m_r1")
    n0 = len(pend) - len(epi(1, 0))
    for _ in range(n0): pend.pop(0)()
    a.nop(max(0, 12 - n0))
    while pend: pend.pop(0)()
    if not T:
        for rtl in range(2): a.vm("buffer_store_dwordx4 v[152:155], v148, %s, 0 offen offset:%d sc1" % (WS, rtl * 2048))
    stamp("m_stored")

a.label("L_main")
if PREF == 2:
    a("s_lshl_b32 s75, s2, 2\ns_add_u32 s75, s75, s3\ns_lshl_b32 s76, s75, 1\ns_mul_i32 s77, s75, 3\ns_sub_u32 s77, s77, 2")
    a("v_add_u32 v2, s76, v1\nv_mul_u32_u24 v2, 896, v2\nv_add_u32 v3, s77, v1\nv_min_u32 v3, 2687, v3\nv_mul_u32_u24 v4, 1561, v3\nv_lshrrev_b32 v4, 16, v4")
    a("v_mul_u32_u24 v5, 42, v4\nv_sub_u32 v5, v3, v5\nv_cmp_gt_u32 s[88:89], 21, v5\nv_subrev_u32 v6, 21, v5\nv_min_u32 v5, v5, v6\nv_mul_u32_u24 v4, 2688, v4\nv_lshl_add_u32 v4, v5, 7, v4")
    a("v_cmp_gt_u32 s[86:87], 2, v1\nv_mov_b32 v21, 0\nv_mov_b32 v7, 0\nv_cndmask_b32 v20, v4, v2, s[86:87]\nv_mov_b32 v2, %d\nv_mov_b32 v3, 128\nv_cndmask_b32 v6, v2, v3, s[86:87]" % (64 * 2688))
    for k in range(2):
        a("v_mov_b32 v2, s%d\nv_mov_b32 v14, s%d\nv_cndmask_b32 v2, v2, v14, s[88:89]\nv_mov_b32 v14, s%d\nv_cndmask_b32 v%d, v2, v14, s[86:87]" % (48 + k, 42 + k, 40 + k, 22 + k))
    a("v_lshl_add_u64 v[22:23], v[20:21], 0, v[22:23]")
    for k in range(7):
        a("s_mov_b64 exec, 0x1f\nglobal_load_dword v18, v[22:23], off\ns_mov_b64 exec, -1\nv_lshl_add_u64 v[22:23], v[6:7], 0, v[22:23]")
        if opt("pfgap", 4) and k < 6: a("s_sleep %d" % opt("pfgap", 4))
if MPRIO: a("s_setprio %d" % MPRIO)
epoch_load()
roles()
srd(WS, pWs[0], pWs[1], WS_SIZE)
a("v_lshlrev_b32 v2, 2, v1\nv_add_u32 v2, %d, v2\nds_write_b32 v2, %s" % (RSV, vZERO))
XPF = opt("xpf", 0)
if XPF:
    a("s_and_b32 s73, s2, 7\ns_lshr_b32 s74, s2, 3")
    a("s_and_b32 s75, s73, 1\ns_lshl_b32 s75, s75, 5\ns_add_u32 s75, s75, s74\ns_lshl_b32 s75, s75, 2\ns_add_u32 s75, s75, s3\ns_mul_i32 s75, s75, %d" % (8 * 896))
    a("s_and_b32 s76, s74, 3\ns_lshl_b32 s76, s76, 2\ns_add_u32 s76, s76, s3\ns_lshl_b32 s76, s76, 2\ns_sub_u32 s76, s76, 8")
    a("s_and_b32 s77, s74, 7\ns_lshl_b32 s77, s77, 2\ns_add_u32 s77, s77, s3\ns_lshl_b32 s77, s77, 1\ns_sub_u32 s77, s77, 12")
    a("v_cmp_gt_u32 s[86:87], 8, v1\nv_cmp_gt_u32 s[88:89], 12, v1\nv_mov_b32 v2, s77\nv_mov_b32 v3, s76\nv_cndmask_b32 v2, v2, v3, s[88:89]\nv_add_u32 v2, v2, v1\nv_mul_u32_u24 v2, 2688, v2")
    a("v_mul_u32_u24 v3, 896, v1\nv_add_u32 v3, s75, v3\nv_cndmask_b32 v4, v2, v3, s[86:87]\nv_mov_b32 v5, 0")
    a("v_mov_b32 v2, %d\nv_mov_b32 v3, 128\nv_cndmask_b32 v12, v2, v3, s[86:87]\nv_mov_b32 v13, 0\ns_bfe_u32 s78, s74, 0x10002" % (64 * 2688))
    w_srd(W0, "s78"); w2_srd()
    for k in range(2):
        a("v_mov_b32 v2, s%d\nv_mov_b32 v3, s%d\nv_cndmask_b32 v2, v2, v3, s[88:89]\nv_mov_b32 v3, s%d\nv_cndmask_b32 v%d, v2, v3, s[86:87]" % (16 + k, 8 + k, 40 + k, 14 + k))
    a("v_lshl_add_u64 v[14:15], v[4:5], 0, v[14:15]\nv_lshl_add_u64 v[14:15], v[12:13], 1, v[14:15]")
def xpf(k):
    if not XPF or k > 6: return
    a("s_mov_b64 exec, 0x3fff\nglobal_load_dword v18, v[14:15], off\ns_mov_b64 exec, -1")
    if k < 6: a("v_lshl_add_u64 v[14:15], v[12:13], 0, v[14:15]")
xpf(2)
a("s_lshl_b32 s75, s2, 2\ns_add_u32 s75, s75, s3\ns_lshl_b32 s75, s75, 2\nv_add_u32 v11, s75, v1\nv_min_u32 v11, %d, v11\nv_lshlrev_b32 v11, 7, v11" % (448 * 7 - 1))
def prefetch_wo():
    a("s_mov_b64 exec, 0xf\nglobal_load_dword v18, v11, s[44:45]\nglobal_load_dword v18, v11, s[50:51]\ns_mov_b64 exec, -1")
a("s_cmp_ge_u32 %s, 14\ns_cbranch_scc1 L_m_gate" % sJ)
a("s_cmp_ge_u32 %s, 7\ns_cbranch_scc1 L_m_N" % sJ)
main_p1(True)
a("s_branch L_m_join")
a.label("L_m_N")
main_p1(False)
a("s_branch L_m_join")
a.label("L_m_gate")
srd(X, pX[0], pX[1], 2048 * 896)
srd(GW, pG[0], pG[1], 896)
for k in range(3, 7): xpf(k)
a.vmq = []
a("s_lshl_b32 s75, %s, 7\ns_sub_u32 s76, %s, 14\ns_lshl_b32 s76, s76, 6\ns_add_u32 s75, s75, s76\ns_lshl_b32 s76, s3, 4\ns_add_u32 s75, s75, s76" % (sRB, sJ))
a("v_lshrrev_b32 v2, 3, v1\nv_add_u32 v2, s75, v2\nv_and_b32 v3, 7, v1\nv_lshlrev_b32 v3, 4, v3")
a("v_mul_u32_u24 v4, 896, v2\nv_add_u32 v4, v4, v3\nv_add_u32 v5, %d, v4" % (8 * 896))
for i in range(7):
    a.vm("buffer_load_dwordx4 %s, v3, %s, 0 offen offset:%d" % (vr(64 + 4 * i, 4), GW, 128 * i))
    a.vm("buffer_load_dwordx4 %s, v4, %s, 0 offen offset:%d" % (vr(96 + 4 * i, 4), X, 128 * i))
    a.vm("buffer_load_dwordx4 %s, v5, %s, 0 offen offset:%d" % (vr(128 + 4 * i, 4), X, 128 * i))
a("v_mov_b32 v6, 0\nv_mov_b32 v7, 0")
a("v_lshlrev_b32 v2, 2, v2\nv_add_u32 v2, %d, v2\nv_mov_b32 v8, %d\nv_cmp_eq_u32 vcc, 0, v3\ns_nop 1\nv_cndmask_b32 v9, v8, v2, vcc" % (G_OFF, OOB))
get_tag()
a("s_barrier")
arrive(cH2)
a.vmwait_all()
prefetch_wo()
for i in range(28):
    a("v_dot2_f32_bf16 v6, v%d, v%d, v6\nv_dot2_f32_bf16 v7, v%d, v%d, v7" % (64 + i, 96 + i, 64 + i, 128 + i))
a.nop(3)
for dpp in ("quad_perm:[1,0,3,2]", "quad_perm:[2,3,0,1]", "row_half_mirror"):
    a("v_add_f32_dpp v6, v6, v6 %s row_mask:0xf bank_mask:0xf\nv_add_f32_dpp v7, v7, v7 %s row_mask:0xf bank_mask:0xf" % (dpp, dpp))
    a.nop(2)
for r in (6, 7):
    a("v_mul_f32 v%d, 0x%x, v%d\nv_exp_f32 v%d, v%d\ns_nop 0\nv_add_f32 v%d, 1.0, v%d\nv_rcp_f32 v%d, v%d\ns_nop 0" % (r, f32(-LOG2E), r, r, r, r, r, r, r))
a.vm("buffer_store_dword v6, v9, %s, 0 offen sc1" % WS)
a.vm("buffer_store_dword v7, v9, %s, 0 offen offset:32 sc1" % WS)

a.label("L_m_join")
a.vmq = ["st"]; a.lgq = []
vK, vV, vQ, vG, vIDX = "v26", "v25", "v24", "v23", "v22"
OAD = 19
def Qf(tau, m): return 32 + 8 * tau + 4 * m
def KV(b, k): return vr(192 + 16 * b + 4 * k, 4)
def Oa(tau): return 128 + 16 * tau
def Sb(tau): return 64 + 16 * tau
a("""
s_add_u32 s73, %s, 7
s_lshr_b32 s73, s73, 1
s_add_u32 s74, %s, 7
s_lshr_b32 s74, s74, 1
s_add_u32 s75, %s, 14
s_lshr_b32 s75, s75, 1
s_add_u32 s76, %s, 14
s_lshr_b32 s76, s76, 1
s_lshr_b32 s77, %s, 1
s_lshr_b32 s78, %s, 1
s_lshr_b32 s83, s3, 1
s_add_u32 s83, s83, 14
""" % (sC0, sC1, sC0, sC1, sC0, sC1))
lane_select("v2", [(0, "s73"), (4, "s74"), (8, "s75"), (12, "s76"), (16, "s77"), (17, "s78"), (18, "s83")], "v3")
a("s_lshl_b32 s73, s3, 2\nv_and_b32 v3, 3, v1\nv_add_u32 v3, s73, v3\nv_mov_b32 v4, %s\nv_cmp_le_u32 vcc, 16, v1\ns_nop 1\nv_cndmask_b32 v3, v3, v4, vcc" % sQB)
a("v_lshl_add_u32 v2, v2, 4, v3\nv_lshlrev_b32 v2, 7, v2\nv_add_u32 %s, %d, v2" % (vPOLL, F1))
a("s_lshl_b32 s73, %s, 9" % sU0)
a("s_mul_i32 s74, s3, %d\ns_add_u32 s74, s74, s73\ns_add_u32 s74, s74, %d\nv_add_u32 %s, s74, %s" % (16 * T_TILE, T_OFF + 7 * 4096, vK, vL16))
a("s_lshl_b32 s74, %s, 17\ns_lshl_b32 s75, s3, 15\ns_add_u32 s74, s74, s75\ns_add_u32 s74, s74, %d\nv_add_u32 %s, s74, %s" % (sH, N_OFF, vV, vL16))
a("s_mul_i32 s74, %s, %d\ns_add_u32 s74, s74, s73\nv_add_u32 %s, s74, %s" % (sQB, 4 * T_TILE, vQ, vL16))
o_addr(OAD, vL16, "v2", "v3")
a("s_cmp_eq_u32 %s, 0\ns_mov_b32 s86, 0\ns_cselect_b32 s87, -1, 0\ns_cselect_b32 s88, 0, -1\ns_mov_b32 s89, 0" % sODD)
a("v_mov_b32 %s, 0xdddddddd" % vIDX)
def zero_o():
    for i in range(64): a("v_mov_b32 v%d, 0" % (128 + i))
zero_o()
for tau in range(4):
    a("s_add_u32 s73, s3, %d\ns_and_b32 s73, s73, 3\ns_mul_i32 s%d, s73, %d" % (1 + tau, 74 + tau, T_TILE))
if MPRIO: a("s_setprio 0")
a.vmwait_all()
stamp("m_drained")
publish(cM1, sF12, F1)
if PDELAY: a("s_sleep %d" % PDELAY)
poll(4, 1, vPOLL, PSLEEP)
stamp("m_f1seen")
def kv_load(kt, k):
    if k < 2: a.vm("buffer_load_dwordx4 %s, %s, %s, %s offen offset:%d sc1" % (KV(kt & 3, k), vK, WS, sSK, 1024 * k), "k%d" % kt)
    else: a.vm("buffer_load_dwordx4 %s, %s, %s, %s offen offset:%d sc1" % (KV(kt & 3, k), vV, WS, sSV, 1024 * (k - 2)), "v%d" % kt)
def kv_off(kt, k): a("s_mov_b32 %s, %d" % ((sSK, kt * T_TILE) if k == 0 else (sSV, kt * 2048)))
def q_load(tau):
    for m in range(2): a.vm("buffer_load_dwordx4 %s, %s, %s, s%d offen offset:%d sc1" % (vr(Qf(tau, m), 4), vQ, WS, 74 + tau, 1024 * m), "q%d" % tau)
def q_fix(tau):
    for k in (0, 1): a("v_cndmask_b32 v%d, v%d, %s, %s" % (Qf(tau, 0) + k, Qf(tau, 0) + k, vZERO, sMB))
    for k in (2, 3): a("v_cndmask_b32 v%d, v%d, %s, %s" % (Qf(tau, 1) + k, Qf(tau, 1) + k, vZERO, sMA))
kv_off(0, 0); kv_off(0, 1)
kv_load(0, 0); kv_load(0, 1); q_load(0); q_load(1); kv_load(0, 2); kv_load(0, 3); q_load(2); q_load(3)
kv_off(1, 0); kv_off(1, 1)
for k in range(4): kv_load(1, k)
load_g(vG, "v2")
def M(n, m):
    kt, tau = n >> 2, n & 3
    mfma(vr(Sb(tau), 16), KV(kt & 3, m), vr(Qf(tau, m), 4), m == 0)
def P(n, m):
    kt, tau = n >> 2, n & 3
    a("v_smfmac_f32_32x32x32_bf16 %s, %s, %s, %s" % (vr(Oa(tau), 16), KV(kt & 3, 2 + m), vr(Sb(tau) + 8 * m, 8), vIDX))
def E(n, q):
    for k in range(4 * q, 4 * q + 4): a("v_exp_f32 v%d, v%d" % (Sb(n & 3) + k, Sb(n & 3) + k))
if opt("goearly", 0): arrive(cGO)
a.vmwait("q0"); q_fix(0)
if not opt("goearly", 0): arrive(cGO)
stamp("m_attn0"); rstamp("R_attn0")
a.nop(1)
M(0, 0); M(0, 1)
a.vmwait("q1"); q_fix(1)
a.nop(6)
sched = {n: [] for n in range(64)}
for i, (kt, k) in enumerate([(2, 0), (2, 1), (2, 2), (2, 3), (3, 0), (3, 1), (3, 2), (3, 3)]): sched[i // 2].append((kt, k))
for kt in range(4, 16):
    for k in range(4): sched[4 * (kt - 3) + k].append((kt, k))
for n in range(64):
    ld = sched[n]
    if n < 63: M(n + 1, 0)
    for kt, k in ld:
        if k in (0, 2): kv_off(kt, k >> 1)
    E(n, 0)
    if n < 63: M(n + 1, 1)
    if n == 0: a.vmwait("v0")
    E(n, 1)
    if n > 0: P(n - 1, 1)
    if ld: kv_load(*ld[0])
    E(n, 2)
    P(n, 0)
    if len(ld) > 1: kv_load(*ld[1])
    if n < 2: a.vmwait("q%d" % (n + 2))
    elif NOWAIT: pass
    elif (n & 3) == 2 and n + 2 < 64: a.vmwait("k%d" % ((n + 2) // 4))
    elif (n & 3) == 3 and n + 1 < 64: a.vmwait("v%d" % ((n + 1) // 4))
    E(n, 3)
    if n < 2: q_fix(n + 2)
    if n in (7, 15, 31, 47): stamp("m_slot%d" % n)
a.nop(2)
P(63, 1)
stamp("m_attn_end"); rstamp("R_attn_end")
a("s_mov_b32 s77, 4")
a.label("L_reduce")
for tau in range(3):
    a("s_add_u32 s73, s3, %d\ns_and_b32 s73, s73, 3\ns_mul_i32 s73, s73, 12288\ns_add_u32 s73, s73, %d\nv_add_u32 v2, s73, %s" % (1 + tau, RED + tau * 4096, vL16))
    for i in range(4):
        a.ds("ds_write_b128 v2, %s offset:%d" % (vr(Oa(tau) + 4 * i, 4), 1024 * i))
a("s_mul_i32 s73, s3, 12288\ns_add_u32 s73, s73, %d\nv_add_u32 v2, s73, %s" % (RED, vL16))
a("v_mov_b32 v3, v2")
arrive(cRD)
spin(cRD, "s77", 0)
for k in range(12):
    a.ds("ds_read_b128 %s, v3 offset:%d" % (vr(64 + 4 * k, 4), 1024 * k), k // 4)
O3 = Oa(3)
for s in range(3):
    a.dswait(s)
    for q in range(8):
        a("v_pk_add_f32 %s, %s, %s" % (vr(O3 + 2 * q, 2), vr(O3 + 2 * q, 2), vr(64 + 16 * s + 2 * q, 2)))
bcast_hi("v4", vr(O3 + 12), "v5")
a("v_rcp_f32 v6, v4\nv_mov_b32 v8, 0\nv_mov_b32 v9, 0\nv_mul_f32 v6, v6, %s\nv_mov_b32 v7, v6" % vG)
for q in range(8):
    a("v_pk_mul_f32 %s, %s, v[6:7]" % (vr(64 + 2 * q, 2), vr(O3 + 2 * q, 2)))
for q in range(8):
    a("v_cvt_pk_bf16_f32 v%d, v%d, v%d" % (80 + q, 64 + 2 * q, 65 + 2 * q))
store_o(80, OAD, 0, "oa")
stamp("m_oa_stored")
for q in range(8):
    a("v_pk_fma_f32 v[8:9], %s, 0, v[8:9] op_sel_hi:[1,0,1]" % vr(O3 + 2 * q, 2))
a("v_add_f32 v8, v8, v9\nv_add_f32 v4, v4, v8")
a("v_cmp_nle_f32 vcc, 0x%x, v4\ns_mov_b64 s[94:95], vcc\nv_cmp_nge_f32 vcc, 0x%x, v4\ns_or_b64 vcc, vcc, s[94:95]" % (f32(2.0 ** -64), f32(2.0 ** 64)))
a("s_cmp_lg_u64 vcc, 0\ns_cselect_b32 s74, 0x101, %d\ns_andn2_b32 s74, s74, %s\nv_mov_b32 v3, s74" % (0x101 if FORCE_FB else 1, sFB))
a.vmwait_all()
arrive(cVT, True, "v3")
a("s_add_u32 s75, s83, s74\ns_and_b32 s76, s75, 0xff\ns_cmp_lg_u32 s76, s77\ns_cbranch_scc1 L_notlast")
a("s_lshr_b32 s75, s75, 8\ns_cmp_lg_u32 s75, 0\ns_cselect_b32 s75, 0x100, 0\ns_andn2_b32 s75, s75, %s\ns_cmp_lg_u32 s75, 0\ns_cbranch_scc1 L_fallback" % sFB)
flag_store(sF345, F5)
stamp("m_f5sent")
a.label("L_mdone")
arrive(cDONE)
a("s_branch L_fin")
a.label("L_notlast")
a("s_cmp_lg_u32 %s, 0\ns_cbranch_scc1 L_mdone" % sFB)
spin(cVT, 4, 1, 0xff)
a("s_lshr_b32 s73, s83, 8\ns_cmp_eq_u32 s73, 0\ns_cbranch_scc1 L_mdone")

a.label("L_fallback")
a("s_mov_b32 %s, 0x100\ns_mov_b32 s77, 8\ns_waitcnt vmcnt(0)" % sFB)
for t in range(4): a("v_mov_b32 v%d, 0xff800000" % (8 + t))
a("s_mov_b32 %s, 0" % sSK)
a.label("L_fb1")
for m in range(2): kv_load(0, m)
a("s_waitcnt vmcnt(0)")
for t in range(4):
    M(t, 0); M(t, 1)
a.nop(12)
for t in range(4):
    for q in range(8): a("v_max3_f32 v%d, v%d, v%d, v%d" % (8 + t, Sb(t) + 2 * q, Sb(t) + 2 * q + 1, 8 + t))
a("s_add_u32 %s, %s, %d\ns_cmp_lt_u32 %s, %d\ns_cbranch_scc1 L_fb1" % (sSK, sSK, T_TILE, sSK, 16 * T_TILE))
for t in range(4):
    a("v_mov_b32 v2, v%d\nv_mov_b32 v3, v%d\ns_nop 1\nv_permlane32_swap_b32 v2, v3\nv_max_f32 v2, v2, v3" % (8 + t, 8 + t))
    a("s_add_u32 s73, s3, %d\ns_and_b32 s73, s73, 3\ns_lshl_b32 s73, s73, 10\ns_add_u32 s73, s73, %d\nv_lshlrev_b32 v4, 2, v1\nv_add_u32 v%d, s73, v4" % (1 + t, RED, 12 + t))
    a("s_lshl_b32 s73, s3, 8\nv_add_u32 v4, s73, v%d\nds_write_b32 v4, v2" % (12 + t))
arrive(cFB0)
spin(cFB0, 4)
for t in range(4):
    for k in range(4): a("ds_read_b32 v%d, v%d offset:%d" % (2 + k, 12 + t, 256 * k))
    a("s_waitcnt lgkmcnt(0)\nv_max3_f32 v2, v2, v3, v4\nv_max_f32 v%d, v2, v5" % (8 + t))
arrive(cFB1)
spin(cFB1, 4)
zero_o()
a("s_mov_b32 %s, 0\ns_mov_b32 %s, 0" % (sSK, sSV))
a.label("L_fb2")
for k in range(4): kv_load(0, k)
a("s_waitcnt vmcnt(0)")
for t in range(4):
    M(t, 0); M(t, 1)
a.nop(12)
for t in range(4):
    for q in range(16): a("v_sub_f32 v%d, v%d, v%d" % (Sb(t) + q, Sb(t) + q, 8 + t))
    for q in range(16): a("v_exp_f32 v%d, v%d" % (Sb(t) + q, Sb(t) + q))
a.nop(2)
for t in range(4):
    P(t, 0); P(t, 1)
a.nop(12)
a("s_add_u32 %s, %s, %d\ns_add_u32 %s, %s, 2048\ns_cmp_lt_u32 %s, %d\ns_cbranch_scc1 L_fb2" % (sSK, sSK, T_TILE, sSV, sSV, sSV, 16 * 2048))
a("s_branch L_reduce")
a.label("L_fin")
stamp("end")
if STAMP:
    a("s_getreg_b32 s74, hwreg(HW_REG_HW_ID)\ns_getreg_b32 s75, hwreg(HW_REG_XCC_ID)\nv_writelane_b32 %s, s74, 62\nv_writelane_b32 %s, s75, 63" % (vSTAMP, vSTAMP))
    a("s_cmp_lg_u32 %s, 0xdddddddd" % "s98")
    a("v_lshlrev_b32 v2, 2, v1\ns_lshl_b32 s73, s2, 3\ns_add_u32 s73, s73, s39\ns_lshl_b32 s73, s73, 8\ns_add_u32 s73, s73, %d\ns_nop 4" % STAMP_OFF)
    a("buffer_store_dword %s, v2, %s, s73 offen" % (vSTAMP, WS))
if SPINTO or ENC >= 0:
    a("s_waitcnt vmcnt(0)")
    if ENC >= 0: a("s_sub_u32 s100, s100, s98\ns_min_u32 s100, s100, 5000\ns_add_u32 s100, s100, 4000")
    else: a("s_mov_b32 s100, %d" % SPINTO)
    if SKEW >= 0:
        a("v_mov_b32 v2, 0\nglobal_load_dword v3, v2, s[56:57] sc1\ns_waitcnt vmcnt(0)\nv_readfirstlane_b32 s75, v3\ns_not_b32 s75, s75\ns_sub_u32 s75, s98, s75\ns_mul_i32 s75, s75, %d\ns_add_u32 s100, s100, s75" % SKEW)
    a.label("L_spinto")
    a("s_memrealtime s[74:75]\ns_waitcnt lgkmcnt(0)\ns_sub_u32 s74, s74, s98\ns_cmp_lt_u32 s74, s100\ns_cbranch_scc1 L_spinto")
a.label("L_end")
a("s_endpgm")
a.label("L_codeend")

if STAMP:
    i = a.lines.index("v_readfirstlane_b32 s83, v2")
    a.lines.insert(i + 3, "s_mov_b32 s39, s83")
if ENC >= 0 and FILL < 0:
    i = a.lines.index("v_readfirstlane_b32 s83, v2")
    a.lines[i + 2:i + 2] = ["s_waitcnt lgkmcnt(0)", "s_mov_b32 s100, s98"]
probs = check(a.lines)
for p in sorted(set(probs)): print(p, file=sys.stderr)
hdr = open("cdna_kernels/%s.s.ref" % NAME).read().split("; Override launch")[0]
out = hdr + """; Fused single-launch kernel: QKV projections -> softmax attention + linear attention -> gated output projection.
; @launch grid=(256,1,1) block=(512,1,1) lds=%d
.amdgcn_target "amdgcn-amd-amdhsa--gfx950"
.text
.globl %s_kernel
.p2align 8
.type %s_kernel,@function
%s_kernel:
""" % (LDS_BYTES, NAME, NAME, NAME) + a.text() + """.section .rodata,"a"
.p2align 6
.amdhsa_kernel %s_kernel
  .amdhsa_next_free_vgpr 256
  .amdhsa_next_free_sgpr 102
  .amdhsa_accum_offset 256
  .amdhsa_group_segment_fixed_size 0
  .amdhsa_kernarg_size 80
  .amdhsa_user_sgpr_count 2
  .amdhsa_user_sgpr_kernarg_segment_ptr 1
  .amdhsa_system_sgpr_workgroup_id_x 1
.end_amdhsa_kernel
""" % NAME
dst = [x for x in sys.argv[1:] if not x.startswith("--")]
open(dst[0] if dst else "cdna_kernels/%s.s" % NAME, "w").write(out)
open("stamps.txt", "w").write("\n".join(STAMPS))
print("hazards:", len(set(probs)), "lines:", len(a.lines), file=sys.stderr)
```

```python
import sys, struct
from asmlib import Asm, check

NAME = "gated_mix__mha_block__linear_attn_block__prompt"
def flag(n): return ("--" + n) in sys.argv
def opt(n, d):
    for x in sys.argv:
        if x.startswith("--%s=" % n): return int(x.split("=")[1])
    return d
STAMP, FORCE_FB = flag("stamp"), flag("force-fallback")
SPINTO, ENC = opt("spinto", 0), opt("enc", -1)
AHEAD = opt("ahead", 3); FIRST = min(AHEAD, opt("first", 2))
PREF, WOPF, XPF = opt("pref", 1), opt("wopf", 6), opt("xpf", 0)
PDELAY, PSLEEP, PACE = opt("pdelay", 16), opt("psleep", 6), opt("pace", 5)
HPRIO, MPRIO = opt("hprio", 1), opt("mprio", 2)
WAKE = 0; LONG = opt("long", 16)
HOIST = opt("hoist", 1); WBEARLY = opt("wbearly", 0); B1PACE = opt("b1pace", 0)

T_OFF, T_TILE = 0, 21 * 4096
N_OFF, N_KIND = 0x540000, 0x200000
O_OFF, O_TILE = 0xB40000, 65536
SLAB_OFF = 0xF40000
G_OFF = 0xFC0000
F1, F2, F3, F4 = [0xFC8000 + i * 0x8000 for i in range(4)]
EPOCH_OFF = 0xFF0000
STAMP_OFF = 0x1000000
F5 = 0x1080000
WS_SIZE = 0x1100000
OOB = 0x40000000
RED, W2B, RSV, FIN = 106496, 98304, 155648, 114688
KVX = RSV + 1024
cM1, cW2, cH2, cF2, cWO, cDONE, cF3, cKV, cF4, cREL, cRD, cVT, cFB0, cFB1, cWB, cGO = range(16)
LDS_BYTES = 163840
SPIN = 1 << 18
WBYTES = 448 * 2688
SLOT = [0, 1, 2, 3, 0, 1, 2]

def f32(x): return struct.unpack("<I", struct.pack("<f", x))[0]
LOG2E = 1.4426950408889634
QSCALE = 28 ** -0.5 * LOG2E

X, W0, W1, W2, WS, OUT, WOA, WOB = ["s[%d:%d]" % (4 + 4 * i, 7 + 4 * i) for i in range(8)]
GW = W0
pX, pWA, pWoA, pWB, pWoB, pG, pOut, pWs = [("s%d" % i, "s%d" % (i + 1)) for i in (40, 42, 44, 48, 50, 52, 54, 58)]
sTAG, sRB, sJ, sH, sQB, sU0, sODD, sRB2, sCC, sP3 = ["s%d" % i for i in range(60, 70)]
sC0, sC1, sRTL = "s70", "s71", "s72"
sCNT, sFB, sMX, sMWc = "s79", "s80", "s81", "s82"
sSCL = "s[84:85]"
sMA, sMB, sMZ = "s[86:87]", "s[88:89]", "s[90:91]"
sSK, sSV = "s92", "s93"
sF12, sF34 = "s97", "s96"
sSTORED = "s38"
vL16, vTAG, vFL, vPOLL, vZERO, vSTAMP, vRSV, vONE, vDUMMY = "v0", "v30", "v29", "v28", "v27", "v31", "v17", "v16", "v18"
OAD = 19
STAMPS = {}
a = Asm()

def stamp(name, cyc=False):
    if name not in STAMPS: STAMPS[name] = len(STAMPS)
    if STAMP:
        a("%s s[98:99]\ns_waitcnt lgkmcnt(0)\nv_writelane_b32 %s, s98, %d" % ("s_memtime" if cyc else "s_memrealtime", vSTAMP, STAMPS[name]))
        a.lgq = []
    if ENC == STAMPS[name]:
        a("s_memrealtime s[100:101]\ns_waitcnt lgkmcnt(0)"); a.lgq = []
def vr(b, n=1): return "v%d" % b if n == 1 else "v[%d:%d]" % (b, b + n - 1)
def mfma(d, A, B, c=None): a("v_mfma_f32_32x32x16_bf16 %s, %s, %s, %s" % (d, A, B, d if c is None else c))
def srd(reg, p, size):
    n = int(reg[2:].split(":")[0])
    a("s_mov_b32 s%d, %s\ns_mov_b32 s%d, %s\ns_mov_b32 s%d, %d\ns_mov_b32 s%d, 0x20000" % (n, p[0], n + 1, p[1], n + 2, size, n + 3))
def swap23(dst, src, t):
    a("v_and_b32 %s, 0x13, %s\nv_and_b32 %s, 4, %s\nv_lshl_or_b32 %s, %s, 1, %s\nv_lshrrev_b32 %s, 1, %s\nv_and_or_b32 %s, %s, 4, %s" % (dst, src, t, src, dst, t, dst, t, src, dst, t, dst))
def lane_select(dst, items, t):
    a("v_mov_b32 %s, %s" % (dst, items[0][1]))
    for lo, s in items[1:]:
        a("v_cmp_le_u32 vcc, %d, v1\nv_mov_b32 %s, %s\ns_nop 0\nv_cndmask_b32 %s, %s, %s, vcc" % (lo, t, s, dst, dst, t))
def bounded(top):
    a("s_sub_u32 %s, %s, 1\ns_cbranch_scc0 %s\ns_mov_b32 %s, 0" % (sCNT, sCNT, top, sCNT))
def poll(sleep=0):
    top, done = a.newlabel("poll"), a.newlabel("polled")
    a.label(top)
    a("buffer_load_dword v4, %s, %s, 0 offen sc1\ns_waitcnt vmcnt(0)" % (vPOLL, WS)); a.vmq = []
    a("v_cmp_ne_u32 vcc, %s, v4\ns_cmp_eq_u64 vcc, 0\ns_cbranch_scc1 %s" % (sTAG, done))
    if sleep: a("s_sleep %d" % sleep)
    bounded(top)
    a.label(done)
def flag_store(soff, base):
    a("s_add_u32 s73, %s, %d\nv_mov_b32 v2, %d\nv_mov_b32 v3, s73\nv_cndmask_b32 %s, v2, v3, %s" % (soff, base, OOB, vFL, sMZ))
    a.vm("buffer_store_dword %s, %s, %s, 0 offen sc1" % (vTAG, vFL, WS), "flag")
def arrive(c, rtn=False, val=None, wake=False):
    a("s_mov_b64 exec, 1")
    if rtn: a("ds_add_rtn_u32 v2, %s, %s offset:%d" % (vRSV, val or vONE, 4 * c))
    else: a.ds("ds_add_u32 %s, %s offset:%d" % (vRSV, val or vONE, 4 * c))
    a("s_mov_b64 exec, -1")
    if rtn:
        a("s_waitcnt lgkmcnt(0)\nv_readfirstlane_b32 s83, v2"); a.lgq = []
    if wake and WAKE:
        if not rtn: a.dswait_all()
        a("s_wakeup")
def spin(c, target, sleep=1, mask=None):
    top, done = a.newlabel("spin"), a.newlabel("spun")
    a.label(top)
    a("ds_read_b32 v2, %s offset:%d\ns_waitcnt lgkmcnt(0)\nv_readfirstlane_b32 s83, v2" % (vRSV, 4 * c)); a.lgq = []
    if mask: a("s_and_b32 s94, s83, %d\ns_cmp_ge_u32 s94, %s" % (mask, target))
    else: a("s_cmp_ge_u32 s83, %s" % target)
    a("s_cbranch_scc1 %s" % done)
    if sleep: a("s_sleep %d" % sleep)
    bounded(top)
    a.label(done)
LS = opt("ls", 3)
def publish(c, soff, base, helper=False):
    skip = a.newlabel("nopub")
    if helper: hi()
    arrive(c, True)
    a("s_cmp_lg_u32 s83, 3\ns_cbranch_scc1 %s" % skip)
    flag_store(soff, base)
    a.label(skip)
def group_poll(phase, delay=0, sleep=4):
    oth, done = a.newlabel("rel"), a.newlabel("reld")
    a("s_cmp_lg_u32 s3, 0\ns_cbranch_scc1 %s" % oth)
    if delay: a("s_sleep %d" % delay)
    poll(sleep)
    arrive(cREL, wake=True)
    a("s_branch %s" % done)
    a.label(oth)
    a("s_waitcnt vmcnt(0)")
    spin(cREL, phase, LS)
    a.label(done)
    a.vmq = []; a.lgq = []
SP = opt("sp", 0); DP = opt("dp", 1)
def lo():
    if DP: a("s_setprio 0")
def hi():
    if DP: a("s_setprio 2")
def gap():
    if SP: a("s_sleep %d" % SP)
def pace():
    gap()
    if PACE and len(a.vmq) > PACE:
        a("s_waitcnt vmcnt(%d)" % PACE); a.vmq = a.vmq[-PACE:]
def get_tag():
    a("s_waitcnt lgkmcnt(0)"); a.lgq = []
    a("s_add_u32 %s, %s, 0x9e3779b1\nv_mov_b32 %s, %s" % (sTAG, sTAG, vTAG, sTAG))
def bcast_hi(dst, src, t):
    a("v_mov_b32 %s, %s\nv_mov_b32 %s, %s\ns_nop 1\nv_permlane32_swap_b32 %s, %s" % (t, src, dst, src, t, dst))
def tr_addr(dst, perm, t0, t1, t2):
    a("v_and_b32 %s, 3, v1" % t0)
    if perm: a("v_and_b32 %s, 1, %s\nv_lshrrev_b32 %s, 1, %s\nv_lshl_or_b32 %s, %s, 1, %s" % (t1, t0, t0, t0, t0, t1, t0))
    a("v_bfe_u32 %s, v1, 4, 1\nv_lshl_or_b32 %s, %s, 2, %s" % (t1, t0, t1, t0))
    a("v_bfe_u32 %s, v1, 2, 2\nv_lshrrev_b32 %s, 5, v1\nv_lshl_add_u32 %s, %s, 3, %s" % (t1, t2, t1, t2, t1))
    a("v_lshlrev_b32 %s, 7, %s\nv_lshl_add_u32 %s, %s, 3, %s" % (t1, t1, t1, t0, t1))
    a("v_bfe_u32 %s, v1, 3, 1\nv_lshl_or_b32 %s, %s, 6, %s" % (t0, dst, t0, t1))
def x_addr(base, T, srow, t):
    a("v_and_b32 %s, 31, v1" % t[0])
    if T: a("v_mov_b32 %s, %s" % (t[1], t[0]))
    else: swap23(t[1], t[0], t[2])
    a("v_lshrrev_b32 %s, 5, v1\nv_lshrrev_b32 %s, 1, %s\nv_and_b32 %s, 7, %s" % (t[2], t[3], t[1], t[3], t[3]))
    a("v_lshlrev_b32 %s, 7, %s\nv_add_u32 %s, %s, %s" % (t[1], t[1], t[1], srow, t[1]))
    for k in range(4):
        a("v_add_u32 %s, %d, %s\nv_xor_b32 %s, %s, %s\nv_lshl_add_u32 v%d, %s, 4, %s" % (t[0], 2 * k, t[2], t[0], t[0], t[3], base + k, t[0], t[1]))
        a("v_add_u32 v%d, 65536, v%d" % (base + 4 + k, base + k))
def n_addr(dst, sbase, vf, isV, t):
    a("s_mov_b32 s78, 2341")
    a("v_mul_lo_u32 %s, s78, %s\nv_lshrrev_b32 %s, 16, %s" % (t[0], vf, t[0], t[0]))
    a("v_mul_u32_u24 %s, 28, %s\nv_sub_u32 %s, %s, %s" % (t[1], t[0], t[1], vf, t[1]))
    if not isV: a("v_and_b32 %s, 1, %s\nv_lshlrev_b32 %s, 2, %s" % (t[2], t[0], t[2], t[2]))
    if not isV: a("v_add_u32 %s, %s, %s" % (t[1], t[1], t[2]))
    swap23(t[3], t[1], t[2])
    a("v_lshlrev_b32 %s, 17, %s\nv_lshl_add_u32 %s, %s, 4, %s\nv_lshrrev_b32 %s, 5, v1\nv_lshl_add_u32 %s, %s, 9, %s\nv_add_u32 %s, %s, %s" % (t[0], t[0], t[0], t[3], t[0], t[1], t[0], t[1], t[0], dst, sbase, t[0]))
def o_addr(half):
    a("s_lshl_b32 s73, %s, 2\ns_add_u32 s73, s73, s3\ns_lshl_b32 s73, s73, 16\ns_lshl_b32 s74, %s, 11\ns_add_u32 s73, s73, s74\ns_add_u32 s73, s73, %d\nv_add_u32 v19, s73, %s" % (sQB, sH, O_OFF + half * 32768, vL16))
    a("s_mov_b32 s0, 0\ns_mov_b32 s1, -1")
def store_o(c, tag):
    a("v_cndmask_b32 v%d, v%d, %s, s[0:1]" % (c + 6, c + 6, vZERO))
    for m in range(2): a.vm("buffer_store_dwordx4 %s, v19, %s, 0 offen offset:%d sc1" % (vr(c + 4 * m, 4), WS, 1024 * m), tag)
def load_g(dst):
    a("s_lshl_b32 s73, %s, 2\ns_add_u32 s73, s73, s3\ns_lshl_b32 s73, s73, 7\ns_add_u32 s73, s73, %d\nv_and_b32 v2, 31, v1\nv_lshlrev_b32 v2, 2, v2" % (sQB, G_OFF))
    a.vm("buffer_load_dword %s, v2, %s, s73 offen sc1" % (dst, WS), "g")
def w_srd(reg, sc):
    n = int(reg[2:].split(":")[0])
    a("s_lshl_b32 s75, %s, 1\ns_add_u32 s75, s75, %s\ns_sub_u32 s76, s75, 7\ns_cmp_lt_u32 s75, 21\ns_cselect_b32 s75, s75, s76" % (sJ, sc))
    a("s_cselect_b32 s%d, %s, %s\ns_cselect_b32 s%d, %s, %s\ns_lshl_b32 s75, s75, 7" % (n, pWA[0], pWB[0], n + 1, pWA[1], pWB[1]))
    a("s_add_u32 s%d, s%d, s75\ns_addc_u32 s%d, s%d, 0\ns_sub_u32 s%d, %d, s75\ns_mov_b32 s%d, 0x20000" % (n, n, n + 1, n + 1, n + 2, WBYTES, n + 3))
def roles():
    a("s_and_b32 s73, s2, 7\ns_lshr_b32 s74, s2, 3")
    a("s_and_b32 %s, s74, 1\ns_lshl_b32 s75, s73, 1\ns_add_u32 %s, s75, %s\ns_lshr_b32 %s, s74, 1" % (sODD, sH, sODD, sQB))
    a("s_mul_i32 s75, %s, 7\ns_lshr_b32 %s, s75, 1" % (sH, sU0))
    a("s_mul_i32 s75, s74, 37\ns_lshr_b32 s75, s75, 8\ns_mul_i32 s76, s75, 7\ns_sub_u32 %s, s74, s76\ns_lshl_b32 s76, s73, 2\ns_add_u32 %s, s76, s75" % (sCC, sRB2))
    a("s_cmp_lt_u32 s74, 28\ns_cselect_b32 %s, 1, 0\ns_cselect_b32 %s, %s, 0" % (sP3, sRB2, sRB2))
    a("s_mul_i32 s75, %s, 28\ns_lshr_b32 %s, s75, 6\ns_add_u32 s75, s75, 27\ns_lshr_b32 %s, s75, 6" % (sH, sC0, sC1))
    a("s_mov_b32 %s, %d\ns_mov_b32 %s, 0" % (sCNT, SPIN, sFB))
    a("s_lshl_b32 s75, %s, 4\ns_add_u32 s75, s75, %s\ns_lshl_b32 %s, s75, 7" % (sJ, sRB, sF12))
    a("s_lshl_b32 s75, %s, 4\ns_add_u32 s75, s75, %s\ns_lshl_b32 %s, s75, 7" % (sH, sQB, sF34))
    a("v_cmp_eq_u32 %s, 0, v1\nv_mov_b32 %s, 0\nv_mov_b32 %s, %d\nv_mov_b32 %s, 1" % (sMZ, vZERO, vRSV, RSV, vONE))
def prefetch_wo(helper):
    a("s_lshl_b32 s75, %s, 1\ns_add_u32 s75, s75, %s\ns_sub_u32 s75, s75, 14\ns_lshl_b32 s75, s75, 3\ns_add_u32 s75, s75, s3\ns_add_u32 s75, s75, %d\ns_mul_i32 s75, s75, 13" % (sRB, sJ, 4 * helper))
    a("v_add_u32 v11, s75, v1\nv_min_u32 v11, %d, v11\nv_lshlrev_b32 v11, 7, v11" % (448 * 7 - 1))
    a("s_mov_b64 exec, 0x1fff\nglobal_load_dword %s, v11, s[44:45]\nglobal_load_dword %s, v11, s[50:51]\ns_mov_b64 exec, -1" % (vDUMMY, vDUMMY))
def epoch_load(): a("s_mov_b32 s73, %d\ns_load_dword %s, s[58:59], s73" % (EPOCH_OFF, sTAG))

a("s_cmp_ge_u32 s2, 256\ns_cbranch_scc1 L_end")
a("s_load_dwordx16 s[40:55], s[0:1], 0\ns_load_dwordx4 s[56:59], s[0:1], 64")
if SPINTO or ENC >= 0: a("s_memrealtime s[98:99]")
if ENC >= 0: a("s_waitcnt lgkmcnt(0)\ns_mov_b32 s100, s98")
if STAMP: a("v_mov_b32 %s, 0" % vSTAMP)
stamp("entry")
a("s_getpc_b64 s[36:37]")
a.label("L_pc")
a("""
v_lshrrev_b32 v2, 6, v0
v_and_b32 v1, 63, v0
s_and_b32 s75, s2, 0x38
v_readfirstlane_b32 s83, v2
v_add_u32 v3, s75, v2
v_lshl_add_u32 v3, v3, 3, v1
v_lshlrev_b32 v3, 7, v3
s_mov_b32 s75, L_codeend-L_pc-4
v_min_u32 v3, s75, v3
s_mov_b64 exec, 0xff
global_load_dword %s, v3, s[36:37]
s_mov_b64 exec, -1
s_and_b32 s3, s83, 3
s_lshr_b32 s74, s2, 3
s_and_b32 s75, s2, 1
s_lshl_b32 s75, s75, 3
s_and_b32 s76, s74, 7
s_add_u32 %s, s75, s76
s_and_b32 s75, s2, 6
s_lshl_b32 s75, s75, 1
s_lshr_b32 s76, s2, 6
s_add_u32 %s, s75, s76
v_lshlrev_b32 v0, 4, v1
""" % (vDUMMY, sRB, sJ))
if STAMP: a("s_mov_b32 s39, s83")
a("s_cmp_ge_u32 s83, 4\ns_cbranch_scc1 L_helper")
if PREF:
    a("""
v_lshl_add_u32 v3, s2, 2, v2
v_mad_u32_u24 v4, v3, 14, v1
v_mad_u32_u24 v5, v3, 10, v1
v_lshlrev_b32 v4, 7, v4
v_min_u32 v5, %d, v5
v_lshlrev_b32 v5, 7, v5
s_mov_b64 exec, 0x3fff
s_waitcnt lgkmcnt(0)
global_load_dword %s, v4, s[40:41]
s_mov_b64 exec, 0x3ff
global_load_dword %s, v5, s[42:43]
global_load_dword %s, v5, s[48:49]
s_mov_b64 exec, -1
""" % (448 * 21 - 1, vDUMMY, vDUMMY, vDUMMY))
a("s_branch L_main")

a.label("L_helper")
a("v_lshrrev_b32 v10, 3, v1\nv_and_b32 v11, 7, v1\nv_lshrrev_b32 v12, 4, v1\nv_xor_b32 v2, v11, v12\nv_lshlrev_b32 v2, 4, v2")
a("s_lshl_b32 s75, %s, 2\ns_add_u32 s75, s75, s3\ns_mul_i32 s75, s75, %d\nv_mul_u32_u24 v13, 896, v10\nv_add3_u32 v3, s75, v13, v2" % (sRB, 32 * 896))
a("v_xor_b32 v4, 64, v3\nv_add_u32 v4, 6144, v4\nv_add_u32 v5, 12288, v3\nv_add_u32 v6, 12288, v4")
a("s_lshl_b32 %s, s3, 12\ns_lshl_b32 %s, s3, 11\ns_mov_b32 s6, %d\ns_mov_b32 s7, 0x20000" % (sMX, sMWc, 2048 * 896))
a("v_and_b32 v9, 1, v12\nv_lshlrev_b32 v9, 2, v9\nv_xor_b32 v9, v9, v11\nv_lshlrev_b32 v9, 4, v9")
a("s_mul_i32 s76, s3, %d\nv_mul_u32_u24 v14, 2688, v10\nv_add3_u32 v7, s76, v14, v9\nv_add_u32 v8, %d, v7" % (16 * 2688, 8 * 2688 - 1024))
a("s_cmp_ge_u32 %s, 14\ns_waitcnt lgkmcnt(0)\ns_mov_b32 s4, %s\ns_mov_b32 s5, %s\ns_cbranch_scc1 L_h_gate" % (sJ, pX[0], pX[1]))
stamp("h_go")
def other_setup():
    if HPRIO: a("s_setprio %d" % HPRIO)
    epoch_load()
    roles()
    a("s_lshl_b32 s77, %s, 7\nv_add3_u32 v26, s77, v13, v9" % sCC)
    a("s_lshl_b32 s75, %s, 7\ns_add_u32 s16, %s, s75\ns_addc_u32 s17, %s, 0\ns_sub_u32 s18, %d, s75\ns_mov_b32 s19, 0x20000" % (sJ, pWB[0], pWB[1], WBYTES))
    srd(WS, pWs, WS_SIZE); srd(OUT, pOut, 2048 * 896); srd(WOA, pWoA, 448 * 896); srd(WOB, pWoB, 448 * 896)
def dma_slab(s):
    slot = SLOT[s]
    a("s_add_u32 m0, %s, %d\ns_mov_b32 s73, %d" % (sMX, slot * 32768, s * 128))
    for i in range(4): a.vm("buffer_load_dwordx4 v%d, %s, s73 offen offset:%d lds" % (3 + i, X, 1024 * i), "slab%d" % s)
    for c, reg in ((0, W0), (1, W1)):
        if s == 0: w_srd(reg, str(c))
        a("s_add_u32 m0, %s, %d\ns_mov_b32 s73, %d" % (sMWc, slot * 32768 + 16384 + c * 8192, s * 64 * 2688))
        for i in range(2): a.vm("buffer_load_dwordx4 v%d, %s, s73 offen offset:%d lds" % (7 + i, reg, 1024 * i), "slab%d" % s)
def dma_w2(s2):
    a("s_add_u32 m0, %s, %d\ns_mov_b32 s73, %d" % (sMWc, W2B + s2 * 8192, s2 * 64 * 2688))
    for i in range(2): a.vm("buffer_load_dwordx4 v%d, %s, s73 offen offset:%d lds" % (7 + i, W2, 1024 * i), "w2")
for s in range(FIRST): dma_slab(s)
stamp("h_issued")
other_setup()
if XPF:
    a("s_lshr_b32 s74, s2, 3\ns_and_b32 s75, s2, 1\ns_lshl_b32 s75, s75, 5\ns_add_u32 s75, s75, s74\ns_lshl_b32 s75, s75, 2\ns_add_u32 s75, s75, s3\ns_mul_i32 s75, s75, %d" % (8 * 896))
    a("v_mul_u32_u24 v104, 896, v1\nv_add_u32 v104, s75, v104")
    a("s_and_b32 s76, s74, 3\ns_lshl_b32 s76, s76, 2\ns_add_u32 s76, s76, s3\ns_mul_i32 s76, s76, %d\nv_mul_u32_u24 v105, 2688, v1\nv_add_u32 v105, s76, v105" % (4 * 2688))
    a("s_bitcmp1_b32 s74, 2\ns_cselect_b32 s36, s12, s8\ns_cselect_b32 s37, s13, s9")
def xpf(k):
    if not XPF or k > 6: return
    a("s_mov_b64 exec, 0xff")
    a.vm("global_load_dword %s, v104, s[40:41] offset:%d" % (vDUMMY, 128 * k))
    a("v_add_u32 v106, %d, v105\ns_mov_b64 exec, 0xf" % (k * 64 * 2688))
    a.vm("global_load_dword %s, v106, s[36:37]" % vDUMMY)
    a("s_mov_b64 exec, -1")
vmq0 = list(a.vmq)
a("s_cmp_ge_u32 %s, 7\ns_cbranch_scc1 L_h_N" % sJ)
def Xh(g): return vr(144 + 4 * g, 4)
def acc2(ct): return 64 + 16 * ct
def Wh(g, ct, e=None):
    b = 32 + 8 * (g & 3) + 4 * ct
    return vr(b, 4) if e is None else vr(b + 2 * e, 2)
def helper_p1(T):
    a.vmq = list(vmq0); a.lgq = []
    tmp = ["v10", "v11", "v12", "v13"]
    xpf(AHEAD)
    x_addr(96, T, sMX, tmp)
    tr_addr("v13", T, "v10", "v11", "v12")
    a("v_add_u32 v108, %d, v13\nv_xor_b32 v109, 64, v108" % W2B)
    a("s_lshl_b32 s75, %s, 2\ns_add_u32 s75, s75, s3" % sRB)
    if T:
        a("s_mul_i32 s77, s75, %d\ns_add_u32 s78, %s, 14\ns_lshl_b32 s78, s78, 12\ns_add_u32 s78, s78, s77\nv_add_u32 v110, s78, %s\nv_add_u32 v111, 2048, v110" % (T_TILE, sJ, vL16))
    else:
        a("s_lshl_b32 s75, s75, 11\ns_add_u32 s77, s75, %d" % (N_OFF + 2 * N_KIND))
        for ct in range(2):
            a("s_sub_u32 s73, %s, 7\ns_lshl_b32 s73, s73, 6\ns_add_u32 s73, s73, %d\nv_and_b32 v14, 31, v1\nv_add_u32 v14, s73, v14" % (sJ, 32 * ct))
            n_addr("v%d" % (110 + ct), "s77", "v14", False, tmp)
    for s in range(7):
        a.vmwait("slab%d" % s)
        if s: a.dswait_all()
        stamp("h_s%d" % s)
        a("s_barrier")
        slot = SLOT[s]; hi, lo = slot >> 1, (slot & 1) * 32768
        for t in range(4): a.ds("ds_read_b128 %s, v%d offset:%d" % (Xh(4 * s + t), 96 + 4 * hi + t, lo))
        xpf(s + AHEAD + 1)
        if s == 0:
            for k in range(FIRST, AHEAD): dma_slab(k)
        if s + AHEAD < 7: dma_slab(s + AHEAD)
        if s == 7 - AHEAD:
            for k2 in range(4): dma_w2(k2)
        if s == 8 - AHEAD:
            for k2 in range(4, 7): dma_w2(k2)
    a.vmwait("w2")
    get_tag()
    arrive(cW2)
    spin(cW2, 4, 0)
    stamp("h_r2_start")
    def reads(g):
        for ct in range(2):
            for e in range(2):
                a.ds("ds_read_b64_tr_b16 %s, v%d offset:%d" % (Wh(g, ct, e), 108 + ct, (g >> 2) * 8192 + (g & 3) * 2048 + e * 512), g)
    reads(0); reads(1)
    a("s_mul_i32 s75, s3, %d\ns_mul_i32 s76, s3, %d" % (14 * 1024, 14 * 8 * 896))
    for g in range(28):
        a.dswait(g)
        for ct in range(2):
            if T: mfma(vr(acc2(ct), 16), Wh(g, ct), Xh(g), "0" if g == 0 else None)
            else: mfma(vr(acc2(ct), 16), Xh(g), Wh(g, ct), "0" if g == 0 else None)
            if ct == 0 and g < 26: reads(g + 2)
            if WBEARLY and ct == 1 and g % 2 == 0:
                i = g // 2
                a("s_add_u32 m0, s75, %d\ns_add_u32 s74, s76, %d" % (i * 1024, i * 8 * 896))
                a.vm("buffer_load_dwordx4 v26, %s, s74 offen lds" % WOB, "wo")
            if ct == 0 and g == 27: arrive(cH2)
    stamp("h_r2_end")
helper_p1(True)
a("s_branch L_h_phi")
a.label("L_h_N")
helper_p1(False)
a.label("L_h_phi")
a.vmq = []; a.lgq = []
a("s_mov_b32 s84, 0x%x\ns_mov_b32 s85, s84\ns_mov_b32 s94, 0x%x\ns_mov_b32 s95, s94" % (f32(LOG2E), f32(1e-6)))
a.nop(8)
for ct in range(2):
    b = acc2(ct)
    for q in range(8): a("v_pk_mul_f32 %s, %s, %s" % (vr(112 + 2 * q, 2), vr(b + 2 * q, 2), sSCL))
    for q in range(16): a("v_exp_f32_e64 v%d, v%d clamp" % (112 + q, 112 + q))
    for q in range(16): a("v_max_f32 v%d, 0, v%d" % (b + q, b + q))
    for q in range(8): a("v_pk_add_f32 %s, %s, %s" % (vr(b + 2 * q, 2), vr(b + 2 * q, 2), vr(112 + 2 * q, 2)))
    for q in range(8): a("v_pk_add_f32 %s, %s, s[94:95]" % (vr(b + 2 * q, 2), vr(b + 2 * q, 2)))
    for q in range(8): a("v_cvt_pk_bf16_f32 v%d, v%d, v%d" % (32 + 8 * ct + q, b + 2 * q, b + 2 * q + 1))
stamp("h_phi")
a("s_branch L_h_join")
a.label("L_h_gate")
other_setup()
a("v_mov_b32 v110, %d\nv_mov_b32 v111, %d" % (OOB, OOB))
get_tag()
a("s_barrier")
arrive(cH2)
if opt("hwd", 16): a("s_sleep %d" % opt("hwd", 16))
prefetch_wo(1)
if WBEARLY:
    a("s_mul_i32 s75, s3, %d\ns_mul_i32 s76, s3, %d" % (14 * 1024, 14 * 8 * 896))
    for i in range(14):
        a("s_add_u32 m0, s75, %d\ns_add_u32 s74, s76, %d" % (i * 1024, i * 8 * 896))
        a("buffer_load_dwordx4 v26, %s, s74 offen lds" % WOB)
a.label("L_h_join")
a.vmq = []; a.lgq = []
vB1a, vB1b, vSL, vPQ, vGh, vO, vOUT, vWB, vWA = "v25", "v24", "v23", "v22", "v18", "v15", "v14", 10, 12
def dma_wo(half, reg, first, per, paced=True):
    a("s_mul_i32 s75, s3, %d\ns_mul_i32 s76, s3, %d" % (per * 1024, per * 8 * 896))
    if paced: lo()
    for i in range(per):
        a("s_add_u32 m0, s75, %d\ns_add_u32 s74, s76, %d" % (half * 57344 + (first + i) * 1024, (first + i) * 8 * 896))
        a.vm("buffer_load_dwordx4 v26, %s, s74 offen lds" % reg, "wo")
        if paced: pace()
    if paced: hi()
a("s_add_u32 s73, %s, 23\ns_add_u32 s74, %s, 23\ns_add_u32 s75, %s, 16\ns_add_u32 s76, %s, 16\ns_add_u32 s77, %s, 21\ns_lshr_b32 s77, s77, 1\ns_add_u32 s78, %s, 21\ns_lshr_b32 s78, s78, 1" % (sC0, sC1, sC0, sC1, sC0, sC1))
lane_select("v2", [(0, "s73"), (1, "s74"), (2, "s75"), (3, "s76"), (4, "s77"), (5, "s78"), (6, "14"), (7, "15")], "v3")
a("s_lshl_b32 s73, %s, 7\ns_add_u32 s73, s73, %d\nv_lshlrev_b32 v2, 11, v2\nv_add_u32 %s, s73, v2" % (sQB, F1, vPOLL))
a("s_lshl_b32 s73, %s, 17\ns_lshl_b32 s74, %s, 13\ns_add_u32 s73, s73, s74\ns_add_u32 s73, s73, %d" % (sH, sQB, N_OFF + N_KIND))
a("v_lshrrev_b32 v2, 4, v1\nv_and_b32 v3, 15, v1\nv_lshlrev_b32 v3, 4, v3\nv_lshl_add_u32 v2, v2, 9, v3")
a("s_and_b32 s74, s3, 1\ns_lshl_b32 s74, s74, 8\ns_add_u32 s74, s74, s73\nv_add_u32 %s, s74, v2" % vB1b)
a("s_lshr_b32 s74, s3, 1\ns_lshl_b32 s74, s74, 8\ns_add_u32 s74, s74, s73\ns_add_u32 s74, s74, %d\nv_add_u32 %s, s74, v2" % (N_KIND, vB1a))
a("s_lshl_b32 s73, %s, 15\ns_lshl_b32 s74, s3, 13\ns_add_u32 s73, s73, s74\ns_add_u32 s73, s73, %d" % (sH, SLAB_OFF))
a("v_and_b32 v2, 15, v1\nv_lshlrev_b32 v2, 5, v2\nv_lshrrev_b32 v3, 4, v1\nv_lshl_add_u32 v4, v3, 3, v2\ns_lshl_b32 s74, %s, 9\ns_add_u32 s74, s74, s73\nv_add_u32 v141, s74, v4" % sQB)
a("v_and_b32 v4, 1, v3\nv_lshl_add_u32 v2, v4, 4, v2\nv_lshrrev_b32 v3, 1, v3\nv_lshl_add_u32 v2, v3, 9, v2\nv_add_u32 %s, s73, v2" % vSL)
a("v_and_b32 v2, 15, v1\nv_lshlrev_b32 v4, 3, v4\nv_sub_u32 v2, v2, v4\nv_and_b32 v3, 1, v2\nv_lshlrev_b32 v3, 4, v3\nv_mov_b32 v4, 0x3f80\nv_lshlrev_b32 v3, v3, v4\nv_lshrrev_b32 v2, 1, v2")
for k in range(4): a("v_cmp_eq_u32 vcc, %d, v2\ns_nop 1\nv_cndmask_b32 v%d, %s, v3, vcc" % (k, 136 + k, vZERO))
a("s_lshl_b32 s73, %s, 2\ns_add_u32 s73, s73, s3\ns_mul_i32 s73, s73, %d\ns_lshl_b32 s74, %s, 9\ns_add_u32 s73, s73, s74\ns_add_u32 s73, s73, %d\nv_add_u32 %s, s73, %s" % (sQB, T_TILE, sU0, T_OFF + 14 * 4096, vPQ, vL16))
o_addr(1)
a("s_lshl_b32 s73, %s, 11\ns_add_u32 s73, s73, %d\nv_and_b32 v2, 15, v1\nv_lshlrev_b32 v3, 7, v2\nv_add_u32 v9, s73, v3" % (sH, F3))
a("s_lshr_b32 s73, %s, 1\ns_lshl_b32 s73, s73, 7\ns_add_u32 s73, s73, %d\nv_lshlrev_b32 v2, 11, v2\nv_add_u32 v8, s73, v2" % (sRB2, F4))
a("s_lshl_b32 s73, %s, 1\ns_and_b32 s74, s3, 1\ns_add_u32 s73, s73, s74\ns_lshr_b32 s74, s3, 1" % sRB2)
a("s_lshl_b32 s75, s73, 1\ns_add_u32 s75, s75, s74\ns_lshl_b32 s75, s75, 10\ns_add_u32 s75, s75, %d\nv_and_b32 v2, 7, v1\nv_lshlrev_b32 v2, 7, v2\nv_add_u32 v140, s75, v2" % F5)
a("s_mul_i32 s75, s73, %d\ns_mul_i32 s76, s74, 16384\ns_add_u32 s75, s75, s76\ns_add_u32 s75, s75, %d\nv_add_u32 %s, s75, %s" % (O_TILE, O_OFF, vO, vL16))
a("s_mul_i32 s75, s73, %d\ns_lshl_b32 s76, %s, 7\ns_add_u32 s75, s75, s76\ns_lshl_b32 s76, s74, 6\ns_add_u32 s75, s75, s76" % (32 * 896, sCC))
a("v_and_b32 v2, 31, v1\nv_mul_u32_u24 v2, 896, v2\nv_lshrrev_b32 v3, 5, v1\nv_lshl_add_u32 v2, v3, 4, v2\nv_add_u32 %s, s75, v2" % vOUT)
tr_addr("v4", True, "v2", "v3", "v5")
a("v_xor_b32 v4, s76, v4\ns_mul_i32 s75, s74, 28672\nv_add_u32 v%d, s75, v4\nv_xor_b32 v%d, 64, v%d" % (vWB, vWB + 1, vWB))
a("v_add_u32 v%d, 57344, v%d\nv_add_u32 v%d, 57344, v%d" % (vWA, vWB, vWA + 1, vWB + 1))
a("v_lshrrev_b32 v2, 5, v1\nv_lshlrev_b32 v2, 9, v2")
for k in range(4): a("v_sub_u32 v%d, v%d, v2" % (132 + k, vWB + k))
a("s_lshl_b32 s73, s74, 2\ns_cmp_eq_u32 %s, 0\ns_cselect_b32 s75, 7, 0\ns_sub_u32 s75, s75, s73" % sODD)
a("v_lshrrev_b32 v2, 4, v1\nv_cmp_eq_u32 %s, s75, v2" % sMA)
a("s_lshl_b32 s73, s73, 8\ns_and_b32 s75, s3, 1\ns_lshl_b32 s75, s75, 8\ns_add_u32 s73, s73, s75\ns_add_u32 s73, s73, %d" % KVX)
a("v_and_b32 v3, 15, v1\nv_lshlrev_b32 v3, 4, v3\nv_and_b32 v4, 1, v2\nv_lshl_add_u32 v3, v4, 9, v3\nv_lshrrev_b32 v4, 1, v2\nv_lshl_add_u32 v3, v4, 3, v3\nv_add_u32 v7, s73, v3")
a("v_add_u32 v6, %d, %s" % (KVX, vL16))
if WBEARLY:
    a.vmwait_all()
    arrive(cWB)
spin(cGO, 4, LS)
lo()
for ct in range(2):
    for m in range(2): a.vm("buffer_store_dwordx4 %s, v%d, %s, 0 offen offset:%d sc1" % (vr(32 + 8 * ct + 4 * m, 4), 110 + ct, WS, 1024 * m)); gap()
a.vmwait_all()
publish(cF2, sF12, F2, True)
stamp("h_f2sent")
for k in range(4): a("v_mov_b32 v%d, -1" % (48 + k))
a("v_subrev_u32 v52, 32768, v19")
lo()
for m in range(2): gap(); a.vm("buffer_store_dwordx4 v[48:51], v52, %s, 0 offen offset:%d sc1" % (WS, 1024 * m))
a.vmwait_all()
hi()
arrive(cRD)
group_poll(1, opt("d2", 0))
stamp("h_f2seen"); lo()
for k in range(4):
    a("s_mov_b32 s73, %d" % (2048 * k))
    a.vm("buffer_load_dwordx4 %s, %s, %s, s73 offen sc1" % (vr(64 + 8 * k, 4), vB1a, WS)); pace() if B1PACE else gap()
    a.vm("buffer_load_dwordx4 %s, %s, %s, s73 offen sc1" % (vr(68 + 8 * k, 4), vB1b, WS)); pace() if B1PACE else gap()
a.vmwait_all()
hi()
a("v_mov_b32 %s, v9" % vPOLL)
for k in range(4):
    a("v_mfma_f32_16x16x32_bf16 v[96:99], %s, %s, %s" % (vr(64 + 8 * k, 4), vr(68 + 8 * k, 4), "v[96:99]" if k else "0"))
a.nop(8)
a("v_cvt_pk_bf16_f32 v96, v96, v97\nv_cvt_pk_bf16_f32 v97, v98, v99")
a("v_cndmask_b32 v96, v96, %s, %s\nv_cndmask_b32 v97, v97, %s, %s" % (vZERO, sMA, vZERO, sMA))
a.vm("buffer_store_dwordx2 v[96:97], v141, %s, 0 offen sc1" % WS, "slab")
lo()
for m in range(2): gap(); a.vm("buffer_load_dwordx4 %s, %s, %s, 0 offen offset:%d sc1" % (vr(56 + 4 * m, 4), vPQ, WS, 1024 * m))
load_g(vGh)
a.vmwait("slab")
publish(cF3, sF34, F3, True)
stamp("h_f3sent")
if not WBEARLY:
    spin(cH2, 8)
    dma_wo(0, WOB, 0, 14)
    a.vmwait_all()
    arrive(cWB)
group_poll(2)
stamp("h_f3seen"); lo()
for k in range(8):
    if k % 4 == 0: a("s_mov_b32 s73, %d" % (1024 * k))
    a.vm("buffer_load_dwordx4 %s, %s, %s, s73 offen offset:%d sc1" % (vr(72 + 4 * k, 4), vSL, WS, 1024 * (k % 4))); pace() if B1PACE else gap()
a.vmwait_all()
hi()
a("v_mov_b32 %s, v8" % vPOLL)
for k in range(8):
    a("v_mfma_f32_16x16x32_bf16 v[64:67], v[136:139], %s, %s" % (vr(72 + 4 * k, 4), "v[64:67]" if k else "0"))
a.nop(8)
a("v_cvt_pk_bf16_f32 v4, v64, v65\nv_cvt_pk_bf16_f32 v5, v66, v67\nds_write_b64 v7, v[4:5]")
arrive(cKV, wake=True)
spin(cKV, 4, 4 if WAKE else 1)
a("ds_read_b128 v[64:67], v6\nds_read_b128 v[68:71], v6 offset:1024\ns_waitcnt lgkmcnt(0)")
mfma("v[80:95]", "v[64:67]", "v[56:59]", "0")
mfma("v[80:95]", "v[68:71]", "v[60:63]")
a("v_sub_f32 v4, 1.0, %s" % vGh)
a.nop(11)
bcast_hi("v2", "v92", "v3")
a("v_add_f32 v2, 0x%x, v2\nv_rcp_f32 v2, v2\ns_nop 0\nv_mul_f32 v2, v2, v4" % f32(1e-6))
for q in range(16): a("v_mul_f32 v%d, v2, v%d" % (80 + q, 80 + q))
for q in range(8): a("v_cvt_pk_bf16_f32 v%d, v%d, v%d" % (64 + q, 80 + 2 * q, 81 + 2 * q))
store_o(64, "ob")
lo()
a.vmwait_all()
publish(cF4, sF34, F4, True)
stamp("h_f4sent")
a("s_cmp_eq_u32 %s, 0\ns_cbranch_scc1 L_fin" % sP3)
spin(cH2, 8)
dma_wo(1, WOA, 0, 12)
group_poll(3)
stamp("h_f4seen"); lo()
def Of(g): return vr(64 + 4 * g, 4)
def accB(c): return 32 + 16 * c
def accA(c): return 144 + 16 * c
def Wf(g, c, e=None):
    b = 176 + 8 * (g % 3) + 4 * c
    return vr(b, 4) if e is None else vr(b + 2 * e, 2)
NK = 16
def w_reads(base, g):
    for c in range(2):
        for e in range(2):
            b = base + c if not (g & 1 and e) else 132 + base - vWB + c
            a.ds("ds_read_b64_tr_b16 %s, v%d offset:%d" % (Wf(g, c, e), b, (28 * (g >> 1) + 16 * (g & 1) + 4 * e) * 128), (base, g))
def o_loads(half):
    for g in range(NK):
        if g % 4 == 0: a("s_mov_b32 s73, %d" % (half * 32768 + g * 1024))
        a.vm("buffer_load_dwordx4 %s, %s, %s, s73 offen offset:%d sc1" % (Of(g), vO, WS, (g % 4) * 1024), ("o", g))
        if half and opt("obgap", 1): gap()
o_loads(1)
hi()
a("v_mov_b32 %s, v140" % vPOLL)
a("s_xor_b32 s73, s3, 2\ns_lshl_b32 s73, s73, 12\ns_add_u32 s73, s73, %d\nv_add_u32 v6, s73, %s\ns_lshl_b32 s73, s3, 12\ns_add_u32 s73, s73, %d\nv_add_u32 v7, s73, %s" % (FIN, vL16, FIN, vL16))
spin(cDONE, 4, LS)
dma_wo(1, WOA, 48, 2, False)
spin(cWB, 4, 1)
w_reads(vWB, 0); w_reads(vWB, 1)
for g in range(NK):
    a.vmwait(("o", g)); a.dswait((vWB, g))
    mfma(vr(accB(0), 16), Wf(g, 0), Of(g), "0" if g == 0 else None)
    if g < NK - 2: w_reads(vWB, g + 2)
    mfma(vr(accB(1), 16), Wf(g, 1), Of(g), "0" if g == 0 else None)
a.vmwait_all()
arrive(cWO)
stamp("h_p3b_done")
poll(2)
stamp("h_f5seen")
spin(cWO, 4, 0)
a.label("L_p3a")
o_loads(0)
w_reads(vWA, 0); w_reads(vWA, 1)
a("v_mov_b32 v5, 0")
for g in range(NK):
    a.vmwait(("o", g)); a.dswait((vWA, g))
    if g == 0: stamp("h_oa0")
    mfma(vr(accA(1), 16), Wf(g, 1), Of(g), vr(accB(1), 16) if g == 0 else None)
    if g < NK - 2: w_reads(vWA, g + 2)
    mfma(vr(accA(0), 16), Wf(g, 0), Of(g), vr(accB(0), 16) if g == 0 else None)
    if g & 1: a("v_max3_u32 v5, v5, v%d, v%d" % (60 + 4 * g, 64 + 4 * g))
a("v_cmp_eq_u32 vcc, -1, v5\ns_cmp_eq_u64 vcc, 0\ns_cbranch_scc1 L_p3ok")
a.nop(8)
bounded("L_p3a")
a.label("L_p3ok")
a.nop(7)
for i in range(4): a.ds("ds_write_b128 v6, %s offset:%d" % (vr(accA(1) + 4 * i, 4), 1024 * i))
a.dswait_all()
a("s_barrier")
for i in range(4): a.ds("ds_read_b128 %s, v7 offset:%d" % (vr(64 + 4 * i, 4), 1024 * i), i)
for i in range(4):
    a.dswait(i)
    for q in range(2): a("v_pk_add_f32 %s, %s, %s" % (vr(accA(0) + 4 * i + 2 * q, 2), vr(accA(0) + 4 * i + 2 * q, 2), vr(64 + 4 * i + 2 * q, 2)))
    for q in range(2): a("v_cvt_pk_bf16_f32 v%d, v%d, v%d" % (80 + 2 * i + q, accA(0) + 4 * i + 2 * q, accA(0) + 4 * i + 2 * q + 1))
    if i & 1: a.vm("buffer_store_dwordx4 %s, %s, %s, 0 offen offset:%d" % (vr(80 + 2 * i - 2, 4), vOUT, OUT, 16 * (i - 1)))
a("s_or_b32 s73, s2, s3\ns_cmp_lg_u32 s73, 0\ns_cbranch_scc1 L_fin")
a("v_mov_b32 v2, %d\nv_mov_b32 v3, %d\nv_cndmask_b32 v2, v2, v3, %s" % (OOB, EPOCH_OFF, sMZ))
a.vm("buffer_store_dword %s, v2, %s, 0 offen sc1" % (vTAG, WS))
a("s_branch L_fin")

a.label("L_main")
a.vmq = []; a.lgq = []
a("s_waitcnt lgkmcnt(0)")
if MPRIO: a("s_setprio %d" % MPRIO)
epoch_load()
roles()
srd(WS, pWs, WS_SIZE)
a("v_lshlrev_b32 v2, 2, v1\nv_add_u32 v2, %d, v2\nds_write_b32 v2, %s" % (RSV, vZERO))
o_addr(0)
a("s_mov_b32 %s, 0" % sSTORED)
def Xm(buf, rtl): return vr(32 + 16 * buf + 4 * rtl, 4)
def Wm(buf, ct, e=None):
    b = 40 + 16 * buf + 4 * ct
    return vr(b, 4) if e is None else vr(b + 2 * e, 2)
def acc1(rtl, ct): return 64 + 32 * rtl + 16 * ct
def main_p1(T):
    a.vmq = []; a.lgq = []
    tmp = ["v2", "v3", "v4", "v5"]
    a("s_and_b32 s73, s3, 1\ns_lshr_b32 s74, s3, 1\ns_lshl_b32 s75, s73, 13")
    x_addr(128, T, "s75", tmp)
    tr_addr("v5", T, "v2", "v3", "v4")
    a("s_lshl_b32 s75, s74, 13\ns_add_u32 s75, s75, 16384\nv_add_u32 v140, s75, v5\nv_xor_b32 v141, 64, v140")
    for ct in range(2): a("v_add_u32 v%d, 65536, v%d" % (142 + ct, 140 + ct))
    a("s_lshl_b32 s75, %s, 2\ns_lshl_b32 s76, s73, 1\ns_add_u32 s75, s75, s76" % sRB)
    a("s_lshl_b32 s76, %s, 1\ns_add_u32 s76, s76, s74" % sJ)
    if T:
        a("s_mul_i32 s77, s75, %d\ns_lshl_b32 s78, s76, 12\ns_add_u32 s78, s78, s77\nv_add_u32 v146, s78, %s" % (T_TILE, vL16))
        a("s_cmp_lt_u32 s76, 7\ns_cselect_b32 s84, 0x%x, 1.0\ns_mov_b32 %s, %d" % (f32(QSCALE), sRTL, T_TILE))
    else:
        a("s_lshl_b32 s75, s75, 11\ns_add_u32 s75, s75, %d" % N_OFF)
        a("s_sub_u32 s76, s76, 14\ns_sub_u32 s77, s76, 7\ns_cmp_lt_u32 s76, 7\ns_cselect_b32 s76, s76, s77\ns_cselect_b32 s77, 0, %d\ns_add_u32 s77, s77, s75" % N_KIND)
        for ct in range(2):
            a("s_lshl_b32 s73, s76, 6\ns_add_u32 s73, s73, %d\nv_and_b32 v6, 31, v1\nv_add_u32 v6, s73, v6" % (32 * ct))
            n_addr("v%d" % (146 + ct), "s77", "v6", True, tmp)
        a("s_lshl_b32 s73, s76, 6\ns_add_u32 s74, s73, 27\ns_mul_i32 s74, s74, 2341\ns_lshr_b32 s74, s74, 16\ns_add_u32 s73, s73, 64")
        a("v_lshrrev_b32 v2, 4, v1\nv_add_u32 v2, s74, v2\nv_mul_u32_u24 v3, 28, v2\nv_cmp_gt_u32 vcc, s73, v3")
        a("v_lshlrev_b32 v2, 17, v2\nv_bfe_u32 v3, v1, 2, 2\nv_lshl_add_u32 v2, v3, 9, v2\nv_and_b32 v3, 3, v1\nv_lshl_add_u32 v2, v3, 4, v2")
        a("v_add_u32 v2, s77, v2\nv_add_u32 v2, %d, v2\nv_mov_b32 v4, %d\nv_cndmask_b32 v148, v4, v2, vcc" % (28 * 16, OOB))
        a("v_cmp_eq_u32 vcc, 0, v3\nv_mov_b32 v4, 0x3f803f80\ns_nop 0\nv_cndmask_b32 v152, %s, v4, vcc" % vZERO)
        a("v_mov_b32 v153, v152\nv_mov_b32 v154, v152\nv_mov_b32 v155, v152")
    early = opt("early", 0)
    def small_stores():
        if not T:
            for rtl in range(2): a.vm("buffer_store_dwordx4 v[152:155], v148, %s, 0 offen offset:%d sc1" % (WS, rtl * 2048))
    if early == 1: small_stores()
    def mm(rtl, ct, g):
        if T: mfma(vr(acc1(rtl, ct), 16), Wm(g & 1, ct), Xm(g & 1, rtl), "0" if g == 0 else None)
        else: mfma(vr(acc1(rtl, ct), 16), Xm(g & 1, rtl), Wm(g & 1, ct), "0" if g == 0 else None)
    def reads(g):
        s, t = g >> 2, g & 3; slot = SLOT[s]; hi, lo = slot >> 1, (slot & 1) * 32768
        rx = [lambda rtl=rtl: a.ds("ds_read_b128 %s, v%d offset:%d" % (Xm(g & 1, rtl), 128 + 4 * hi + t, lo + rtl * 4096), g) for rtl in range(2)]
        rw = [lambda ct=ct, e=e: a.ds("ds_read_b64_tr_b16 %s, v%d offset:%d" % (Wm(g & 1, ct, e), 140 + 2 * hi + ct, lo + t * 2048 + e * 512), g) for ct in range(2) for e in range(2)]
        return [rx[0], rw[0], rw[1], rw[2], rw[3], rx[1]]
    get_tag()
    a("s_barrier")
    stamp("m_slab0")
    for r in reads(0): r()
    def XL(t, rtl): return vr(192 + 16 * t + 4 * rtl, 4)
    def WL(t, ct, e=None):
        b = 200 + 16 * t + 4 * ct
        return vr(b, 4) if e is None else vr(b + 2 * e, 2)
    def reads_last(t):
        slot = SLOT[6]; hi, lo = slot >> 1, (slot & 1) * 32768
        rx = [lambda rtl=rtl: a.ds("ds_read_b128 %s, v%d offset:%d" % (XL(t, rtl), 128 + 4 * hi + t, lo + rtl * 4096), ("x", rtl, t)) for rtl in range(2)]
        rw = [lambda ct=ct, e=e: a.ds("ds_read_b64_tr_b16 %s, v%d offset:%d" % (WL(t, ct, e), 140 + 2 * hi + ct, lo + t * 2048 + e * 512), ("w", ct, t)) for ct in range(2) for e in range(2)]
        return rx, rw
    RL = [reads_last(t) for t in range(4)]
    lastq = sum([[RL[t][0][0], RL[t][1][0], RL[t][1][1]] for t in range(4)], []) + sum([[RL[t][1][2], RL[t][1][3]] for t in range(4)], []) + [RL[t][0][1] for t in range(4)]
    for g in range(24):
        a.dswait(g)
        mm(0, 0, g)
        if (g & 3) == 3: a("s_barrier")
        nxt = reads(g + 1) if g < 23 else lastq[:9]
        for r in nxt[:3]: r()
        mm(0, 1, g)
        for r in nxt[3:6]: r()
        mm(1, 0, g)
        for r in nxt[6:]: r()
        mm(1, 1, g)
    lastq = lastq[9:]
    def epi(rtl, ct):
        b = acc1(rtl, ct); o = 160 + 8 * (2 * rtl + ct); th = []
        for m in range(2):
            for q in range(4 * m, 4 * m + 4):
                if T: th += [lambda k=k: a("v_mul_f32 v%d, s84, v%d" % (k, k)) for k in (b + 2 * q, b + 2 * q + 1)]
                th.append(lambda q=q: a("v_cvt_pk_bf16_f32 v%d, v%d, v%d" % (o + q, b + 2 * q, b + 2 * q + 1)))
            if T: th.append(lambda m=m: a.vm("buffer_store_dwordx4 %s, v146, %s, %s offen offset:%d sc1" % (vr(o + 4 * m, 4), WS, sRTL if rtl else "0", ct * 2048 + m * 1024)))
            else: th.append(lambda m=m: a.vm("buffer_store_dwordx4 %s, v%d, %s, 0 offen offset:%d sc1" % (vr(o + 4 * m, 4), 146 + ct, WS, rtl * 2048 + m * 1024)))
        return th
    pend = []
    for ti, (rtl, ct) in enumerate([(0, 0), (0, 1), (1, 1), (1, 0)]):
        for t in range(4):
            a.dswait(("x", rtl, t)); a.dswait(("w", ct, t))
            if T: mfma(vr(acc1(rtl, ct), 16), WL(t, ct), XL(t, rtl))
            else: mfma(vr(acc1(rtl, ct), 16), XL(t, rtl), WL(t, ct))
            for _ in range(4):
                if lastq: lastq.pop(0)()
            if ti == 2 and t == 3: arrive(cH2)
            if ti == 1 and t == 3: a.nop(1)
            if ti >= 2 or (ti == 1 and t == 3):
                for _ in range(6 if T else 3):
                    if pend: pend.pop(0)()
        pend += epi(rtl, ct)
    stamp("m_r1")
    n0 = len(pend) - len(epi(1, 0))
    for _ in range(n0): pend.pop(0)()
    a.nop(max(0, 12 - n0))
    while pend: pend.pop(0)()
    if early == 0: small_stores()
    stamp("m_stored")
a("s_cmp_ge_u32 %s, 14\ns_cbranch_scc1 L_m_gate" % sJ)
a("s_cmp_ge_u32 %s, 7\ns_cbranch_scc1 L_m_N" % sJ)
main_p1(True)
a("s_branch L_m_join")
a.label("L_m_N")
main_p1(False)
a("s_branch L_m_join")
a.label("L_m_gate")
srd(X, pX, 2048 * 896); srd(GW, pG, 896)
a.vmq = []
a("s_lshl_b32 s75, %s, 7\ns_sub_u32 s76, %s, 14\ns_lshl_b32 s76, s76, 6\ns_add_u32 s75, s75, s76\ns_lshl_b32 s76, s3, 4\ns_add_u32 s75, s75, s76" % (sRB, sJ))
a("v_lshrrev_b32 v2, 3, v1\nv_add_u32 v2, s75, v2\nv_and_b32 v3, 7, v1\nv_lshlrev_b32 v3, 4, v3")
a("v_mul_u32_u24 v4, 896, v2\nv_add_u32 v4, v4, v3\nv_add_u32 v5, %d, v4" % (8 * 896))
for i in range(7):
    a.vm("buffer_load_dwordx4 %s, v3, %s, 0 offen offset:%d" % (vr(64 + 4 * i, 4), GW, 128 * i))
    a.vm("buffer_load_dwordx4 %s, v4, %s, 0 offen offset:%d" % (vr(96 + 4 * i, 4), X, 128 * i))
    a.vm("buffer_load_dwordx4 %s, v5, %s, 0 offen offset:%d" % (vr(128 + 4 * i, 4), X, 128 * i))
a("v_mov_b32 v6, 0\nv_mov_b32 v7, 0")
a("v_lshlrev_b32 v2, 2, v2\nv_add_u32 v2, %d, v2\nv_mov_b32 v8, %d\nv_cmp_eq_u32 vcc, 0, v3\ns_nop 1\nv_cndmask_b32 v9, v8, v2, vcc" % (G_OFF, OOB))
get_tag()
a("s_barrier")
arrive(cH2)
a.vmwait_all()
prefetch_wo(0)
for i in range(28):
    a("v_dot2_f32_bf16 v6, v%d, v%d, v6\nv_dot2_f32_bf16 v7, v%d, v%d, v7" % (64 + i, 96 + i, 64 + i, 128 + i))
a.nop(3)
for dpp in ("quad_perm:[1,0,3,2]", "quad_perm:[2,3,0,1]", "row_half_mirror"):
    a("v_add_f32_dpp v6, v6, v6 %s row_mask:0xf bank_mask:0xf\nv_add_f32_dpp v7, v7, v7 %s row_mask:0xf bank_mask:0xf" % (dpp, dpp))
    a.nop(2)
for r in (6, 7):
    a("v_mul_f32 v%d, 0x%x, v%d\nv_exp_f32 v%d, v%d\ns_nop 0\nv_add_f32 v%d, 1.0, v%d\nv_rcp_f32 v%d, v%d\ns_nop 0" % (r, f32(-LOG2E), r, r, r, r, r, r, r))
a.vm("buffer_store_dword v6, v9, %s, 0 offen sc1" % WS)
a.vm("buffer_store_dword v7, v9, %s, 0 offen offset:32 sc1" % WS)

a.label("L_m_join")
a.vmq = ["st"]; a.lgq = []
vK, vV, vQ, vG, vIDX = "v26", "v25", "v24", "v23", "v22"
def Qf(tau, m): return 32 + 8 * tau + 4 * m
def KV(b, k): return vr(192 + 16 * b + 4 * k, 4)
def Oa(tau): return 128 + 16 * tau
def Sb(tau): return 64 + 16 * tau
a("s_add_u32 s73, %s, 7\ns_lshr_b32 s73, s73, 1\ns_add_u32 s74, %s, 7\ns_lshr_b32 s74, s74, 1\ns_add_u32 s75, %s, 14\ns_lshr_b32 s75, s75, 1\ns_add_u32 s76, %s, 14\ns_lshr_b32 s76, s76, 1" % (sC0, sC1, sC0, sC1))
a("s_lshr_b32 s77, %s, 1\ns_lshr_b32 s78, %s, 1\ns_lshr_b32 s83, s3, 1\ns_add_u32 s83, s83, 14" % (sC0, sC1))
lane_select("v2", [(0, "s73"), (4, "s74"), (8, "s75"), (12, "s76"), (16, "s77"), (17, "s78"), (18, "s83")], "v3")
a("s_lshl_b32 s73, s3, 2\nv_and_b32 v3, 3, v1\nv_add_u32 v3, s73, v3\nv_mov_b32 v4, %s\nv_cmp_le_u32 vcc, 16, v1\ns_nop 1\nv_cndmask_b32 v3, v3, v4, vcc" % sQB)
a("v_lshl_add_u32 v2, v2, 4, v3\nv_lshlrev_b32 v2, 7, v2\nv_add_u32 %s, %d, v2" % (vPOLL, F1))
a("s_lshl_b32 s73, %s, 9" % sU0)
a("s_mul_i32 s74, s3, %d\ns_add_u32 s74, s74, s73\ns_add_u32 s74, s74, %d\nv_add_u32 %s, s74, %s" % (16 * T_TILE, T_OFF + 7 * 4096, vK, vL16))
a("s_lshl_b32 s74, %s, 17\ns_lshl_b32 s75, s3, 15\ns_add_u32 s74, s74, s75\ns_add_u32 s74, s74, %d\nv_add_u32 %s, s74, %s" % (sH, N_OFF, vV, vL16))
a("s_mul_i32 s74, %s, %d\ns_add_u32 s74, s74, s73\nv_add_u32 %s, s74, %s" % (sQB, 4 * T_TILE, vQ, vL16))
a("s_cmp_eq_u32 %s, 0\ns_mov_b32 s86, 0\ns_cselect_b32 s87, -1, 0\ns_cselect_b32 s88, 0, -1\ns_mov_b32 s89, 0" % sODD)
a("v_mov_b32 %s, 0xdddddddd" % vIDX)
for tau in range(3):
    a("s_add_u32 s73, s3, %d\ns_and_b32 s73, s73, 3\ns_mul_i32 s73, s73, 12288\ns_add_u32 s73, s73, %d\nv_add_u32 v%d, s73, %s" % (1 + tau, RED + tau * 4096, 12 + tau, vL16))
a("s_mul_i32 s73, s3, 12288\ns_add_u32 s73, s73, %d\nv_add_u32 v15, s73, %s" % (RED, vL16))
a("s_lshl_b32 s73, %s, 2\ns_add_u32 s73, s73, s3\ns_lshl_b32 s73, s73, 4\ns_add_u32 s73, s73, %s\ns_lshl_b32 s73, s73, 7\ns_add_u32 s73, s73, %d" % (sQB, sH, F5))
a("v_mov_b32 v2, %d\nv_mov_b32 v3, s73\nv_cndmask_b32 v11, v2, v3, %s" % (OOB, sMZ))
def zero_o():
    for i in range(64): a("v_mov_b32 v%d, 0" % (128 + i))
zero_o()
for tau in range(4):
    a("s_add_u32 s73, s3, %d\ns_and_b32 s73, s73, 3\ns_mul_i32 s%d, s73, %d" % (1 + tau, 74 + tau, T_TILE))
if MPRIO: a("s_setprio %d" % (1 if DP else 0))
a.vmwait_all()
stamp("m_drained")
publish(cM1, sF12, F1)
if PDELAY: a("s_sleep %d" % PDELAY)
poll(PSLEEP)
stamp("m_f1seen")
def kv_load(kt, k):
    if k < 2: a.vm("buffer_load_dwordx4 %s, %s, %s, %s offen offset:%d sc1" % (KV(kt & 3, k), vK, WS, sSK, 1024 * k), "k%d" % kt)
    else: a.vm("buffer_load_dwordx4 %s, %s, %s, %s offen offset:%d sc1" % (KV(kt & 3, k), vV, WS, sSV, 1024 * (k - 2)), "v%d" % kt)
def kv_off(kt, k): a("s_mov_b32 %s, %d" % ((sSK, kt * T_TILE) if k == 0 else (sSV, kt * 2048)))
def q_load(tau):
    for m in range(2): a.vm("buffer_load_dwordx4 %s, %s, %s, s%d offen offset:%d sc1" % (vr(Qf(tau, m), 4), vQ, WS, 74 + tau, 1024 * m), "q%d" % tau)
def q_fix(tau):
    for k in (0, 1): a("v_cndmask_b32 v%d, v%d, %s, %s" % (Qf(tau, 0) + k, Qf(tau, 0) + k, vZERO, sMB))
    for k in (2, 3): a("v_cndmask_b32 v%d, v%d, %s, %s" % (Qf(tau, 1) + k, Qf(tau, 1) + k, vZERO, sMA))
kv_off(0, 0); kv_off(0, 1)
kv_load(0, 0); kv_load(0, 1); q_load(0); q_load(1); kv_load(0, 2); kv_load(0, 3); q_load(2); q_load(3)
kv_off(1, 0); kv_off(1, 1)
for k in range(4): kv_load(1, k)
load_g(vG)
arrive(cGO, wake=True)
a("s_mov_b32 s77, 8")
def M(n, m):
    kt, tau = n >> 2, n & 3
    mfma(vr(Sb(tau), 16), KV(kt & 3, m), vr(Qf(tau, m), 4), "0" if m == 0 else None)
def P(n, m):
    kt, tau = n >> 2, n & 3
    a("v_smfmac_f32_32x32x32_bf16 %s, %s, %s, %s" % (vr(Oa(tau), 16), KV(kt & 3, 2 + m), vr(Sb(tau) + 8 * m, 8), vIDX))
def E(n, q):
    for k in range(4 * q, 4 * q + 4): a("v_exp_f32 v%d, v%d" % (Sb(n & 3) + k, Sb(n & 3) + k))
def red_write(tau, i): a.ds("ds_write_b128 v%d, %s offset:%d" % (12 + tau, vr(Oa(tau) + 4 * i, 4), 1024 * i))
a.vmwait("q0"); q_fix(0)
stamp("m_attn0"); stamp("R_attn0", True)
a.nop(1)
M(0, 0); M(0, 1)
a.vmwait("q1"); q_fix(1)
a.nop(6)
sched = {n: [] for n in range(64)}
for i, (kt, k) in enumerate([(2, 0), (2, 1), (2, 2), (2, 3), (3, 0), (3, 1), (3, 2), (3, 3)]): sched[i // 2].append((kt, k))
for kt in range(4, 16):
    for k in range(4): sched[4 * (kt - 3) + k].append((kt, k))
for n in range(64):
    ld = sched[n]
    if n < 63: M(n + 1, 0)
    for kt, k in ld:
        if k in (0, 2): kv_off(kt, k >> 1)
    E(n, 0)
    if n < 63: M(n + 1, 1)
    if n == 0: a.vmwait("v0")
    E(n, 1)
    if n > 0: P(n - 1, 1)
    if ld: kv_load(*ld[0])
    if HOIST and n >= 62: red_write(n - 62, 0); red_write(n - 62, 1)
    E(n, 2)
    P(n, 0)
    if len(ld) > 1: kv_load(*ld[1])
    if HOIST and n >= 62: red_write(n - 62, 2); red_write(n - 62, 3)
    if n < 2: a.vmwait("q%d" % (n + 2))
    elif (n & 3) == 2 and n + 2 < 64: a.vmwait("k%d" % ((n + 2) // 4))
    elif (n & 3) == 3 and n + 1 < 64: a.vmwait("v%d" % ((n + 1) // 4))
    E(n, 3)
    if n < 2: q_fix(n + 2)
a.nop(2)
P(63, 1)
stamp("m_attn_end"); stamp("R_attn_end", True)
if HOIST: a("s_branch L_red2")
a.label("L_reduce")
for tau in range(2):
    for i in range(4): red_write(tau, i)
a.label("L_red2")
for i in range(4): red_write(2, i)
arrive(cRD)
spin(cRD, "s77", 0)
for k in range(12):
    a.ds("ds_read_b128 %s, v15 offset:%d" % (vr(64 + 4 * k, 4), 1024 * (4 * (k % 3) + k // 3)), k // 3)
O3 = Oa(3)
for i in (3, 0, 1, 2):
    pass
for i in range(4):
    a.dswait(i)
    for s in range(3):
        for q in range(2):
            a("v_pk_add_f32 %s, %s, %s" % (vr(O3 + 4 * i + 2 * q, 2), vr(O3 + 4 * i + 2 * q, 2), vr(64 + 12 * i + 4 * s + 2 * q, 2)))
bcast_hi("v4", vr(O3 + 12), "v5")
a("v_rcp_f32 v6, v4\nv_mov_b32 v8, 0\nv_mov_b32 v9, 0\nv_mul_f32 v6, v6, %s\nv_mov_b32 v7, v6" % vG)
for q in range(8):
    a("v_pk_fma_f32 v[8:9], %s, 0, v[8:9] op_sel_hi:[1,0,1]" % vr(O3 + 2 * q, 2))
    a("v_pk_mul_f32 %s, %s, v[6:7]" % (vr(64 + 2 * q, 2), vr(O3 + 2 * q, 2)))
a("v_add_f32 v8, v8, v9\nv_add_f32 v4, v4, v8")
a("v_cmp_nle_f32 vcc, 0x%x, v4\ns_mov_b64 s[94:95], vcc\nv_cmp_nge_f32 vcc, 0x%x, v4" % (f32(2.0 ** -64), f32(2.0 ** 64)))
for q in range(8): a("v_cvt_pk_bf16_f32 v%d, v%d, v%d" % (80 + q, 64 + 2 * q, 65 + 2 * q))
for q in (0, 4): a("v_min_u32 v%d, -2, v%d" % (80 + q, 80 + q))
a("s_or_b64 vcc, vcc, s[94:95]\ns_cmp_lg_u64 vcc, 0\ns_cselect_b32 s74, 0x101, %s\ns_andn2_b32 s74, s74, %s" % ("s78" if FORCE_FB else "1", sFB))
a("s_lshr_b32 s75, s74, 8\ns_or_b32 s75, s75, %s\ns_cmp_lg_u32 s75, 0\nv_mov_b32 v3, s74\ns_cbranch_scc1 L_nostore" % sSTORED)
store_o(80, "oa")
a.vm("buffer_store_dword %s, v11, %s, 0 offen sc1" % (vTAG, WS))
a("s_mov_b32 %s, 1" % sSTORED)
a.label("L_nostore")
stamp("m_oa_stored")
arrive(cVT, False, "v3")
a("s_cmp_lg_u32 %s, 0\ns_cbranch_scc1 L_mdone" % sFB)
spin(cVT, 4, 0, 0xff)
a("s_lshr_b32 s73, s83, 8\ns_cmp_lg_u32 s73, 0\ns_cbranch_scc1 L_fallback")
a.label("L_mdone")
arrive(cDONE, wake=True)
a.label("L_fin")
stamp("end")
if STAMP:
    a("v_lshlrev_b32 v2, 2, v1\ns_lshl_b32 s73, s2, 3\ns_add_u32 s73, s73, s39\ns_lshl_b32 s73, s73, 8\ns_add_u32 s73, s73, %d\ns_nop 4" % STAMP_OFF)
    a("buffer_store_dword %s, v2, %s, s73 offen" % (vSTAMP, WS))
if SPINTO or ENC >= 0:
    a("s_waitcnt vmcnt(0)")
    if ENC >= 0: a("s_sub_u32 s100, s100, s98\ns_min_u32 s100, s100, 5000\ns_add_u32 s100, s100, 4000")
    else: a("s_mov_b32 s100, %d" % SPINTO)
    a.label("L_spinto")
    a("s_sleep 8\ns_memrealtime s[74:75]\ns_waitcnt lgkmcnt(0)\ns_sub_u32 s74, s74, s98\ns_cmp_lt_u32 s74, s100\ns_cbranch_scc1 L_spinto")
a.label("L_end")
a("s_endpgm")

a.label("L_fallback")
a("s_mov_b32 %s, 0x100\ns_mov_b32 s77, 12\ns_waitcnt vmcnt(0)" % sFB)
for t in range(4): a("v_mov_b32 v%d, 0xff800000" % (7 + t))
a("s_mov_b32 %s, 0" % sSK)
a.label("L_fb1")
for m in range(2): kv_load(0, m)
a("s_waitcnt vmcnt(0)")
for t in range(4):
    M(t, 0); M(t, 1)
a.nop(12)
for t in range(4):
    for q in range(8): a("v_max3_f32 v%d, v%d, v%d, v%d" % (7 + t, Sb(t) + 2 * q, Sb(t) + 2 * q + 1, 7 + t))
a("s_add_u32 %s, %s, %d\ns_cmp_lt_u32 %s, %d\ns_cbranch_scc1 L_fb1" % (sSK, sSK, T_TILE, sSK, 16 * T_TILE))
for t in range(4):
    a("v_mov_b32 v2, v%d\nv_mov_b32 v3, v%d\ns_nop 1\nv_permlane32_swap_b32 v2, v3\nv_max_f32 v2, v2, v3" % (7 + t, 7 + t))
    a("s_add_u32 s73, s3, %d\ns_and_b32 s73, s73, 3\ns_lshl_b32 s73, s73, 10\ns_add_u32 s73, s73, %d\nv_lshlrev_b32 v4, 2, v1\nv_add_u32 v%d, s73, v4" % (1 + t, RED, 64 + t))
    a("s_lshl_b32 s73, s3, 8\nv_add_u32 v4, s73, v%d\nds_write_b32 v4, v2" % (64 + t))
arrive(cFB0)
spin(cFB0, 4)
for t in range(4):
    for k in range(4): a("ds_read_b32 v%d, v%d offset:%d" % (2 + k, 64 + t, 256 * k))
    a("s_waitcnt lgkmcnt(0)\nv_max3_f32 v2, v2, v3, v4\nv_max_f32 v%d, v2, v5" % (7 + t))
arrive(cFB1)
spin(cFB1, 4)
zero_o()
a("s_mov_b32 %s, 0\ns_mov_b32 %s, 0" % (sSK, sSV))
for t in range(4): a("v_mov_b32 v%d, v%d" % (208 + t, 7 + t))
a.label("L_fb2")
for k in range(4): kv_load(0, k)
a("s_waitcnt vmcnt(0)")
for t in range(4):
    M(t, 0); M(t, 1)
a.nop(12)
for t in range(4):
    for q in range(16): a("v_sub_f32 v%d, v%d, v%d" % (Sb(t) + q, Sb(t) + q, 208 + t))
    for q in range(16): a("v_exp_f32 v%d, v%d" % (Sb(t) + q, Sb(t) + q))
a.nop(2)
for t in range(4):
    P(t, 0); P(t, 1)
a.nop(12)
a("s_add_u32 %s, %s, %d\ns_add_u32 %s, %s, 2048\ns_cmp_lt_u32 %s, %d\ns_cbranch_scc1 L_fb2" % (sSK, sSK, T_TILE, sSV, sSV, sSV, 16 * 2048))
a("s_branch L_reduce")
a.label("L_codeend")

if FORCE_FB:
    i = a.lines.index("L_red2:")
    a.lines[i + 1:i + 1] = ["s_add_u32 s78, s3, 1", "s_and_b32 s78, s78, 2", "s_lshl_b32 s78, s78, 7", "s_or_b32 s78, s78, 1"]
probs = check(a.lines)
for p in sorted(set(probs)): print(p, file=sys.stderr)
hdr = open("cdna_kernels/%s.s.ref" % NAME).read().split("; Override launch")[0]
out = hdr + ("; stamps: %s\n" % " ".join(STAMPS) if STAMP else "") + """; Fused single-launch kernel: QKV projections -> softmax attention + linear attention -> gated output projection.
; @launch grid=(256,1,1) block=(512,1,1) lds=%d
.amdgcn_target "amdgcn-amd-amdhsa--gfx950"
.text
.globl %s_kernel
.p2align 8
.type %s_kernel,@function
%s_kernel:
""" % (LDS_BYTES, NAME, NAME, NAME) + a.text() + """.section .rodata,"a"
.p2align 6
.amdhsa_kernel %s_kernel
  .amdhsa_next_free_vgpr 256
  .amdhsa_next_free_sgpr 102
  .amdhsa_accum_offset 256
  .amdhsa_group_segment_fixed_size 0
  .amdhsa_kernarg_size 80
  .amdhsa_user_sgpr_count 2
  .amdhsa_user_sgpr_kernarg_segment_ptr 1
  .amdhsa_system_sgpr_workgroup_id_x 1
.end_amdhsa_kernel
""" % NAME
dst = [x for x in sys.argv[1:] if not x.startswith("--")]
open(dst[0] if dst else "cdna_kernels/%s.s" % NAME, "w").write(out)
open("stamps.txt", "w").write("\n".join(STAMPS))
print("hazards:", len(set(probs)), "lines:", len(a.lines), file=sys.stderr)
```

```python
import sys, struct
from asmlib import Asm, check

NAME = "gated_mix__mha_block__linear_attn_block__prompt"
def flag(n): return ("--" + n) in sys.argv
def opt(n, d):
    for x in sys.argv:
        if x.startswith("--%s=" % n): return int(x.split("=")[1])
    return d
LITE = flag("lite")
STAMP, FORCE_FB = flag("stamp") or LITE, flag("force-fallback")
SPINTO, ENC = opt("spinto", 0), opt("enc", -1)
AHEAD = opt("ahead", 3); FIRST = min(AHEAD, opt("first", 2))
PREF, WOPF, XPF = opt("pref", 1), opt("wopf", 6), opt("xpf", 0)
PDELAY, PSLEEP, PACE = opt("pdelay", 20), opt("psleep", 6), opt("pace", 5)
HPRIO, MPRIO = opt("hprio", 1), opt("mprio", 2)
WAKE = 0; LONG = opt("long", 16)
HOIST = opt("hoist", 1); WBEARLY = opt("wbearly", 0); WBG0 = opt("wbg0", 12); WAEARLY = opt("waearly", 0); B1PACE = opt("b1pace", 0)

T_OFF, T_TILE = 0, 21 * 4096
N_OFF, N_KIND = 0x540000, 0x200000
O_OFF, O_TILE = 0xB40000, 65536
SLAB_OFF = 0xF40000
G_OFF = 0xFC0000
F1, F2 = 0xFC8000, 0xFD0000
EPOCH_OFF = 0xFF0000
STAMP_OFF = 0x1000000
F5, F4, F3 = 0x1080000, 0x10A0000, 0x10C0000
WS_SIZE = 0x1100000
OOB = 0x40000000
RED, W2B, RSV, FIN = 106496, 98304, 155648, 114688
KVX = RSV + 1024
cM1, cW2, cH2, cF2, cWO, cDONE, cF3, cKV, cF4, cREL, cRD, cVT, cFB0, cFB1, cWB, cGO = range(16)
LDS_BYTES = 163840
SPIN = 1 << 18
WBYTES = 448 * 2688
SLOT = [0, 1, 2, 3, 0, 1, 2]

def f32(x): return struct.unpack("<I", struct.pack("<f", x))[0]
LOG2E = 1.4426950408889634
QSCALE = 28 ** -0.5 * LOG2E

X, W0, W1, W2, WS, OUT, WOA, WOB = ["s[%d:%d]" % (4 + 4 * i, 7 + 4 * i) for i in range(8)]
GW = W0
pX, pWA, pWoA, pWB, pWoB, pG, pOut, pWs = [("s%d" % i, "s%d" % (i + 1)) for i in (40, 42, 44, 48, 50, 52, 54, 58)]
sTAG, sRB, sJ, sH, sQB, sU0, sODD, sRB2, sCC, sP3 = ["s%d" % i for i in range(60, 70)]
sC0, sC1, sRTL = "s70", "s71", "s72"
sCNT, sFB, sMX, sMWc = "s79", "s80", "s81", "s82"
sSCL = "s[84:85]"
sMA, sMB, sMZ = "s[86:87]", "s[88:89]", "s[90:91]"
sSK, sSV = "s92", "s93"
sF12, sF34 = "s97", "s96"
sSTORED = "s38"
vL16, vTAG, vFL, vPOLL, vZERO, vSTAMP, vRSV, vONE, vDUMMY = "v0", "v30", "v29", "v28", "v27", "v31", "v17", "v16", "v18"
OAD = 19
STAMPS = {}
a = Asm()

def stamp(name, cyc=False):
    if name not in STAMPS: STAMPS[name] = len(STAMPS)
    if STAMP and (not LITE or name in ("entry", "end")):
        a("%s s[98:99]\ns_waitcnt lgkmcnt(0)\nv_writelane_b32 %s, s98, %d" % ("s_memtime" if cyc else "s_memrealtime", vSTAMP, STAMPS[name]))
        a.lgq = []
    if ENC == STAMPS[name]:
        a("s_memrealtime s[100:101]\ns_waitcnt lgkmcnt(0)"); a.lgq = []
def vr(b, n=1): return "v%d" % b if n == 1 else "v[%d:%d]" % (b, b + n - 1)
def mfma(d, A, B, c=None): a("v_mfma_f32_32x32x16_bf16 %s, %s, %s, %s" % (d, A, B, d if c is None else c))
def srd(reg, p, size):
    n = int(reg[2:].split(":")[0])
    a("s_mov_b32 s%d, %s\ns_mov_b32 s%d, %s\ns_mov_b32 s%d, %d\ns_mov_b32 s%d, 0x20000" % (n, p[0], n + 1, p[1], n + 2, size, n + 3))
def swap23(dst, src, t):
    a("v_and_b32 %s, 0x13, %s\nv_and_b32 %s, 4, %s\nv_lshl_or_b32 %s, %s, 1, %s\nv_lshrrev_b32 %s, 1, %s\nv_and_or_b32 %s, %s, 4, %s" % (dst, src, t, src, dst, t, dst, t, src, dst, t, dst))
def lane_select(dst, items, t):
    a("v_mov_b32 %s, %s" % (dst, items[0][1]))
    for lo, s in items[1:]:
        a("v_cmp_le_u32 vcc, %d, v1\nv_mov_b32 %s, %s\ns_nop 0\nv_cndmask_b32 %s, %s, %s, vcc" % (lo, t, s, dst, dst, t))
def bounded(top):
    a("s_sub_u32 %s, %s, 1\ns_cbranch_scc0 %s\ns_mov_b32 %s, 0" % (sCNT, sCNT, top, sCNT))
def poll(sleep=0):
    top, done = a.newlabel("poll"), a.newlabel("polled")
    a.label(top)
    a("buffer_load_dword v4, %s, %s, 0 offen sc1\ns_waitcnt vmcnt(0)" % (vPOLL, WS)); a.vmq = []
    a("v_cmp_ne_u32 vcc, %s, v4\ns_cmp_eq_u64 vcc, 0\ns_cbranch_scc1 %s" % (sTAG, done))
    if sleep: a("s_sleep %d" % sleep)
    bounded(top)
    a.label(done)
def flag_store(soff, base):
    a("s_add_u32 s73, %s, %d\nv_mov_b32 v2, %d\nv_mov_b32 v3, s73\nv_cndmask_b32 %s, v2, v3, %s" % (soff, base, OOB, vFL, sMZ))
    a.vm("buffer_store_dword %s, %s, %s, 0 offen sc1" % (vTAG, vFL, WS), "flag")
def arrive(c, rtn=False, val=None, wake=False):
    a("s_mov_b64 exec, 1")
    if rtn: a("ds_add_rtn_u32 v2, %s, %s offset:%d" % (vRSV, val or vONE, 4 * c))
    else: a.ds("ds_add_u32 %s, %s offset:%d" % (vRSV, val or vONE, 4 * c))
    a("s_mov_b64 exec, -1")
    if rtn:
        a("s_waitcnt lgkmcnt(0)\nv_readfirstlane_b32 s83, v2"); a.lgq = []
    if wake and WAKE:
        if not rtn: a.dswait_all()
        a("s_wakeup")
def spin(c, target, sleep=1, mask=None):
    top, done = a.newlabel("spin"), a.newlabel("spun")
    a.label(top)
    a("ds_read_b32 v2, %s offset:%d\ns_waitcnt lgkmcnt(0)\nv_readfirstlane_b32 s83, v2" % (vRSV, 4 * c)); a.lgq = []
    if mask: a("s_and_b32 s94, s83, %d\ns_cmp_ge_u32 s94, %s" % (mask, target))
    else: a("s_cmp_ge_u32 s83, %s" % target)
    a("s_cbranch_scc1 %s" % done)
    if sleep: a("s_sleep %d" % sleep)
    bounded(top)
    a.label(done)
LS = opt("ls", 3)
def publish(c, soff, base, helper=False):
    skip = a.newlabel("nopub")
    if helper: hi()
    arrive(c, True)
    a("s_cmp_lg_u32 s83, 3\ns_cbranch_scc1 %s" % skip)
    flag_store(soff, base)
    a.label(skip)
def group_poll(phase, delay=0, sleep=4):
    oth, done = a.newlabel("rel"), a.newlabel("reld")
    a("s_cmp_lg_u32 s3, 0\ns_cbranch_scc1 %s" % oth)
    if delay: a("s_sleep %d" % delay)
    poll(sleep)
    arrive(cREL, wake=True)
    a("s_branch %s" % done)
    a.label(oth)
    a("s_waitcnt vmcnt(0)")
    spin(cREL, phase, LS)
    a.label(done)
    a.vmq = []; a.lgq = []
SP = opt("sp", 0); DP = opt("dp", 1)
def lo():
    if DP: a("s_setprio 0")
def hi():
    if DP: a("s_setprio 2")
def gap():
    if SP: a("s_sleep %d" % SP)
def pace():
    gap()
    if PACE and len(a.vmq) > PACE:
        a("s_waitcnt vmcnt(%d)" % PACE); a.vmq = a.vmq[-PACE:]
def get_tag():
    a("s_waitcnt lgkmcnt(0)"); a.lgq = []
    a("s_add_u32 %s, %s, 0x9e3779b1\nv_mov_b32 %s, %s" % (sTAG, sTAG, vTAG, sTAG))
def bcast_hi(dst, src, t):
    a("v_mov_b32 %s, %s\nv_mov_b32 %s, %s\ns_nop 1\nv_permlane32_swap_b32 %s, %s" % (t, src, dst, src, t, dst))
def tr_addr(dst, perm, t0, t1, t2):
    a("v_and_b32 %s, 3, v1" % t0)
    if perm: a("v_and_b32 %s, 1, %s\nv_lshrrev_b32 %s, 1, %s\nv_lshl_or_b32 %s, %s, 1, %s" % (t1, t0, t0, t0, t0, t1, t0))
    a("v_bfe_u32 %s, v1, 4, 1\nv_lshl_or_b32 %s, %s, 2, %s" % (t1, t0, t1, t0))
    a("v_bfe_u32 %s, v1, 2, 2\nv_lshrrev_b32 %s, 5, v1\nv_lshl_add_u32 %s, %s, 3, %s" % (t1, t2, t1, t2, t1))
    a("v_lshlrev_b32 %s, 7, %s\nv_lshl_add_u32 %s, %s, 3, %s" % (t1, t1, t1, t0, t1))
    a("v_bfe_u32 %s, v1, 3, 1\nv_lshl_or_b32 %s, %s, 6, %s" % (t0, dst, t0, t1))
def x_addr(base, T, srow, t):
    a("v_and_b32 %s, 31, v1" % t[0])
    if T: a("v_mov_b32 %s, %s" % (t[1], t[0]))
    else: swap23(t[1], t[0], t[2])
    a("v_lshrrev_b32 %s, 5, v1\nv_lshrrev_b32 %s, 1, %s\nv_and_b32 %s, 7, %s" % (t[2], t[3], t[1], t[3], t[3]))
    a("v_lshlrev_b32 %s, 7, %s\nv_add_u32 %s, %s, %s" % (t[1], t[1], t[1], srow, t[1]))
    for k in range(4):
        a("v_add_u32 %s, %d, %s\nv_xor_b32 %s, %s, %s\nv_lshl_add_u32 v%d, %s, 4, %s" % (t[0], 2 * k, t[2], t[0], t[0], t[3], base + k, t[0], t[1]))
        a("v_add_u32 v%d, 65536, v%d" % (base + 4 + k, base + k))
def n_addr(dst, sbase, vf, isV, t):
    a("s_mov_b32 s78, 2341")
    a("v_mul_lo_u32 %s, s78, %s\nv_lshrrev_b32 %s, 16, %s" % (t[0], vf, t[0], t[0]))
    a("v_mul_u32_u24 %s, 28, %s\nv_sub_u32 %s, %s, %s" % (t[1], t[0], t[1], vf, t[1]))
    if not isV: a("v_and_b32 %s, 1, %s\nv_lshlrev_b32 %s, 2, %s" % (t[2], t[0], t[2], t[2]))
    if not isV: a("v_add_u32 %s, %s, %s" % (t[1], t[1], t[2]))
    swap23(t[3], t[1], t[2])
    a("v_lshlrev_b32 %s, 17, %s\nv_lshl_add_u32 %s, %s, 4, %s\nv_lshrrev_b32 %s, 5, v1\nv_lshl_add_u32 %s, %s, 9, %s\nv_add_u32 %s, %s, %s" % (t[0], t[0], t[0], t[3], t[0], t[1], t[0], t[1], t[0], dst, sbase, t[0]))
def o_addr(half):
    a("s_lshl_b32 s73, %s, 2\ns_add_u32 s73, s73, s3\ns_lshl_b32 s73, s73, 16\ns_lshl_b32 s74, %s, 11\ns_add_u32 s73, s73, s74\ns_add_u32 s73, s73, %d\nv_add_u32 v19, s73, %s" % (sQB, sH, O_OFF + half * 32768, vL16))
    a("s_mov_b32 s0, 0\ns_mov_b32 s1, -1")
def store_o(c, tag):
    a("v_cndmask_b32 v%d, v%d, %s, s[0:1]" % (c + 6, c + 6, vZERO))
    for m in range(2): a.vm("buffer_store_dwordx4 %s, v19, %s, 0 offen offset:%d sc1" % (vr(c + 4 * m, 4), WS, 1024 * m), tag)
def load_g(dst):
    a("s_lshl_b32 s73, %s, 2\ns_add_u32 s73, s73, s3\ns_lshl_b32 s73, s73, 7\ns_add_u32 s73, s73, %d\nv_and_b32 v2, 31, v1\nv_lshlrev_b32 v2, 2, v2" % (sQB, G_OFF))
    a.vm("buffer_load_dword %s, v2, %s, s73 offen sc1" % (dst, WS), "g")
def w_srd(reg, sc):
    n = int(reg[2:].split(":")[0])
    a("s_lshl_b32 s75, %s, 1\ns_add_u32 s75, s75, %s\ns_sub_u32 s76, s75, 7\ns_cmp_lt_u32 s75, 21\ns_cselect_b32 s75, s75, s76" % (sJ, sc))
    a("s_cselect_b32 s%d, %s, %s\ns_cselect_b32 s%d, %s, %s\ns_lshl_b32 s75, s75, 7" % (n, pWA[0], pWB[0], n + 1, pWA[1], pWB[1]))
    a("s_add_u32 s%d, s%d, s75\ns_addc_u32 s%d, s%d, 0\ns_sub_u32 s%d, %d, s75\ns_mov_b32 s%d, 0x20000" % (n, n, n + 1, n + 1, n + 2, WBYTES, n + 3))
def roles():
    a("s_and_b32 s73, s2, 7\ns_lshr_b32 s74, s2, 3")
    a("s_and_b32 %s, s74, 1\ns_lshl_b32 s75, s73, 1\ns_add_u32 %s, s75, %s\ns_lshr_b32 %s, s74, 1" % (sODD, sH, sODD, sQB))
    a("s_mul_i32 s75, %s, 7\ns_lshr_b32 %s, s75, 1" % (sH, sU0))
    a("s_mul_i32 s75, s74, 37\ns_lshr_b32 s75, s75, 8\ns_mul_i32 s76, s75, 7\ns_sub_u32 %s, s74, s76\ns_lshl_b32 s76, s73, 2\ns_add_u32 %s, s76, s75" % (sCC, sRB2))
    a("s_cmp_lt_u32 s74, 28\ns_cselect_b32 %s, 1, 0\ns_cselect_b32 %s, %s, 0" % (sP3, sRB2, sRB2))
    a("s_mul_i32 s75, %s, 28\ns_lshr_b32 %s, s75, 6\ns_add_u32 s75, s75, 27\ns_lshr_b32 %s, s75, 6" % (sH, sC0, sC1))
    a("s_mov_b32 %s, %d\ns_mov_b32 %s, 0" % (sCNT, SPIN, sFB))
    a("s_lshl_b32 s75, %s, 4\ns_add_u32 s75, s75, %s\ns_lshl_b32 %s, s75, 7" % (sJ, sRB, sF12))
    a("s_lshl_b32 s75, %s, 4\ns_add_u32 s75, s75, %s\ns_lshl_b32 %s, s75, 7" % (sH, sQB, sF34))
    a("v_cmp_eq_u32 %s, 0, v1\nv_mov_b32 %s, 0\nv_mov_b32 %s, %d\nv_mov_b32 %s, 1" % (sMZ, vZERO, vRSV, RSV, vONE))
def prefetch_wo(helper):
    a("s_lshl_b32 s75, %s, 1\ns_add_u32 s75, s75, %s\ns_sub_u32 s75, s75, 14\ns_lshl_b32 s75, s75, 3\ns_add_u32 s75, s75, s3\ns_add_u32 s75, s75, %d\ns_mul_i32 s75, s75, 13" % (sRB, sJ, 4 * helper))
    a("v_add_u32 v11, s75, v1\nv_min_u32 v11, %d, v11\nv_lshlrev_b32 v11, 7, v11" % (448 * 7 - 1))
    a("s_mov_b64 exec, 0x1fff\nglobal_load_dword %s, v11, s[44:45]\nglobal_load_dword %s, v11, s[50:51]\ns_mov_b64 exec, -1" % (vDUMMY, vDUMMY))
WSB = opt("wsb", 0) << 20
def epoch_load():
    if WSB: a("s_add_u32 s58, s58, %d\ns_addc_u32 s59, s59, 0" % WSB)
    a("s_mov_b32 s73, %d\ns_load_dword %s, s[58:59], s73" % (EPOCH_OFF, sTAG))

a("s_cmp_ge_u32 s2, 256\ns_cbranch_scc1 L_end")
a("s_load_dwordx16 s[40:55], s[0:1], 0\ns_load_dwordx4 s[56:59], s[0:1], 64")
if SPINTO or ENC >= 0: a("s_memrealtime s[98:99]")
if ENC >= 0: a("s_waitcnt lgkmcnt(0)\ns_mov_b32 s100, s98")
if STAMP: a("v_mov_b32 %s, 0" % vSTAMP)
stamp("entry")
a("s_getpc_b64 s[36:37]")
a.label("L_pc")
a("""
v_lshrrev_b32 v2, 6, v0
v_and_b32 v1, 63, v0
s_and_b32 s75, s2, 0x38
v_readfirstlane_b32 s83, v2
v_add_u32 v3, s75, v2
v_lshl_add_u32 v3, v3, 3, v1
v_lshlrev_b32 v3, 7, v3
s_mov_b32 s75, L_codeend-L_pc-4
v_min_u32 v3, s75, v3
s_mov_b64 exec, 0xff
global_load_dword %s, v3, s[36:37]
s_mov_b64 exec, -1
s_and_b32 s3, s83, 3
s_lshr_b32 s74, s2, 3
s_and_b32 s75, s2, 1
s_lshl_b32 s75, s75, 3
s_and_b32 s76, s74, 7
s_add_u32 %s, s75, s76
s_and_b32 s75, s2, 6
s_lshl_b32 s75, s75, 1
s_lshr_b32 s76, s2, 6
s_add_u32 %s, s75, s76
v_lshlrev_b32 v0, 4, v1
""" % (vDUMMY, sRB, sJ))
if STAMP: a("s_mov_b32 s39, s83")
a("s_cmp_ge_u32 s83, 4\ns_cbranch_scc1 L_helper")
if PREF:
    a("""
v_lshl_add_u32 v3, s2, 2, v2
v_mad_u32_u24 v4, v3, 14, v1
v_mad_u32_u24 v5, v3, 10, v1
v_lshlrev_b32 v4, 7, v4
v_min_u32 v5, %d, v5
v_lshlrev_b32 v5, 7, v5
s_mov_b64 exec, 0x3fff
s_waitcnt lgkmcnt(0)
global_load_dword %s, v4, s[40:41]
s_mov_b64 exec, 0x3ff
global_load_dword %s, v5, s[42:43]
global_load_dword %s, v5, s[48:49]
s_mov_b64 exec, -1
""" % (448 * 21 - 1, vDUMMY, vDUMMY, vDUMMY))
a("s_branch L_main")

a.label("L_helper")
a("v_lshrrev_b32 v10, 3, v1\nv_and_b32 v11, 7, v1\nv_lshrrev_b32 v12, 4, v1\nv_xor_b32 v2, v11, v12\nv_lshlrev_b32 v2, 4, v2")
a("s_lshl_b32 s75, %s, 2\ns_add_u32 s75, s75, s3\ns_mul_i32 s75, s75, %d\nv_mul_u32_u24 v13, 896, v10\nv_add3_u32 v3, s75, v13, v2" % (sRB, 32 * 896))
a("v_xor_b32 v4, 64, v3\nv_add_u32 v4, 6144, v4\nv_add_u32 v5, 12288, v3\nv_add_u32 v6, 12288, v4")
a("s_lshl_b32 %s, s3, 12\ns_lshl_b32 %s, s3, 11\ns_mov_b32 s6, %d\ns_mov_b32 s7, 0x20000" % (sMX, sMWc, 2048 * 896))
a("v_and_b32 v9, 1, v12\nv_lshlrev_b32 v9, 2, v9\nv_xor_b32 v9, v9, v11\nv_lshlrev_b32 v9, 4, v9")
a("s_mul_i32 s76, s3, %d\nv_mul_u32_u24 v14, 2688, v10\nv_add3_u32 v7, s76, v14, v9\nv_add_u32 v8, %d, v7" % (16 * 2688, 8 * 2688 - 1024))
a("s_cmp_ge_u32 %s, 14\ns_waitcnt lgkmcnt(0)\ns_mov_b32 s4, %s\ns_mov_b32 s5, %s\ns_cbranch_scc1 L_h_gate" % (sJ, pX[0], pX[1]))
stamp("h_go")
def other_setup():
    if HPRIO: a("s_setprio %d" % HPRIO)
    epoch_load()
    roles()
    a("s_lshl_b32 s77, %s, 7\nv_add3_u32 v26, s77, v13, v9" % sCC)
    a("s_lshl_b32 s75, %s, 7\ns_add_u32 s16, %s, s75\ns_addc_u32 s17, %s, 0\ns_sub_u32 s18, %d, s75\ns_mov_b32 s19, 0x20000" % (sJ, pWB[0], pWB[1], WBYTES))
    srd(WS, pWs, WS_SIZE); srd(OUT, pOut, 2048 * 896); srd(WOA, pWoA, 448 * 896); srd(WOB, pWoB, 448 * 896)
def dma_slab(s):
    slot = SLOT[s]
    a("s_add_u32 m0, %s, %d\ns_mov_b32 s73, %d" % (sMX, slot * 32768, s * 128))
    for i in range(4): a.vm("buffer_load_dwordx4 v%d, %s, s73 offen offset:%d lds" % (3 + i, X, 1024 * i), "slab%d" % s)
    for c, reg in ((0, W0), (1, W1)):
        if s == 0: w_srd(reg, str(c))
        a("s_add_u32 m0, %s, %d\ns_mov_b32 s73, %d" % (sMWc, slot * 32768 + 16384 + c * 8192, s * 64 * 2688))
        for i in range(2): a.vm("buffer_load_dwordx4 v%d, %s, s73 offen offset:%d lds" % (7 + i, reg, 1024 * i), "slab%d" % s)
def dma_w2(s2):
    a("s_add_u32 m0, %s, %d\ns_mov_b32 s73, %d" % (sMWc, W2B + s2 * 8192, s2 * 64 * 2688))
    for i in range(2): a.vm("buffer_load_dwordx4 v%d, %s, s73 offen offset:%d lds" % (7 + i, W2, 1024 * i), "w2")
for s in range(FIRST): dma_slab(s)
stamp("h_issued")
other_setup()
if XPF:
    a("s_lshr_b32 s74, s2, 3\ns_and_b32 s75, s2, 1\ns_lshl_b32 s75, s75, 5\ns_add_u32 s75, s75, s74\ns_lshl_b32 s75, s75, 2\ns_add_u32 s75, s75, s3\ns_mul_i32 s75, s75, %d" % (8 * 896))
    a("v_mul_u32_u24 v104, 896, v1\nv_add_u32 v104, s75, v104")
    a("s_and_b32 s76, s74, 3\ns_lshl_b32 s76, s76, 2\ns_add_u32 s76, s76, s3\ns_mul_i32 s76, s76, %d\nv_mul_u32_u24 v105, 2688, v1\nv_add_u32 v105, s76, v105" % (4 * 2688))
    a("s_bitcmp1_b32 s74, 2\ns_cselect_b32 s36, s12, s8\ns_cselect_b32 s37, s13, s9")
def xpf(k):
    if not XPF or k > 6: return
    a("s_mov_b64 exec, 0xff")
    a.vm("global_load_dword %s, v104, s[40:41] offset:%d" % (vDUMMY, 128 * k))
    a("v_add_u32 v106, %d, v105\ns_mov_b64 exec, 0xf" % (k * 64 * 2688))
    a.vm("global_load_dword %s, v106, s[36:37]" % vDUMMY)
    a("s_mov_b64 exec, -1")
vmq0 = list(a.vmq)
a("s_cmp_ge_u32 %s, 7\ns_cbranch_scc1 L_h_N" % sJ)
def Xh(g): return vr(144 + 4 * g, 4)
def acc2(ct): return 64 + 16 * ct
def Wh(g, ct, e=None):
    b = 32 + 8 * (g & 3) + 4 * ct
    return vr(b, 4) if e is None else vr(b + 2 * e, 2)
def helper_p1(T):
    a.vmq = list(vmq0); a.lgq = []
    tmp = ["v10", "v11", "v12", "v13"]
    xpf(AHEAD)
    x_addr(96, T, sMX, tmp)
    tr_addr("v13", T, "v10", "v11", "v12")
    a("v_add_u32 v108, %d, v13\nv_xor_b32 v109, 64, v108" % W2B)
    a("s_lshl_b32 s75, %s, 2\ns_add_u32 s75, s75, s3" % sRB)
    if T:
        a("s_mul_i32 s77, s75, %d\ns_add_u32 s78, %s, 14\ns_lshl_b32 s78, s78, 12\ns_add_u32 s78, s78, s77\nv_add_u32 v110, s78, %s\nv_add_u32 v111, 2048, v110" % (T_TILE, sJ, vL16))
    else:
        a("s_lshl_b32 s75, s75, 11\ns_add_u32 s77, s75, %d" % (N_OFF + 2 * N_KIND))
        for ct in range(2):
            a("s_sub_u32 s73, %s, 7\ns_lshl_b32 s73, s73, 6\ns_add_u32 s73, s73, %d\nv_and_b32 v14, 31, v1\nv_add_u32 v14, s73, v14" % (sJ, 32 * ct))
            n_addr("v%d" % (110 + ct), "s77", "v14", False, tmp)
    for s in range(7):
        a.vmwait("slab%d" % s)
        if s: a.dswait_all()
        stamp("h_s%d" % s)
        a("s_barrier")
        slot = SLOT[s]; hi, lo = slot >> 1, (slot & 1) * 32768
        for t in range(4): a.ds("ds_read_b128 %s, v%d offset:%d" % (Xh(4 * s + t), 96 + 4 * hi + t, lo))
        xpf(s + AHEAD + 1)
        if s == 0:
            for k in range(FIRST, AHEAD): dma_slab(k)
        if s + AHEAD < 7: dma_slab(s + AHEAD)
        if s == 7 - AHEAD:
            for k2 in range(4): dma_w2(k2)
        if s == 8 - AHEAD:
            for k2 in range(4, 7): dma_w2(k2)
    a.vmwait("w2")
    get_tag()
    arrive(cW2)
    spin(cW2, 4, 0)
    stamp("h_r2_start")
    def reads(g):
        for ct in range(2):
            for e in range(2):
                a.ds("ds_read_b64_tr_b16 %s, v%d offset:%d" % (Wh(g, ct, e), 108 + ct, (g >> 2) * 8192 + (g & 3) * 2048 + e * 512), g)
    reads(0); reads(1)
    a("s_mul_i32 s75, s3, %d\ns_mul_i32 s76, s3, %d" % (14 * 1024, 14 * 8 * 896))
    for g in range(28):
        a.dswait(g)
        for ct in range(2):
            if T: mfma(vr(acc2(ct), 16), Wh(g, ct), Xh(g), "0" if g == 0 else None)
            else: mfma(vr(acc2(ct), 16), Xh(g), Wh(g, ct), "0" if g == 0 else None)
            if ct == 0 and g < 26: reads(g + 2)
            if WBEARLY and ct == 1 and WBG0 <= g < WBG0 + 14:
                i = g - WBG0
                a("s_add_u32 m0, s75, %d\ns_add_u32 s74, s76, %d" % (i * 1024, i * 8 * 896))
                a.vm("buffer_load_dwordx4 v26, %s, s74 offen lds" % WOB, "wo")
            if ct == 0 and g == 27: arrive(cH2)
    stamp("h_r2_end")
helper_p1(True)
a("s_branch L_h_phi")
a.label("L_h_N")
helper_p1(False)
a.label("L_h_phi")
a.vmq = []; a.lgq = []
a("s_mov_b32 s84, 0x%x\ns_mov_b32 s85, s84\ns_mov_b32 s94, 0x%x\ns_mov_b32 s95, s94" % (f32(LOG2E), f32(1e-6)))
a.nop(8)
def wa_piece(i):
    a("s_add_u32 m0, s75, %d\ns_add_u32 s74, s76, %d" % (57344 + i * 1024, i * 8 * 896))
    a("buffer_load_dwordx4 v26, %s, s74 offen lds" % WOA)
if WAEARLY:
    spin(cH2, 8, 0)
    a("s_mul_i32 s75, s3, %d\ns_mul_i32 s76, s3, %d" % (12 * 1024, 12 * 8 * 896))
for ct in range(2):
    b = acc2(ct)
    for q in range(8): a("v_pk_mul_f32 %s, %s, %s" % (vr(112 + 2 * q, 2), vr(b + 2 * q, 2), sSCL))
    for q in range(16):
        a("v_exp_f32_e64 v%d, v%d clamp" % (112 + q, 112 + q))
        if WAEARLY and q % 4 == 3: wa_piece(6 * ct + q // 4)
    for q in range(16):
        a("v_max_f32 v%d, 0, v%d" % (b + q, b + q))
        if WAEARLY and q % 8 == 7: wa_piece(6 * ct + 4 + q // 8)
    for q in range(8): a("v_pk_add_f32 %s, %s, %s" % (vr(b + 2 * q, 2), vr(b + 2 * q, 2), vr(112 + 2 * q, 2)))
    for q in range(8): a("v_pk_add_f32 %s, %s, s[94:95]" % (vr(b + 2 * q, 2), vr(b + 2 * q, 2)))
    for q in range(8): a("v_cvt_pk_bf16_f32 v%d, v%d, v%d" % (32 + 8 * ct + q, b + 2 * q, b + 2 * q + 1))
stamp("h_phi")
a("s_branch L_h_join")
a.label("L_h_gate")
other_setup()
a("v_mov_b32 v110, %d\nv_mov_b32 v111, %d" % (OOB, OOB))
get_tag()
a("s_barrier")
arrive(cH2)
if opt("hwd", 16): a("s_sleep %d" % opt("hwd", 16))
prefetch_wo(1)
if WBEARLY:
    a("s_mul_i32 s75, s3, %d\ns_mul_i32 s76, s3, %d" % (14 * 1024, 14 * 8 * 896))
    for i in range(14):
        a("s_add_u32 m0, s75, %d\ns_add_u32 s74, s76, %d" % (i * 1024, i * 8 * 896))
        a("buffer_load_dwordx4 v26, %s, s74 offen lds" % WOB)
if WAEARLY:
    a("s_mul_i32 s75, s3, %d\ns_mul_i32 s76, s3, %d" % (12 * 1024, 12 * 8 * 896))
    for i in range(12): wa_piece(i)
a.label("L_h_join")
a.vmq = []; a.lgq = []
vB1a, vB1b, vSL, vPQ, vGh, vO, vOUT, vWB, vWA = "v25", "v24", "v23", "v22", "v18", "v15", "v14", 10, 12
def dma_wo(half, reg, first, per, paced=True):
    a("s_mul_i32 s75, s3, %d\ns_mul_i32 s76, s3, %d" % (per * 1024, per * 8 * 896))
    if paced: lo()
    for i in range(per):
        a("s_add_u32 m0, s75, %d\ns_add_u32 s74, s76, %d" % (half * 57344 + (first + i) * 1024, (first + i) * 8 * 896))
        a.vm("buffer_load_dwordx4 v26, %s, s74 offen lds" % reg, "wo")
        if paced and opt("wogap", 1): a("s_sleep %d" % opt("wogap", 1))
    if paced: hi()
a("s_add_u32 s73, %s, 23\ns_add_u32 s74, %s, 23\ns_add_u32 s75, %s, 16\ns_add_u32 s76, %s, 16\ns_add_u32 s77, %s, 21\ns_lshr_b32 s77, s77, 1\ns_add_u32 s78, %s, 21\ns_lshr_b32 s78, s78, 1" % (sC0, sC1, sC0, sC1, sC0, sC1))
lane_select("v2", [(0, "s73"), (1, "s74"), (2, "s75"), (3, "s76"), (4, "s77"), (5, "s78"), (6, "14"), (7, "15")], "v3")
a("s_lshl_b32 s73, %s, 7\ns_add_u32 s73, s73, %d\nv_lshlrev_b32 v2, 11, v2\nv_add_u32 %s, s73, v2" % (sQB, F1, vPOLL))
a("s_lshl_b32 s73, %s, 17\ns_lshl_b32 s74, %s, 13\ns_add_u32 s73, s73, s74\ns_add_u32 s73, s73, %d" % (sH, sQB, N_OFF + N_KIND))
a("v_lshrrev_b32 v2, 4, v1\nv_and_b32 v3, 15, v1\nv_lshlrev_b32 v3, 4, v3\nv_lshl_add_u32 v2, v2, 9, v3")
a("s_and_b32 s74, s3, 1\ns_lshl_b32 s74, s74, 8\ns_add_u32 s74, s74, s73\nv_add_u32 %s, s74, v2" % vB1b)
a("s_lshr_b32 s74, s3, 1\ns_lshl_b32 s74, s74, 8\ns_add_u32 s74, s74, s73\ns_add_u32 s74, s74, %d\nv_add_u32 %s, s74, v2" % (N_KIND, vB1a))
a("s_lshl_b32 s73, %s, 15\ns_lshl_b32 s74, s3, 13\ns_add_u32 s73, s73, s74\ns_add_u32 s73, s73, %d" % (sH, SLAB_OFF))
a("v_and_b32 v2, 15, v1\nv_lshlrev_b32 v2, 5, v2\nv_lshrrev_b32 v3, 4, v1\nv_lshl_add_u32 v4, v3, 3, v2\ns_lshl_b32 s74, %s, 9\ns_add_u32 s74, s74, s73\nv_add_u32 v141, s74, v4" % sQB)
a("v_and_b32 v4, 1, v3\nv_lshl_add_u32 v2, v4, 4, v2\nv_lshrrev_b32 v3, 1, v3\nv_lshl_add_u32 v2, v3, 9, v2\nv_add_u32 %s, s73, v2" % vSL)
a("v_and_b32 v2, 15, v1\nv_lshlrev_b32 v4, 3, v4\nv_sub_u32 v2, v2, v4\nv_and_b32 v3, 1, v2\nv_lshlrev_b32 v3, 4, v3\nv_mov_b32 v4, 0x3f80\nv_lshlrev_b32 v3, v3, v4\nv_lshrrev_b32 v2, 1, v2")
for k in range(4): a("v_cmp_eq_u32 vcc, %d, v2\ns_nop 1\nv_cndmask_b32 v%d, %s, v3, vcc" % (k, 136 + k, vZERO))
a("s_lshl_b32 s73, %s, 2\ns_add_u32 s73, s73, s3\ns_mul_i32 s73, s73, %d\ns_lshl_b32 s74, %s, 9\ns_add_u32 s73, s73, s74\ns_add_u32 s73, s73, %d\nv_add_u32 %s, s73, %s" % (sQB, T_TILE, sU0, T_OFF + 14 * 4096, vPQ, vL16))
o_addr(1)
a("s_lshl_b32 s73, %s, 2\ns_add_u32 s73, s73, s3\ns_lshl_b32 s73, s73, 11\ns_add_u32 s73, s73, %d\nv_and_b32 v2, 15, v1\nv_lshlrev_b32 v3, 7, v2\nv_add_u32 v9, s73, v3" % (sH, F3))
a("s_lshl_b32 s74, %s, 7\ns_add_u32 s73, s73, s74\nv_mov_b32 v2, %d\nv_mov_b32 v3, s73\nv_cndmask_b32 v20, v2, v3, %s" % (sQB, OOB, sMZ))
a("s_lshl_b32 s73, %s, 2\ns_add_u32 s73, s73, s3\ns_lshl_b32 s73, s73, 4\ns_add_u32 s73, s73, %s\ns_lshl_b32 s73, s73, 7\ns_add_u32 s73, s73, %d\nv_mov_b32 v3, s73\nv_cndmask_b32 v21, v2, v3, %s" % (sQB, sH, F4, sMZ))
a("s_lshl_b32 s73, %s, 1\ns_and_b32 s74, s3, 1\ns_add_u32 s73, s73, s74\ns_lshr_b32 s74, s3, 1" % sRB2)
a("s_lshl_b32 s75, s73, 1\ns_add_u32 s75, s75, s74\ns_lshl_b32 s75, s75, 10\ns_add_u32 s75, s75, %d\nv_and_b32 v2, 7, v1\nv_lshlrev_b32 v2, 7, v2\nv_add_u32 v140, s75, v2" % F5)
a("s_mul_i32 s75, s73, %d\ns_mul_i32 s76, s74, 16384\ns_add_u32 s75, s75, s76\ns_add_u32 s75, s75, %d\nv_add_u32 %s, s75, %s" % (O_TILE, O_OFF, vO, vL16))
a("s_mul_i32 s75, s73, %d\ns_lshl_b32 s76, %s, 7\ns_add_u32 s75, s75, s76\ns_lshl_b32 s76, s74, 6\ns_add_u32 s75, s75, s76" % (32 * 896, sCC))
a("v_and_b32 v2, 31, v1\nv_mul_u32_u24 v2, 896, v2\nv_lshrrev_b32 v3, 5, v1\nv_lshl_add_u32 v2, v3, 4, v2\nv_add_u32 %s, s75, v2" % vOUT)
tr_addr("v4", True, "v2", "v3", "v5")
a("v_xor_b32 v4, s76, v4\ns_mul_i32 s75, s74, 28672\nv_add_u32 v%d, s75, v4\nv_xor_b32 v%d, 64, v%d" % (vWB, vWB + 1, vWB))
a("v_add_u32 v%d, 57344, v%d\nv_add_u32 v%d, 57344, v%d" % (vWA, vWB, vWA + 1, vWB + 1))
a("v_lshrrev_b32 v2, 5, v1\nv_lshlrev_b32 v2, 9, v2")
for k in range(4): a("v_sub_u32 v%d, v%d, v2" % (132 + k, vWB + k))
a("s_lshl_b32 s73, s74, 2\ns_cmp_eq_u32 %s, 0\ns_cselect_b32 s75, 7, 0\ns_sub_u32 s75, s75, s73" % sODD)
a("v_lshrrev_b32 v2, 4, v1\nv_cmp_eq_u32 %s, s75, v2" % sMA)
a("s_lshl_b32 s73, s73, 8\ns_and_b32 s75, s3, 1\ns_lshl_b32 s75, s75, 8\ns_add_u32 s73, s73, s75\ns_add_u32 s73, s73, %d" % KVX)
a("v_and_b32 v3, 15, v1\nv_lshlrev_b32 v3, 4, v3\nv_and_b32 v4, 1, v2\nv_lshl_add_u32 v3, v4, 9, v3\nv_lshrrev_b32 v4, 1, v2\nv_lshl_add_u32 v3, v4, 3, v3\nv_add_u32 v7, s73, v3")
a("v_add_u32 v6, %d, %s" % (KVX, vL16))
if WBEARLY:
    a.vmwait_all()
    arrive(cWB)
HOLD = opt("hold", 2)
if HOLD == 2: spin(cGO, 4, LS)
elif HOLD == 1:
    spin(cM1, 4, 2)
    if opt("hd", 0): a("s_sleep %d" % opt("hd", 0))
lo()
for ct in range(2):
    for m in range(2): a.vm("buffer_store_dwordx4 %s, v%d, %s, 0 offen offset:%d sc1" % (vr(32 + 8 * ct + 4 * m, 4), 110 + ct, WS, 1024 * m)); opt("pg", 0) and a("s_sleep %d" % opt("pg", 0))
a.vmwait_all()
publish(cF2, sF12, F2, True)
stamp("h_f2sent")
if HOLD < 2: spin(cGO, 4, LS)
for k in range(4): a("v_mov_b32 v%d, -1" % (48 + k))
a("v_subrev_u32 v52, 32768, v19")
lo()
a.vm("buffer_store_dwordx2 v[48:49], v141, %s, 0 offen sc1" % WS)
for adr in ("v19", "v52"):
    for m in range(2):
        if opt("mgap", 2): a("s_sleep %d" % opt("mgap", 2))
        a.vm("buffer_store_dwordx4 v[48:51], %s, %s, 0 offen offset:%d sc1" % (adr, WS, 1024 * m))
a.vmwait_all()
hi()
arrive(cRD)
group_poll(1, opt("d2", 0))
stamp("h_f2seen"); lo()
for k in range(4):
    a("s_mov_b32 s73, %d" % (2048 * k))
    a.vm("buffer_load_dwordx4 %s, %s, %s, s73 offen sc1" % (vr(64 + 8 * k, 4), vB1a, WS)); pace() if B1PACE else gap()
    a.vm("buffer_load_dwordx4 %s, %s, %s, s73 offen sc1" % (vr(68 + 8 * k, 4), vB1b, WS)); pace() if B1PACE else gap()
a.vmwait_all()
hi()
a("v_mov_b32 %s, v9" % vPOLL)
for k in range(4):
    a("v_mfma_f32_16x16x32_bf16 v[96:99], %s, %s, %s" % (vr(64 + 8 * k, 4), vr(68 + 8 * k, 4), "v[96:99]" if k else "0"))
a.nop(8)
a("v_cvt_pk_bf16_f32 v96, v96, v97\nv_cvt_pk_bf16_f32 v97, v98, v99")
a("v_cndmask_b32 v96, v96, %s, %s\nv_cndmask_b32 v97, v97, %s, %s" % (vZERO, sMA, vZERO, sMA))
a("v_min_u32 v96, -2, v96")
a.vm("buffer_store_dwordx2 v[96:97], v141, %s, 0 offen sc1" % WS)
a.vm("buffer_store_dword %s, v20, %s, 0 offen sc1" % (vTAG, WS))
stamp("h_f3sent")
lo()
for m in range(2): gap(); a.vm("buffer_load_dwordx4 %s, %s, %s, 0 offen offset:%d sc1" % (vr(56 + 4 * m, 4), vPQ, WS, 1024 * m))
load_g(vGh)
hi()
if not WBEARLY:
    spin(cH2, 8)
    dma_wo(0, WOB, 0, 14)
    a.vmwait_all()
    arrive(cWB)
poll(opt("s3", 4))
stamp("h_f3seen")
a.label("L_b2")
lo()
for k in range(8):
    if k % 4 == 0: a("s_mov_b32 s73, %d" % (1024 * k))
    a.vm("buffer_load_dwordx4 %s, %s, %s, s73 offen offset:%d sc1" % (vr(72 + 4 * k, 4), vSL, WS, 1024 * (k % 4))); pace() if B1PACE else gap()
a.vmwait_all()
hi()
def verify(regs, again):
    ok = a.newlabel("ok")
    a("v_max_u32 v5, v%d, v%d" % (regs[0], regs[1]))
    for k in range(2, len(regs), 2): a("v_max3_u32 v5, v5, v%d, v%d" % (regs[k], regs[k + 1]))
    a("v_cmp_eq_u32 vcc, -1, v5\ns_cmp_eq_u64 vcc, 0\ns_cbranch_scc1 %s" % ok)
    bounded(again)
    a.label(ok)
verify([72 + 2 * k for k in range(16)], "L_b2")
a("v_add_u32 %s, %d, v140" % (vPOLL, F4 - F5))
for k in range(8):
    a("v_mfma_f32_16x16x32_bf16 v[64:67], v[136:139], %s, %s" % (vr(72 + 4 * k, 4), "v[64:67]" if k else "0"))
a.nop(8)
a("v_cvt_pk_bf16_f32 v4, v64, v65\nv_cvt_pk_bf16_f32 v5, v66, v67\nds_write_b64 v7, v[4:5]")
arrive(cKV, wake=True)
spin(cKV, 4, 4 if WAKE else 1)
a("ds_read_b128 v[64:67], v6\nds_read_b128 v[68:71], v6 offset:1024\ns_waitcnt lgkmcnt(0)")
mfma("v[80:95]", "v[64:67]", "v[56:59]", "0")
mfma("v[80:95]", "v[68:71]", "v[60:63]")
a("v_sub_f32 v4, 1.0, %s" % vGh)
a.nop(11)
bcast_hi("v2", "v92", "v3")
a("v_add_f32 v2, 0x%x, v2\nv_rcp_f32 v2, v2\ns_nop 0\nv_mul_f32 v2, v2, v4" % f32(1e-6))
for q in range(16): a("v_mul_f32 v%d, v2, v%d" % (80 + q, 80 + q))
for q in range(8): a("v_cvt_pk_bf16_f32 v%d, v%d, v%d" % (64 + q, 80 + 2 * q, 81 + 2 * q))
for q in (0, 4): a("v_min_u32 v%d, -2, v%d" % (64 + q, 64 + q))
store_o(64, "ob")
a.vm("buffer_store_dword %s, v21, %s, 0 offen sc1" % (vTAG, WS))
stamp("h_f4sent")
a("s_cmp_eq_u32 %s, 0\ns_cbranch_scc1 L_fin" % sP3)
if not WAEARLY:
    spin(cH2, 8)
    dma_wo(1, WOA, 0, 12)
poll(opt("s4", 4))
stamp("h_f4seen")
def Of(g): return vr(64 + 4 * g, 4)
def accB(c): return 32 + 16 * c
def accA(c): return 144 + 16 * c
def Wf(g, c, e=None):
    b = 176 + 8 * (g % 3) + 4 * c
    return vr(b, 4) if e is None else vr(b + 2 * e, 2)
NK = 16
def w_reads(base, g):
    for c in range(2):
        for e in range(2):
            b = base + c if not (g & 1 and e) else 132 + base - vWB + c
            a.ds("ds_read_b64_tr_b16 %s, v%d offset:%d" % (Wf(g, c, e), b, (28 * (g >> 1) + 16 * (g & 1) + 4 * e) * 128), (base, g))
def o_loads(half):
    for g in range(NK):
        if g % 4 == 0: a("s_mov_b32 s73, %d" % (half * 32768 + g * 1024))
        a.vm("buffer_load_dwordx4 %s, %s, %s, s73 offen offset:%d sc1" % (Of(g), vO, WS, (g % 4) * 1024), ("o", g))
        if half and opt("obgap", 0): a("s_sleep %d" % opt("obgap", 0))
a.label("L_ob")
lo()
o_loads(1)
a.vmwait_all()
hi()
verify([64 + 4 * g for g in range(NK)], "L_ob")
a("v_mov_b32 %s, v140" % vPOLL)
a("s_xor_b32 s73, s3, 2\ns_lshl_b32 s73, s73, 12\ns_add_u32 s73, s73, %d\nv_add_u32 v6, s73, %s\ns_lshl_b32 s73, s3, 12\ns_add_u32 s73, s73, %d\nv_add_u32 v7, s73, %s" % (FIN, vL16, FIN, vL16))
P3E = opt("p3e", 0)
if P3E: spin(cRD, 8, LS)
else:
    spin(cDONE, 4, LS)
    dma_wo(1, WOA, 48, 2, False)
spin(cWB, 4, 1)
w_reads(vWB, 0); w_reads(vWB, 1)
for g in range(NK):
    a.vmwait(("o", g)); a.dswait((vWB, g))
    mfma(vr(accB(0), 16), Wf(g, 0), Of(g), "0" if g == 0 else None)
    if g < NK - 2: w_reads(vWB, g + 2)
    mfma(vr(accB(1), 16), Wf(g, 1), Of(g), "0" if g == 0 else None)
if P3E:
    spin(cDONE, 4, 1)
    dma_wo(1, WOA, 48, 2, False)
stamp("h_p3b_done")
poll(2)
arrive(cWO)
stamp("h_f5seen")
a.label("L_p3a")
o_loads(0)
spin(cWO, 4, 0)
w_reads(vWA, 0); w_reads(vWA, 1)
a("v_mov_b32 v5, 0")
for g in range(NK):
    a.vmwait(("o", g)); a.dswait((vWA, g))
    if g == 0: stamp("h_oa0")
    mfma(vr(accA(1), 16), Wf(g, 1), Of(g), vr(accB(1), 16) if g == 0 else None)
    if g < NK - 2: w_reads(vWA, g + 2)
    mfma(vr(accA(0), 16), Wf(g, 0), Of(g), vr(accB(0), 16) if g == 0 else None)
    if g & 1: a("v_max3_u32 v5, v5, v%d, v%d" % (60 + 4 * g, 64 + 4 * g))
a("v_cmp_eq_u32 vcc, -1, v5\ns_cmp_eq_u64 vcc, 0\ns_cbranch_scc1 L_p3ok")
a.nop(8)
bounded("L_p3a")
a.label("L_p3ok")
a.nop(7)
for i in range(4): a.ds("ds_write_b128 v6, %s offset:%d" % (vr(accA(1) + 4 * i, 4), 1024 * i))
a.dswait_all()
a("s_barrier")
for i in range(4): a.ds("ds_read_b128 %s, v7 offset:%d" % (vr(64 + 4 * i, 4), 1024 * i), i)
for i in range(4):
    a.dswait(i)
    for q in range(2): a("v_pk_add_f32 %s, %s, %s" % (vr(accA(0) + 4 * i + 2 * q, 2), vr(accA(0) + 4 * i + 2 * q, 2), vr(64 + 4 * i + 2 * q, 2)))
    for q in range(2): a("v_cvt_pk_bf16_f32 v%d, v%d, v%d" % (80 + 2 * i + q, accA(0) + 4 * i + 2 * q, accA(0) + 4 * i + 2 * q + 1))
    if i & 1: a.vm("buffer_store_dwordx4 %s, %s, %s, 0 offen offset:%d" % (vr(80 + 2 * i - 2, 4), vOUT, OUT, 16 * (i - 1)))
a("s_or_b32 s73, s2, s3\ns_cmp_lg_u32 s73, 0\ns_cbranch_scc1 L_fin")
a("v_mov_b32 v2, %d\nv_mov_b32 v3, %d\nv_cndmask_b32 v2, v2, v3, %s" % (OOB, EPOCH_OFF, sMZ))
a.vm("buffer_store_dword %s, v2, %s, 0 offen sc1" % (vTAG, WS))
a("s_branch L_fin")

a.label("L_main")
a.vmq = []; a.lgq = []
a("s_waitcnt lgkmcnt(0)")
if MPRIO: a("s_setprio %d" % MPRIO)
epoch_load()
roles()
srd(WS, pWs, WS_SIZE)
a("v_lshlrev_b32 v2, 2, v1\nv_add_u32 v2, %d, v2\nds_write_b32 v2, %s" % (RSV, vZERO))
o_addr(0)
a("s_mov_b32 %s, 0" % sSTORED)
def Xm(buf, rtl): return vr(32 + 16 * buf + 4 * rtl, 4)
def Wm(buf, ct, e=None):
    b = 40 + 16 * buf + 4 * ct
    return vr(b, 4) if e is None else vr(b + 2 * e, 2)
def acc1(rtl, ct): return 64 + 32 * rtl + 16 * ct
def main_p1(T):
    a.vmq = []; a.lgq = []
    tmp = ["v2", "v3", "v4", "v5"]
    a("s_and_b32 s73, s3, 1\ns_lshr_b32 s74, s3, 1\ns_lshl_b32 s75, s73, 13")
    x_addr(128, T, "s75", tmp)
    tr_addr("v5", T, "v2", "v3", "v4")
    a("s_lshl_b32 s75, s74, 13\ns_add_u32 s75, s75, 16384\nv_add_u32 v140, s75, v5\nv_xor_b32 v141, 64, v140")
    for ct in range(2): a("v_add_u32 v%d, 65536, v%d" % (142 + ct, 140 + ct))
    a("s_lshl_b32 s75, %s, 2\ns_lshl_b32 s76, s73, 1\ns_add_u32 s75, s75, s76" % sRB)
    a("s_lshl_b32 s76, %s, 1\ns_add_u32 s76, s76, s74" % sJ)
    if T:
        a("s_mul_i32 s77, s75, %d\ns_lshl_b32 s78, s76, 12\ns_add_u32 s78, s78, s77\nv_add_u32 v146, s78, %s" % (T_TILE, vL16))
        a("s_cmp_lt_u32 s76, 7\ns_cselect_b32 s84, 0x%x, 1.0\ns_mov_b32 %s, %d" % (f32(QSCALE), sRTL, T_TILE))
    else:
        a("s_lshl_b32 s75, s75, 11\ns_add_u32 s75, s75, %d" % N_OFF)
        a("s_sub_u32 s76, s76, 14\ns_sub_u32 s77, s76, 7\ns_cmp_lt_u32 s76, 7\ns_cselect_b32 s76, s76, s77\ns_cselect_b32 s77, 0, %d\ns_add_u32 s77, s77, s75" % N_KIND)
        for ct in range(2):
            a("s_lshl_b32 s73, s76, 6\ns_add_u32 s73, s73, %d\nv_and_b32 v6, 31, v1\nv_add_u32 v6, s73, v6" % (32 * ct))
            n_addr("v%d" % (146 + ct), "s77", "v6", True, tmp)
        a("s_lshl_b32 s73, s76, 6\ns_add_u32 s74, s73, 27\ns_mul_i32 s74, s74, 2341\ns_lshr_b32 s74, s74, 16\ns_add_u32 s73, s73, 64")
        a("v_lshrrev_b32 v2, 4, v1\nv_add_u32 v2, s74, v2\nv_mul_u32_u24 v3, 28, v2\nv_cmp_gt_u32 vcc, s73, v3")
        a("v_lshlrev_b32 v2, 17, v2\nv_bfe_u32 v3, v1, 2, 2\nv_lshl_add_u32 v2, v3, 9, v2\nv_and_b32 v3, 3, v1\nv_lshl_add_u32 v2, v3, 4, v2")
        a("v_add_u32 v2, s77, v2\nv_add_u32 v2, %d, v2\nv_mov_b32 v4, %d\nv_cndmask_b32 v148, v4, v2, vcc" % (28 * 16, OOB))
        a("v_cmp_eq_u32 vcc, 0, v3\nv_mov_b32 v4, 0x3f803f80\ns_nop 0\nv_cndmask_b32 v152, %s, v4, vcc" % vZERO)
        a("v_mov_b32 v153, v152\nv_mov_b32 v154, v152\nv_mov_b32 v155, v152")
    early = opt("early", 12)
    def small_stores():
        if not T:
            for rtl in range(2): a.vm("buffer_store_dwordx4 v[152:155], v148, %s, 0 offen offset:%d sc1" % (WS, rtl * 2048))
    if early == 1: small_stores()
    def mm(rtl, ct, g):
        if T: mfma(vr(acc1(rtl, ct), 16), Wm(g & 1, ct), Xm(g & 1, rtl), "0" if g == 0 else None)
        else: mfma(vr(acc1(rtl, ct), 16), Xm(g & 1, rtl), Wm(g & 1, ct), "0" if g == 0 else None)
    def reads(g):
        s, t = g >> 2, g & 3; slot = SLOT[s]; hi, lo = slot >> 1, (slot & 1) * 32768
        rx = [lambda rtl=rtl: a.ds("ds_read_b128 %s, v%d offset:%d" % (Xm(g & 1, rtl), 128 + 4 * hi + t, lo + rtl * 4096), g) for rtl in range(2)]
        rw = [lambda ct=ct, e=e: a.ds("ds_read_b64_tr_b16 %s, v%d offset:%d" % (Wm(g & 1, ct, e), 140 + 2 * hi + ct, lo + t * 2048 + e * 512), g) for ct in range(2) for e in range(2)]
        return [rx[0], rw[0], rw[1], rw[2], rw[3], rx[1]]
    get_tag()
    a("s_barrier")
    stamp("m_slab0")
    for r in reads(0): r()
    def XL(t, rtl): return vr(192 + 16 * t + 4 * rtl, 4)
    def WL(t, ct, e=None):
        b = 200 + 16 * t + 4 * ct
        return vr(b, 4) if e is None else vr(b + 2 * e, 2)
    def reads_last(t):
        slot = SLOT[6]; hi, lo = slot >> 1, (slot & 1) * 32768
        rx = [lambda rtl=rtl: a.ds("ds_read_b128 %s, v%d offset:%d" % (XL(t, rtl), 128 + 4 * hi + t, lo + rtl * 4096), ("x", rtl, t)) for rtl in range(2)]
        rw = [lambda ct=ct, e=e: a.ds("ds_read_b64_tr_b16 %s, v%d offset:%d" % (WL(t, ct, e), 140 + 2 * hi + ct, lo + t * 2048 + e * 512), ("w", ct, t)) for ct in range(2) for e in range(2)]
        return rx, rw
    RL = [reads_last(t) for t in range(4)]
    lastq = sum([[RL[t][0][0], RL[t][1][0], RL[t][1][1]] for t in range(4)], []) + sum([[RL[t][1][2], RL[t][1][3]] for t in range(4)], []) + [RL[t][0][1] for t in range(4)]
    for g in range(24):
        a.dswait(g)
        mm(0, 0, g)
        if (g & 3) == 3: a("s_barrier")
        if early > 1 and g == early: small_stores()
        nxt = reads(g + 1) if g < 23 else lastq[:9]
        for r in nxt[:3]: r()
        mm(0, 1, g)
        for r in nxt[3:6]: r()
        mm(1, 0, g)
        for r in nxt[6:]: r()
        mm(1, 1, g)
    lastq = lastq[9:]
    def epi(rtl, ct):
        b = acc1(rtl, ct); o = 160 + 8 * (2 * rtl + ct); th = []
        for m in range(2):
            for q in range(4 * m, 4 * m + 4):
                if T: th += [lambda k=k: a("v_mul_f32 v%d, s84, v%d" % (k, k)) for k in (b + 2 * q, b + 2 * q + 1)]
                th.append(lambda q=q: a("v_cvt_pk_bf16_f32 v%d, v%d, v%d" % (o + q, b + 2 * q, b + 2 * q + 1)))
            if T: th.append(lambda m=m: a.vm("buffer_store_dwordx4 %s, v146, %s, %s offen offset:%d sc1" % (vr(o + 4 * m, 4), WS, sRTL if rtl else "0", ct * 2048 + m * 1024)))
            else: th.append(lambda m=m: a.vm("buffer_store_dwordx4 %s, v%d, %s, 0 offen offset:%d sc1" % (vr(o + 4 * m, 4), 146 + ct, WS, rtl * 2048 + m * 1024)))
        return th
    pend = []
    for ti, (rtl, ct) in enumerate([(0, 0), (0, 1), (1, 1), (1, 0)]):
        for t in range(4):
            a.dswait(("x", rtl, t)); a.dswait(("w", ct, t))
            if T: mfma(vr(acc1(rtl, ct), 16), WL(t, ct), XL(t, rtl))
            else: mfma(vr(acc1(rtl, ct), 16), XL(t, rtl), WL(t, ct))
            for _ in range(4):
                if lastq: lastq.pop(0)()
            if ti == 2 and t == 3: arrive(cH2)
            if ti == 1 and t == 3: a.nop(1)
            if ti >= 2 or (ti == 1 and t == 3):
                for _ in range(6 if T else 3):
                    if pend: pend.pop(0)()
        pend += epi(rtl, ct)
    stamp("m_r1")
    n0 = len(pend) - len(epi(1, 0))
    for _ in range(n0): pend.pop(0)()
    a.nop(max(0, 12 - n0))
    while pend: pend.pop(0)()
    if early == 0: small_stores()
    stamp("m_stored")
a("s_cmp_ge_u32 %s, 14\ns_cbranch_scc1 L_m_gate" % sJ)
a("s_cmp_ge_u32 %s, 7\ns_cbranch_scc1 L_m_N" % sJ)
main_p1(True)
a("s_branch L_m_join")
a.label("L_m_N")
main_p1(False)
a("s_branch L_m_join")
a.label("L_m_gate")
srd(X, pX, 2048 * 896); srd(GW, pG, 896)
a.vmq = []
a("s_lshl_b32 s75, %s, 7\ns_sub_u32 s76, %s, 14\ns_lshl_b32 s76, s76, 6\ns_add_u32 s75, s75, s76\ns_lshl_b32 s76, s3, 4\ns_add_u32 s75, s75, s76" % (sRB, sJ))
a("v_lshrrev_b32 v2, 3, v1\nv_add_u32 v2, s75, v2\nv_and_b32 v3, 7, v1\nv_lshlrev_b32 v3, 4, v3")
a("v_mul_u32_u24 v4, 896, v2\nv_add_u32 v4, v4, v3\nv_add_u32 v5, %d, v4" % (8 * 896))
for i in range(7):
    a.vm("buffer_load_dwordx4 %s, v3, %s, 0 offen offset:%d" % (vr(64 + 4 * i, 4), GW, 128 * i))
    a.vm("buffer_load_dwordx4 %s, v4, %s, 0 offen offset:%d" % (vr(96 + 4 * i, 4), X, 128 * i))
    a.vm("buffer_load_dwordx4 %s, v5, %s, 0 offen offset:%d" % (vr(128 + 4 * i, 4), X, 128 * i))
a("v_mov_b32 v6, 0\nv_mov_b32 v7, 0")
a("v_lshlrev_b32 v2, 2, v2\nv_add_u32 v2, %d, v2\nv_mov_b32 v8, %d\nv_cmp_eq_u32 vcc, 0, v3\ns_nop 1\nv_cndmask_b32 v9, v8, v2, vcc" % (G_OFF, OOB))
get_tag()
a("s_barrier")
arrive(cH2)
a.vmwait_all()
prefetch_wo(0)
for i in range(28):
    a("v_dot2_f32_bf16 v6, v%d, v%d, v6\nv_dot2_f32_bf16 v7, v%d, v%d, v7" % (64 + i, 96 + i, 64 + i, 128 + i))
a.nop(3)
for dpp in ("quad_perm:[1,0,3,2]", "quad_perm:[2,3,0,1]", "row_half_mirror"):
    a("v_add_f32_dpp v6, v6, v6 %s row_mask:0xf bank_mask:0xf\nv_add_f32_dpp v7, v7, v7 %s row_mask:0xf bank_mask:0xf" % (dpp, dpp))
    a.nop(2)
for r in (6, 7):
    a("v_mul_f32 v%d, 0x%x, v%d\nv_exp_f32 v%d, v%d\ns_nop 0\nv_add_f32 v%d, 1.0, v%d\nv_rcp_f32 v%d, v%d\ns_nop 0" % (r, f32(-LOG2E), r, r, r, r, r, r, r))
a.vm("buffer_store_dword v6, v9, %s, 0 offen sc1" % WS)
a.vm("buffer_store_dword v7, v9, %s, 0 offen offset:32 sc1" % WS)

a.label("L_m_join")
a.vmq = ["st"]; a.lgq = []
vK, vV, vQ, vG, vIDX = "v26", "v25", "v24", "v23", "v22"
def Qf(tau, m): return 32 + 8 * tau + 4 * m
def KV(b, k): return vr(192 + 16 * b + 4 * k, 4)
def Oa(tau): return 128 + 16 * tau
def Sb(tau): return 64 + 16 * tau
a("s_add_u32 s73, %s, 7\ns_lshr_b32 s73, s73, 1\ns_add_u32 s74, %s, 7\ns_lshr_b32 s74, s74, 1\ns_add_u32 s75, %s, 14\ns_lshr_b32 s75, s75, 1\ns_add_u32 s76, %s, 14\ns_lshr_b32 s76, s76, 1" % (sC0, sC1, sC0, sC1))
a("s_lshr_b32 s77, %s, 1\ns_lshr_b32 s78, %s, 1\ns_lshr_b32 s83, s3, 1\ns_add_u32 s83, s83, 14" % (sC0, sC1))
lane_select("v2", [(0, "s73"), (4, "s74"), (8, "s75"), (12, "s76"), (16, "s77"), (17, "s78"), (18, "s83")], "v3")
a("s_lshl_b32 s73, s3, 2\nv_and_b32 v3, 3, v1\nv_add_u32 v3, s73, v3\nv_mov_b32 v4, %s\nv_cmp_le_u32 vcc, 16, v1\ns_nop 1\nv_cndmask_b32 v3, v3, v4, vcc" % sQB)
a("v_lshl_add_u32 v2, v2, 4, v3\nv_lshlrev_b32 v2, 7, v2\nv_add_u32 %s, %d, v2" % (vPOLL, F1))
a("s_lshl_b32 s73, %s, 9" % sU0)
a("s_mul_i32 s74, s3, %d\ns_add_u32 s74, s74, s73\ns_add_u32 s74, s74, %d\nv_add_u32 %s, s74, %s" % (16 * T_TILE, T_OFF + 7 * 4096, vK, vL16))
a("s_lshl_b32 s74, %s, 17\ns_lshl_b32 s75, s3, 15\ns_add_u32 s74, s74, s75\ns_add_u32 s74, s74, %d\nv_add_u32 %s, s74, %s" % (sH, N_OFF, vV, vL16))
a("s_mul_i32 s74, %s, %d\ns_add_u32 s74, s74, s73\nv_add_u32 %s, s74, %s" % (sQB, 4 * T_TILE, vQ, vL16))
a("s_cmp_eq_u32 %s, 0\ns_mov_b32 s86, 0\ns_cselect_b32 s87, -1, 0\ns_cselect_b32 s88, 0, -1\ns_mov_b32 s89, 0" % sODD)
a("v_mov_b32 %s, 0xdddddddd" % vIDX)
for tau in range(3):
    a("s_add_u32 s73, s3, %d\ns_and_b32 s73, s73, 3\ns_mul_i32 s73, s73, 12288\ns_add_u32 s73, s73, %d\nv_add_u32 v%d, s73, %s" % (1 + tau, RED + tau * 4096, 12 + tau, vL16))
a("s_mul_i32 s73, s3, 12288\ns_add_u32 s73, s73, %d\nv_add_u32 v15, s73, %s" % (RED, vL16))
a("s_lshl_b32 s73, %s, 2\ns_add_u32 s73, s73, s3\ns_lshl_b32 s73, s73, 4\ns_add_u32 s73, s73, %s\ns_lshl_b32 s73, s73, 7\ns_add_u32 s73, s73, %d" % (sQB, sH, F5))
a("v_mov_b32 v2, %d\nv_mov_b32 v3, s73\nv_cndmask_b32 v11, v2, v3, %s" % (OOB, sMZ))
def zero_o():
    for i in range(64): a("v_mov_b32 v%d, 0" % (128 + i))
zero_o()
for tau in range(4):
    a("s_add_u32 s73, s3, %d\ns_and_b32 s73, s73, 3\ns_mul_i32 s%d, s73, %d" % (1 + tau, 74 + tau, T_TILE))
if MPRIO: a("s_setprio %d" % (1 if DP else 0))
a.vmwait_all()
stamp("m_drained")
publish(cM1, sF12, F1)
if PDELAY: a("s_sleep %d" % PDELAY)
if opt("pp", 2):
    top, done = a.newlabel("pp"), a.newlabel("ppd")
    a("buffer_load_dword v4, %s, %s, 0 offen sc1" % (vPOLL, WS))
    a.label(top)
    for k in range(2):
        a("s_sleep %d\nbuffer_load_dword v%d, %s, %s, 0 offen sc1\ns_waitcnt vmcnt(1)" % (opt("pp", 2), 5 - k, vPOLL, WS))
        a("v_cmp_ne_u32 vcc, %s, v%d\ns_cmp_eq_u64 vcc, 0\ns_cbranch_scc1 %s" % (sTAG, 4 + k, done))
    bounded(top)
    a.label(done)
    a.vmq = ["pp"]
else: poll(PSLEEP)
if opt("goearly", 0): arrive(cGO)
stamp("m_f1seen")
def kv_load(kt, k):
    if k < 2: a.vm("buffer_load_dwordx4 %s, %s, %s, %s offen offset:%d sc1" % (KV(kt & 3, k), vK, WS, sSK, 1024 * k), "k%d" % kt)
    else: a.vm("buffer_load_dwordx4 %s, %s, %s, %s offen offset:%d sc1" % (KV(kt & 3, k), vV, WS, sSV, 1024 * (k - 2)), "v%d" % kt)
def kv_off(kt, k): a("s_mov_b32 %s, %d" % ((sSK, kt * T_TILE) if k == 0 else (sSV, kt * 2048)))
def q_load(tau):
    for m in range(2): a.vm("buffer_load_dwordx4 %s, %s, %s, s%d offen offset:%d sc1" % (vr(Qf(tau, m), 4), vQ, WS, 74 + tau, 1024 * m), "q%d" % tau)
def q_fix(tau):
    for k in (0, 1): a("v_cndmask_b32 v%d, v%d, %s, %s" % (Qf(tau, 0) + k, Qf(tau, 0) + k, vZERO, sMB))
    for k in (2, 3): a("v_cndmask_b32 v%d, v%d, %s, %s" % (Qf(tau, 1) + k, Qf(tau, 1) + k, vZERO, sMA))
kv_off(0, 0); kv_off(0, 1)
kv_load(0, 0); kv_load(0, 1); q_load(0); q_load(1); kv_load(0, 2); kv_load(0, 3); q_load(2); q_load(3)
kv_off(1, 0); kv_off(1, 1)
for k in range(4): kv_load(1, k)
load_g(vG)
if not opt("goearly", 0): arrive(cGO, wake=True)
a("s_mov_b32 s77, 8")
def M(n, m):
    kt, tau = n >> 2, n & 3
    mfma(vr(Sb(tau), 16), KV(kt & 3, m), vr(Qf(tau, m), 4), "0" if m == 0 else None)
def P(n, m):
    kt, tau = n >> 2, n & 3
    a("v_smfmac_f32_32x32x32_bf16 %s, %s, %s, %s" % (vr(Oa(tau), 16), KV(kt & 3, 2 + m), vr(Sb(tau) + 8 * m, 8), vIDX))
def E(n, q):
    for k in range(4 * q, 4 * q + 4): a("v_exp_f32 v%d, v%d" % (Sb(n & 3) + k, Sb(n & 3) + k))
def red_write(tau, i): a.ds("ds_write_b128 v%d, %s offset:%d" % (12 + tau, vr(Oa(tau) + 4 * i, 4), 1024 * i))
a.vmwait("q0"); q_fix(0)
stamp("m_attn0"); stamp("R_attn0", True)
a.nop(1)
M(0, 0); M(0, 1)
a.vmwait("q1"); q_fix(1)
a.nop(6)
sched = {n: [] for n in range(64)}
for i, (kt, k) in enumerate([(2, 0), (2, 1), (2, 2), (2, 3), (3, 0), (3, 1), (3, 2), (3, 3)]): sched[i // 2].append((kt, k))
for kt in range(4, 16):
    for k in range(4): sched[4 * (kt - 3) + k].append((kt, k))
for n in range(64):
    ld = sched[n]
    if n < 63: M(n + 1, 0)
    for kt, k in ld:
        if k in (0, 2): kv_off(kt, k >> 1)
    E(n, 0)
    if n < 63: M(n + 1, 1)
    if n == 0: a.vmwait("v0")
    E(n, 1)
    if n > 0: P(n - 1, 1)
    if ld: kv_load(*ld[0])
    if HOIST and n >= 62: red_write(n - 62, 0); red_write(n - 62, 1)
    E(n, 2)
    P(n, 0)
    if len(ld) > 1: kv_load(*ld[1])
    if HOIST and n >= 62: red_write(n - 62, 2); red_write(n - 62, 3)
    if n < 2: a.vmwait("q%d" % (n + 2))
    elif (n & 3) == 2 and n + 2 < 64: a.vmwait("k%d" % ((n + 2) // 4))
    elif (n & 3) == 3 and n + 1 < 64: a.vmwait("v%d" % ((n + 1) // 4))
    E(n, 3)
    if n < 2: q_fix(n + 2)
a.nop(2)
P(63, 1)
if P3E: a("s_setprio 3")
stamp("m_attn_end"); stamp("R_attn_end", True)
if HOIST: a("s_branch L_red2")
a.label("L_reduce")
for tau in range(2):
    for i in range(4): red_write(tau, i)
a.label("L_red2")
for i in range(4): red_write(2, i)
arrive(cRD)
spin(cRD, "s77", 0)
for k in range(12):
    a.ds("ds_read_b128 %s, v15 offset:%d" % (vr(64 + 4 * k, 4), 1024 * (4 * (k % 3) + k // 3)), k // 3)
O3 = Oa(3)
for i in (3, 0, 1, 2):
    pass
for i in range(4):
    a.dswait(i)
    for s in range(3):
        if P3E:
            for q in range(4): a("v_add_f32 v%d, v%d, v%d" % (O3 + 4 * i + q, O3 + 4 * i + q, 64 + 12 * i + 4 * s + q))
            continue
        for q in range(2):
            a("v_pk_add_f32 %s, %s, %s" % (vr(O3 + 4 * i + 2 * q, 2), vr(O3 + 4 * i + 2 * q, 2), vr(64 + 12 * i + 4 * s + 2 * q, 2)))
bcast_hi("v4", vr(O3 + 12), "v5")
a("v_rcp_f32 v6, v4\nv_mov_b32 v8, 0\nv_mov_b32 v9, 0\nv_mul_f32 v6, v6, %s\nv_mov_b32 v7, v6" % vG)
for q in range(8):
    if P3E:
        a("v_add_f32_e64 v9, |v%d|, |v%d|\nv_mul_f32 v%d, v6, v%d\nv_fmac_f32 v8, 0, v9\nv_mul_f32 v%d, v6, v%d" % (O3 + 2 * q, O3 + 2 * q + 1, 64 + 2 * q, O3 + 2 * q, 65 + 2 * q, O3 + 2 * q + 1))
        continue
    a("v_pk_fma_f32 v[8:9], %s, 0, v[8:9] op_sel_hi:[1,0,1]" % vr(O3 + 2 * q, 2))
    a("v_pk_mul_f32 %s, %s, v[6:7]" % (vr(64 + 2 * q, 2), vr(O3 + 2 * q, 2)))
a("v_add_f32 v4, v4, v8" if P3E else "v_add_f32 v8, v8, v9\nv_add_f32 v4, v4, v8")
a("v_cmp_nle_f32 vcc, 0x%x, v4\ns_mov_b64 s[94:95], vcc\nv_cmp_nge_f32 vcc, 0x%x, v4" % (f32(2.0 ** -64), f32(2.0 ** 64)))
for q in range(8): a("v_cvt_pk_bf16_f32 v%d, v%d, v%d" % (80 + q, 64 + 2 * q, 65 + 2 * q))
for q in (0, 4): a("v_min_u32 v%d, -2, v%d" % (80 + q, 80 + q))
a("s_or_b64 vcc, vcc, s[94:95]\ns_cmp_lg_u64 vcc, 0\ns_cselect_b32 s74, 0x101, %s\ns_andn2_b32 s74, s74, %s" % ("s78" if FORCE_FB else "1", sFB))
a("s_lshr_b32 s75, s74, 8\ns_or_b32 s75, s75, %s\ns_cmp_lg_u32 s75, 0\nv_mov_b32 v3, s74\ns_cbranch_scc1 L_nostore" % sSTORED)
store_o(80, "oa")
a.vm("buffer_store_dword %s, v11, %s, 0 offen sc1" % (vTAG, WS))
a("s_mov_b32 %s, 1" % sSTORED)
a.label("L_nostore")
stamp("m_oa_stored")
arrive(cVT, False, "v3")
a("s_cmp_lg_u32 %s, 0\ns_cbranch_scc1 L_mdone" % sFB)
spin(cVT, 4, 0, 0xff)
a("s_lshr_b32 s73, s83, 8\ns_cmp_lg_u32 s73, 0\ns_cbranch_scc1 L_fallback")
a.label("L_mdone")
arrive(cDONE, wake=True)
a.label("L_fin")
stamp("end")
if STAMP:
    a("v_lshlrev_b32 v2, 2, v1\ns_lshl_b32 s73, s2, 3\ns_add_u32 s73, s73, s39\ns_lshl_b32 s73, s73, 8\ns_add_u32 s73, s73, %d\ns_nop 4" % STAMP_OFF)
    a("buffer_store_dword %s, v2, %s, s73 offen" % (vSTAMP, WS))
if SPINTO or ENC >= 0:
    a("s_waitcnt vmcnt(0)")
    if ENC >= 0: a("s_sub_u32 s100, s100, s98\ns_min_u32 s100, s100, 5000\ns_add_u32 s100, s100, 4000")
    else: a("s_mov_b32 s100, %d" % SPINTO)
    a.label("L_spinto")
    a("s_sleep 8\ns_memrealtime s[74:75]\ns_waitcnt lgkmcnt(0)\ns_sub_u32 s74, s74, s98\ns_cmp_lt_u32 s74, s100\ns_cbranch_scc1 L_spinto")
a.label("L_end")
a("s_endpgm")

a.label("L_fallback")
a("s_mov_b32 %s, 0x100\ns_mov_b32 s77, 12\ns_waitcnt vmcnt(0)" % sFB)
for t in range(4): a("v_mov_b32 v%d, 0xff800000" % (7 + t))
a("s_mov_b32 %s, 0" % sSK)
a.label("L_fb1")
for m in range(2): kv_load(0, m)
a("s_waitcnt vmcnt(0)")
for t in range(4):
    M(t, 0); M(t, 1)
a.nop(12)
for t in range(4):
    for q in range(8): a("v_max3_f32 v%d, v%d, v%d, v%d" % (7 + t, Sb(t) + 2 * q, Sb(t) + 2 * q + 1, 7 + t))
a("s_add_u32 %s, %s, %d\ns_cmp_lt_u32 %s, %d\ns_cbranch_scc1 L_fb1" % (sSK, sSK, T_TILE, sSK, 16 * T_TILE))
for t in range(4):
    a("v_mov_b32 v2, v%d\nv_mov_b32 v3, v%d\ns_nop 1\nv_permlane32_swap_b32 v2, v3\nv_max_f32 v2, v2, v3" % (7 + t, 7 + t))
    a("s_add_u32 s73, s3, %d\ns_and_b32 s73, s73, 3\ns_lshl_b32 s73, s73, 10\ns_add_u32 s73, s73, %d\nv_lshlrev_b32 v4, 2, v1\nv_add_u32 v%d, s73, v4" % (1 + t, RED, 64 + t))
    a("s_lshl_b32 s73, s3, 8\nv_add_u32 v4, s73, v%d\nds_write_b32 v4, v2" % (64 + t))
arrive(cFB0)
spin(cFB0, 4)
for t in range(4):
    for k in range(4): a("ds_read_b32 v%d, v%d offset:%d" % (2 + k, 64 + t, 256 * k))
    a("s_waitcnt lgkmcnt(0)\nv_max3_f32 v2, v2, v3, v4\nv_max_f32 v%d, v2, v5" % (7 + t))
arrive(cFB1)
spin(cFB1, 4)
zero_o()
a("s_mov_b32 %s, 0\ns_mov_b32 %s, 0" % (sSK, sSV))
for t in range(4): a("v_mov_b32 v%d, v%d" % (208 + t, 7 + t))
a.label("L_fb2")
for k in range(4): kv_load(0, k)
a("s_waitcnt vmcnt(0)")
for t in range(4):
    M(t, 0); M(t, 1)
a.nop(12)
for t in range(4):
    for q in range(16): a("v_sub_f32 v%d, v%d, v%d" % (Sb(t) + q, Sb(t) + q, 208 + t))
    for q in range(16): a("v_exp_f32 v%d, v%d" % (Sb(t) + q, Sb(t) + q))
a.nop(2)
for t in range(4):
    P(t, 0); P(t, 1)
a.nop(12)
a("s_add_u32 %s, %s, %d\ns_add_u32 %s, %s, 2048\ns_cmp_lt_u32 %s, %d\ns_cbranch_scc1 L_fb2" % (sSK, sSK, T_TILE, sSV, sSV, sSV, 16 * 2048))
a("s_branch L_reduce")
a.label("L_codeend")

if FORCE_FB:
    i = a.lines.index("L_red2:")
    a.lines[i + 1:i + 1] = ["s_add_u32 s78, s3, 1", "s_and_b32 s78, s78, 2", "s_lshl_b32 s78, s78, 7", "s_or_b32 s78, s78, 1"]
probs = check(a.lines)
for p in sorted(set(probs)): print(p, file=sys.stderr)
hdr = open("cdna_kernels/%s.s.ref" % NAME).read().split("; Override launch")[0]
out = hdr + ("; stamps: %s\n; wsb: %d\n" % (" ".join(STAMPS), WSB) if STAMP else "") + """; Fused single-launch kernel: QKV projections -> softmax attention + linear attention -> gated output projection.
; @launch grid=(256,1,1) block=(512,1,1) lds=%d
.amdgcn_target "amdgcn-amd-amdhsa--gfx950"
.text
.globl %s_kernel
.p2align 8
.type %s_kernel,@function
%s_kernel:
""" % (LDS_BYTES, NAME, NAME, NAME) + a.text() + """.section .rodata,"a"
.p2align 6
.amdhsa_kernel %s_kernel
  .amdhsa_next_free_vgpr 256
  .amdhsa_next_free_sgpr 102
  .amdhsa_accum_offset 256
  .amdhsa_group_segment_fixed_size 0
  .amdhsa_kernarg_size 80
  .amdhsa_user_sgpr_count 2
  .amdhsa_user_sgpr_kernarg_segment_ptr 1
  .amdhsa_system_sgpr_workgroup_id_x 1
.end_amdhsa_kernel
""" % NAME
dst = [x for x in sys.argv[1:] if not x.startswith("--")]
open(dst[0] if dst else "cdna_kernels/%s.s" % NAME, "w").write(out)
open("stamps.txt", "w").write("\n".join(STAMPS))
print("hazards:", len(set(probs)), "lines:", len(a.lines), file=sys.stderr)
```

```python
import sys, struct
from asmlib import Asm, check

NAME = "gated_mix__mha_block__linear_attn_block__prompt"
def flag(n): return ("--" + n) in sys.argv
def opt(n, d):
    for x in sys.argv:
        if x.startswith("--%s=" % n): return int(x.split("=")[1])
    return d
LITE = flag("lite")
STAMP, FORCE_FB = flag("stamp") or LITE, flag("force-fallback")
SPINTO, ENC = opt("spinto", 0), opt("enc", -1)
AHEAD = opt("ahead", 3); FIRST = min(AHEAD, opt("first", 2))
PREF, WOPF, XPF = opt("pref", 1), opt("wopf", 6), opt("xpf", 0)
PDELAY, PSLEEP, PACE = opt("pdelay", 20), opt("psleep", 6), opt("pace", 5)
HPRIO, MPRIO = opt("hprio", 1), opt("mprio", 2)
WAKE = 0; LONG = opt("long", 16)
HOIST = opt("hoist", 1); WBEARLY = opt("wbearly", 0); WBG0 = opt("wbg0", 12); WAEARLY = opt("waearly", 0); B1PACE = opt("b1pace", 0)

T_OFF, T_TILE = 0, 21 * 4096
N_OFF, N_KIND = 0x540000, 0x200000
O_OFF, O_TILE = 0xB40000, 65536
SLAB_OFF = 0xF40000
G_OFF = 0xFC0000
F1, F2 = 0xFC8000, 0xFD0000
EPOCH_OFF = 0xFF0000
STAMP_OFF = 0x1000000
F5, F4, F3 = 0x1080000, 0x10A0000, 0x10C0000
WS_SIZE = 0x1100000
OOB = 0x40000000
RED, W2B, RSV, FIN = 106496, 98304, 155648, 114688
KVX = RSV + 1024
cM1, cW2, cH2, cF2, cWO, cDONE, cF3, cKV, cF4, cREL, cRD, cVT, cFB0, cFB1, cWB, cGO = range(16)
LDS_BYTES = 163840
SPIN = 1 << 18
WBYTES = 448 * 2688
SLOT = [0, 1, 2, 3, 0, 1, 2]

def f32(x): return struct.unpack("<I", struct.pack("<f", x))[0]
LOG2E = 1.4426950408889634
QSCALE = 28 ** -0.5 * LOG2E

X, W0, W1, W2, WS, OUT, WOA, WOB = ["s[%d:%d]" % (4 + 4 * i, 7 + 4 * i) for i in range(8)]
GW = W0
pX, pWA, pWoA, pWB, pWoB, pG, pOut, pWs = [("s%d" % i, "s%d" % (i + 1)) for i in (40, 42, 44, 48, 50, 52, 54, 58)]
sTAG, sRB, sJ, sH, sQB, sU0, sODD, sRB2, sCC, sP3 = ["s%d" % i for i in range(60, 70)]
sC0, sC1, sRTL = "s70", "s71", "s72"
sCNT, sFB, sMX, sMWc = "s79", "s80", "s81", "s82"
sSCL = "s[84:85]"
sMA, sMB, sMZ = "s[86:87]", "s[88:89]", "s[90:91]"
sSK, sSV = "s92", "s93"
sF12, sF34 = "s97", "s96"
sSTORED = "s38"
vL16, vTAG, vFL, vPOLL, vZERO, vSTAMP, vRSV, vONE, vDUMMY = "v0", "v30", "v29", "v28", "v27", "v31", "v17", "v16", "v18"
OAD = 19
STAMPS = {}
a = Asm()

def stamp(name, cyc=False):
    if name not in STAMPS: STAMPS[name] = len(STAMPS)
    if STAMP and (not LITE or name in ("entry", "end")):
        a("%s s[98:99]\ns_waitcnt lgkmcnt(0)\nv_writelane_b32 %s, s98, %d" % ("s_memtime" if cyc else "s_memrealtime", vSTAMP, STAMPS[name]))
        a.lgq = []
    if ENC == STAMPS[name]:
        a("s_memrealtime s[100:101]\ns_waitcnt lgkmcnt(0)"); a.lgq = []
def vr(b, n=1): return "v%d" % b if n == 1 else "v[%d:%d]" % (b, b + n - 1)
def mfma(d, A, B, c=None): a("v_mfma_f32_32x32x16_bf16 %s, %s, %s, %s" % (d, A, B, d if c is None else c))
def srd(reg, p, size):
    n = int(reg[2:].split(":")[0])
    a("s_mov_b32 s%d, %s\ns_mov_b32 s%d, %s\ns_mov_b32 s%d, %d\ns_mov_b32 s%d, 0x20000" % (n, p[0], n + 1, p[1], n + 2, size, n + 3))
def swap23(dst, src, t):
    a("v_and_b32 %s, 0x13, %s\nv_and_b32 %s, 4, %s\nv_lshl_or_b32 %s, %s, 1, %s\nv_lshrrev_b32 %s, 1, %s\nv_and_or_b32 %s, %s, 4, %s" % (dst, src, t, src, dst, t, dst, t, src, dst, t, dst))
def lane_select(dst, items, t):
    a("v_mov_b32 %s, %s" % (dst, items[0][1]))
    for lo, s in items[1:]:
        a("v_cmp_le_u32 vcc, %d, v1\nv_mov_b32 %s, %s\ns_nop 0\nv_cndmask_b32 %s, %s, %s, vcc" % (lo, t, s, dst, dst, t))
def bounded(top):
    a("s_sub_u32 %s, %s, 1\ns_cbranch_scc0 %s\ns_mov_b32 %s, 0" % (sCNT, sCNT, top, sCNT))
def poll(sleep=0):
    top, done = a.newlabel("poll"), a.newlabel("polled")
    a.label(top)
    a("buffer_load_dword v4, %s, %s, 0 offen sc1\ns_waitcnt vmcnt(0)" % (vPOLL, WS)); a.vmq = []
    a("v_cmp_ne_u32 vcc, %s, v4\ns_cmp_eq_u64 vcc, 0\ns_cbranch_scc1 %s" % (sTAG, done))
    if sleep: a("s_sleep %d" % sleep)
    bounded(top)
    a.label(done)
def flag_store(soff, base):
    a("s_add_u32 s73, %s, %d\nv_mov_b32 v2, %d\nv_mov_b32 v3, s73\nv_cndmask_b32 %s, v2, v3, %s" % (soff, base, OOB, vFL, sMZ))
    a.vm("buffer_store_dword %s, %s, %s, 0 offen sc1" % (vTAG, vFL, WS), "flag")
def arrive(c, rtn=False, val=None, wake=False):
    a("s_mov_b64 exec, 1")
    if rtn: a("ds_add_rtn_u32 v2, %s, %s offset:%d" % (vRSV, val or vONE, 4 * c))
    else: a.ds("ds_add_u32 %s, %s offset:%d" % (vRSV, val or vONE, 4 * c))
    a("s_mov_b64 exec, -1")
    if rtn:
        a("s_waitcnt lgkmcnt(0)\nv_readfirstlane_b32 s83, v2"); a.lgq = []
    if wake and WAKE:
        if not rtn: a.dswait_all()
        a("s_wakeup")
def spin(c, target, sleep=1, mask=None):
    top, done = a.newlabel("spin"), a.newlabel("spun")
    a.label(top)
    a("ds_read_b32 v2, %s offset:%d\ns_waitcnt lgkmcnt(0)\nv_readfirstlane_b32 s83, v2" % (vRSV, 4 * c)); a.lgq = []
    if mask: a("s_and_b32 s94, s83, %d\ns_cmp_ge_u32 s94, %s" % (mask, target))
    else: a("s_cmp_ge_u32 s83, %s" % target)
    a("s_cbranch_scc1 %s" % done)
    if sleep: a("s_sleep %d" % sleep)
    bounded(top)
    a.label(done)
LS = opt("ls", 3)
def publish(c, soff, base, helper=False):
    skip = a.newlabel("nopub")
    if helper: hi()
    arrive(c, True)
    a("s_cmp_lg_u32 s83, 3\ns_cbranch_scc1 %s" % skip)
    flag_store(soff, base)
    a.label(skip)
def group_poll(phase, delay=0, sleep=4):
    oth, done = a.newlabel("rel"), a.newlabel("reld")
    a("s_cmp_lg_u32 s3, 0\ns_cbranch_scc1 %s" % oth)
    if delay: a("s_sleep %d" % delay)
    poll(sleep)
    arrive(cREL, wake=True)
    a("s_branch %s" % done)
    a.label(oth)
    a("s_waitcnt vmcnt(0)")
    spin(cREL, phase, LS)
    a.label(done)
    a.vmq = []; a.lgq = []
SP = opt("sp", 0); DP = opt("dp", 1)
def lo():
    if DP: a("s_setprio 0")
def hi():
    if DP: a("s_setprio 2")
def gap():
    if SP: a("s_sleep %d" % SP)
def pace():
    gap()
    if PACE and len(a.vmq) > PACE:
        a("s_waitcnt vmcnt(%d)" % PACE); a.vmq = a.vmq[-PACE:]
def get_tag():
    a("s_waitcnt lgkmcnt(0)"); a.lgq = []
    a("s_add_u32 %s, %s, 0x9e3779b1\nv_mov_b32 %s, %s" % (sTAG, sTAG, vTAG, sTAG))
def bcast_hi(dst, src, t):
    a("v_mov_b32 %s, %s\nv_mov_b32 %s, %s\ns_nop 1\nv_permlane32_swap_b32 %s, %s" % (t, src, dst, src, t, dst))
def tr_addr(dst, perm, t0, t1, t2):
    a("v_and_b32 %s, 3, v1" % t0)
    if perm: a("v_and_b32 %s, 1, %s\nv_lshrrev_b32 %s, 1, %s\nv_lshl_or_b32 %s, %s, 1, %s" % (t1, t0, t0, t0, t0, t1, t0))
    a("v_bfe_u32 %s, v1, 4, 1\nv_lshl_or_b32 %s, %s, 2, %s" % (t1, t0, t1, t0))
    a("v_bfe_u32 %s, v1, 2, 2\nv_lshrrev_b32 %s, 5, v1\nv_lshl_add_u32 %s, %s, 3, %s" % (t1, t2, t1, t2, t1))
    a("v_lshlrev_b32 %s, 7, %s\nv_lshl_add_u32 %s, %s, 3, %s" % (t1, t1, t1, t0, t1))
    a("v_bfe_u32 %s, v1, 3, 1\nv_lshl_or_b32 %s, %s, 6, %s" % (t0, dst, t0, t1))
def x_addr(base, T, srow, t):
    a("v_and_b32 %s, 31, v1" % t[0])
    if T: a("v_mov_b32 %s, %s" % (t[1], t[0]))
    else: swap23(t[1], t[0], t[2])
    a("v_lshrrev_b32 %s, 5, v1\nv_lshrrev_b32 %s, 1, %s\nv_and_b32 %s, 7, %s" % (t[2], t[3], t[1], t[3], t[3]))
    a("v_lshlrev_b32 %s, 7, %s\nv_add_u32 %s, %s, %s" % (t[1], t[1], t[1], srow, t[1]))
    for k in range(4):
        a("v_add_u32 %s, %d, %s\nv_xor_b32 %s, %s, %s\nv_lshl_add_u32 v%d, %s, 4, %s" % (t[0], 2 * k, t[2], t[0], t[0], t[3], base + k, t[0], t[1]))
        a("v_add_u32 v%d, 65536, v%d" % (base + 4 + k, base + k))
def n_addr(dst, sbase, vf, isV, t):
    a("s_mov_b32 s78, 2341")
    a("v_mul_lo_u32 %s, s78, %s\nv_lshrrev_b32 %s, 16, %s" % (t[0], vf, t[0], t[0]))
    a("v_mul_u32_u24 %s, 28, %s\nv_sub_u32 %s, %s, %s" % (t[1], t[0], t[1], vf, t[1]))
    if not isV: a("v_and_b32 %s, 1, %s\nv_lshlrev_b32 %s, 2, %s" % (t[2], t[0], t[2], t[2]))
    if not isV: a("v_add_u32 %s, %s, %s" % (t[1], t[1], t[2]))
    swap23(t[3], t[1], t[2])
    a("v_lshlrev_b32 %s, 17, %s\nv_lshl_add_u32 %s, %s, 4, %s\nv_lshrrev_b32 %s, 5, v1\nv_lshl_add_u32 %s, %s, 9, %s\nv_add_u32 %s, %s, %s" % (t[0], t[0], t[0], t[3], t[0], t[1], t[0], t[1], t[0], dst, sbase, t[0]))
def o_addr(half):
    a("s_lshl_b32 s73, %s, 2\ns_add_u32 s73, s73, s3\ns_lshl_b32 s73, s73, 16\ns_lshl_b32 s74, %s, 11\ns_add_u32 s73, s73, s74\ns_add_u32 s73, s73, %d\nv_add_u32 v19, s73, %s" % (sQB, sH, O_OFF + half * 32768, vL16))
    a("s_mov_b32 s0, 0\ns_mov_b32 s1, -1")
def store_o(c, tag):
    a("v_cndmask_b32 v%d, v%d, %s, s[0:1]" % (c + 6, c + 6, vZERO))
    for m in range(2): a.vm("buffer_store_dwordx4 %s, v19, %s, 0 offen offset:%d sc1" % (vr(c + 4 * m, 4), WS, 1024 * m), tag)
def load_g(dst):
    a("s_lshl_b32 s73, %s, 2\ns_add_u32 s73, s73, s3\ns_lshl_b32 s73, s73, 7\ns_add_u32 s73, s73, %d\nv_and_b32 v2, 31, v1\nv_lshlrev_b32 v2, 2, v2" % (sQB, G_OFF))
    a.vm("buffer_load_dword %s, v2, %s, s73 offen sc1" % (dst, WS), "g")
def w_srd(reg, sc):
    n = int(reg[2:].split(":")[0])
    a("s_lshl_b32 s75, %s, 1\ns_add_u32 s75, s75, %s\ns_sub_u32 s76, s75, 7\ns_cmp_lt_u32 s75, 21\ns_cselect_b32 s75, s75, s76" % (sJ, sc))
    a("s_cselect_b32 s%d, %s, %s\ns_cselect_b32 s%d, %s, %s\ns_lshl_b32 s75, s75, 7" % (n, pWA[0], pWB[0], n + 1, pWA[1], pWB[1]))
    a("s_add_u32 s%d, s%d, s75\ns_addc_u32 s%d, s%d, 0\ns_sub_u32 s%d, %d, s75\ns_mov_b32 s%d, 0x20000" % (n, n, n + 1, n + 1, n + 2, WBYTES, n + 3))
def roles():
    a("s_and_b32 s73, s2, 7\ns_lshr_b32 s74, s2, 3")
    a("s_and_b32 %s, s74, 1\ns_lshl_b32 s75, s73, 1\ns_add_u32 %s, s75, %s\ns_lshr_b32 %s, s74, 1" % (sODD, sH, sODD, sQB))
    a("s_mul_i32 s75, %s, 7\ns_lshr_b32 %s, s75, 1" % (sH, sU0))
    a("s_mul_i32 s75, s74, 37\ns_lshr_b32 s75, s75, 8\ns_mul_i32 s76, s75, 7\ns_sub_u32 %s, s74, s76\ns_lshl_b32 s76, s73, 2\ns_add_u32 %s, s76, s75" % (sCC, sRB2))
    a("s_cmp_lt_u32 s74, 28\ns_cselect_b32 %s, 1, 0\ns_cselect_b32 %s, %s, 0" % (sP3, sRB2, sRB2))
    a("s_mul_i32 s75, %s, 28\ns_lshr_b32 %s, s75, 6\ns_add_u32 s75, s75, 27\ns_lshr_b32 %s, s75, 6" % (sH, sC0, sC1))
    a("s_mov_b32 %s, %d\ns_mov_b32 %s, 0" % (sCNT, SPIN, sFB))
    a("s_lshl_b32 s75, %s, 4\ns_add_u32 s75, s75, %s\ns_lshl_b32 %s, s75, 7" % (sJ, sRB, sF12))
    a("s_lshl_b32 s75, %s, 4\ns_add_u32 s75, s75, %s\ns_lshl_b32 %s, s75, 7" % (sH, sQB, sF34))
    a("v_cmp_eq_u32 %s, 0, v1\nv_mov_b32 %s, 0\nv_mov_b32 %s, %d\nv_mov_b32 %s, 1" % (sMZ, vZERO, vRSV, RSV, vONE))
def prefetch_wo(helper):
    a("s_lshl_b32 s75, %s, 1\ns_add_u32 s75, s75, %s\ns_sub_u32 s75, s75, 14\ns_lshl_b32 s75, s75, 3\ns_add_u32 s75, s75, s3\ns_add_u32 s75, s75, %d\ns_mul_i32 s75, s75, 13" % (sRB, sJ, 4 * helper))
    a("v_add_u32 v11, s75, v1\nv_min_u32 v11, %d, v11\nv_lshlrev_b32 v11, 7, v11" % (448 * 7 - 1))
    a("s_mov_b64 exec, 0x1fff\nglobal_load_dword %s, v11, s[44:45]\nglobal_load_dword %s, v11, s[50:51]\ns_mov_b64 exec, -1" % (vDUMMY, vDUMMY))
WSB = opt("wsb", 0) << 20
def epoch_load():
    if WSB: a("s_add_u32 s58, s58, %d\ns_addc_u32 s59, s59, 0" % WSB)
    a("s_mov_b32 s73, %d\ns_load_dword %s, s[58:59], s73" % (EPOCH_OFF, sTAG))

a("s_cmp_ge_u32 s2, 256\ns_cbranch_scc1 L_end")
a("s_load_dwordx16 s[40:55], s[0:1], 0\ns_load_dwordx4 s[56:59], s[0:1], 64")
if SPINTO or ENC >= 0: a("s_memrealtime s[98:99]")
if ENC >= 0: a("s_waitcnt lgkmcnt(0)\ns_mov_b32 s100, s98")
if STAMP: a("v_mov_b32 %s, 0" % vSTAMP)
stamp("entry")
a("s_getpc_b64 s[36:37]")
a.label("L_pc")
a("""
v_lshrrev_b32 v2, 6, v0
v_and_b32 v1, 63, v0
s_and_b32 s75, s2, 0x38
v_readfirstlane_b32 s83, v2
v_add_u32 v3, s75, v2
v_lshl_add_u32 v3, v3, 3, v1
v_lshlrev_b32 v3, 7, v3
s_mov_b32 s75, L_codeend-L_pc-4
v_min_u32 v3, s75, v3
s_mov_b64 exec, 0xff
global_load_dword %s, v3, s[36:37]
s_mov_b64 exec, -1
s_and_b32 s3, s83, 3
s_lshr_b32 s74, s2, 3
s_and_b32 s75, s2, 1
s_lshl_b32 s75, s75, 3
s_and_b32 s76, s74, 7
s_add_u32 %s, s75, s76
s_and_b32 s75, s2, 6
s_lshl_b32 s75, s75, 1
s_lshr_b32 s76, s2, 6
s_add_u32 %s, s75, s76
v_lshlrev_b32 v0, 4, v1
""" % (vDUMMY, sRB, sJ))
if STAMP: a("s_mov_b32 s39, s83")
a("s_cmp_ge_u32 s83, 4\ns_cbranch_scc1 L_helper")
if PREF:
    a("""
v_lshl_add_u32 v3, s2, 2, v2
v_mad_u32_u24 v4, v3, 14, v1
v_mad_u32_u24 v5, v3, 10, v1
v_lshlrev_b32 v4, 7, v4
v_min_u32 v5, %d, v5
v_lshlrev_b32 v5, 7, v5
s_mov_b64 exec, 0x3fff
s_waitcnt lgkmcnt(0)
global_load_dword %s, v4, s[40:41]
s_mov_b64 exec, 0x3ff
global_load_dword %s, v5, s[42:43]
global_load_dword %s, v5, s[48:49]
s_mov_b64 exec, -1
""" % (448 * 21 - 1, vDUMMY, vDUMMY, vDUMMY))
a("s_branch L_main")

a.label("L_helper")
a("v_lshrrev_b32 v10, 3, v1\nv_and_b32 v11, 7, v1\nv_lshrrev_b32 v12, 4, v1\nv_xor_b32 v2, v11, v12\nv_lshlrev_b32 v2, 4, v2")
a("s_lshl_b32 s75, %s, 2\ns_add_u32 s75, s75, s3\ns_mul_i32 s75, s75, %d\nv_mul_u32_u24 v13, 896, v10\nv_add3_u32 v3, s75, v13, v2" % (sRB, 32 * 896))
a("v_xor_b32 v4, 64, v3\nv_add_u32 v4, 6144, v4\nv_add_u32 v5, 12288, v3\nv_add_u32 v6, 12288, v4")
a("s_lshl_b32 %s, s3, 12\ns_lshl_b32 %s, s3, 11\ns_mov_b32 s6, %d\ns_mov_b32 s7, 0x20000" % (sMX, sMWc, 2048 * 896))
a("v_and_b32 v9, 1, v12\nv_lshlrev_b32 v9, 2, v9\nv_xor_b32 v9, v9, v11\nv_lshlrev_b32 v9, 4, v9")
a("s_mul_i32 s76, s3, %d\nv_mul_u32_u24 v14, 2688, v10\nv_add3_u32 v7, s76, v14, v9\nv_add_u32 v8, %d, v7" % (16 * 2688, 8 * 2688 - 1024))
a("s_cmp_ge_u32 %s, 14\ns_waitcnt lgkmcnt(0)\ns_mov_b32 s4, %s\ns_mov_b32 s5, %s\ns_cbranch_scc1 L_h_gate" % (sJ, pX[0], pX[1]))
stamp("h_go")
def other_setup():
    if HPRIO: a("s_setprio %d" % HPRIO)
    epoch_load()
    roles()
    a("s_lshl_b32 s77, %s, 7\nv_add3_u32 v26, s77, v13, v9" % sCC)
    a("s_lshl_b32 s75, %s, 7\ns_add_u32 s16, %s, s75\ns_addc_u32 s17, %s, 0\ns_sub_u32 s18, %d, s75\ns_mov_b32 s19, 0x20000" % (sJ, pWB[0], pWB[1], WBYTES))
    srd(WS, pWs, WS_SIZE); srd(OUT, pOut, 2048 * 896); srd(WOA, pWoA, 448 * 896); srd(WOB, pWoB, 448 * 896)
def dma_slab(s):
    slot = SLOT[s]
    a("s_add_u32 m0, %s, %d\ns_mov_b32 s73, %d" % (sMX, slot * 32768, s * 128))
    for i in range(4): a.vm("buffer_load_dwordx4 v%d, %s, s73 offen offset:%d lds" % (3 + i, X, 1024 * i), "slab%d" % s)
    for c, reg in ((0, W0), (1, W1)):
        if s == 0: w_srd(reg, str(c))
        a("s_add_u32 m0, %s, %d\ns_mov_b32 s73, %d" % (sMWc, slot * 32768 + 16384 + c * 8192, s * 64 * 2688))
        for i in range(2): a.vm("buffer_load_dwordx4 v%d, %s, s73 offen offset:%d lds" % (7 + i, reg, 1024 * i), "slab%d" % s)
def dma_w2(s2):
    a("s_add_u32 m0, %s, %d\ns_mov_b32 s73, %d" % (sMWc, W2B + s2 * 8192, s2 * 64 * 2688))
    for i in range(2): a.vm("buffer_load_dwordx4 v%d, %s, s73 offen offset:%d lds" % (7 + i, W2, 1024 * i), "w2")
for s in range(FIRST): dma_slab(s)
stamp("h_issued")
other_setup()
if XPF:
    a("s_lshr_b32 s74, s2, 3\ns_and_b32 s75, s2, 1\ns_lshl_b32 s75, s75, 5\ns_add_u32 s75, s75, s74\ns_lshl_b32 s75, s75, 2\ns_add_u32 s75, s75, s3\ns_mul_i32 s75, s75, %d" % (8 * 896))
    a("v_mul_u32_u24 v104, 896, v1\nv_add_u32 v104, s75, v104")
    a("s_and_b32 s76, s74, 3\ns_lshl_b32 s76, s76, 2\ns_add_u32 s76, s76, s3\ns_mul_i32 s76, s76, %d\nv_mul_u32_u24 v105, 2688, v1\nv_add_u32 v105, s76, v105" % (4 * 2688))
    a("s_bitcmp1_b32 s74, 2\ns_cselect_b32 s36, s12, s8\ns_cselect_b32 s37, s13, s9")
def xpf(k):
    if not XPF or k > 6: return
    a("s_mov_b64 exec, 0xff")
    a.vm("global_load_dword %s, v104, s[40:41] offset:%d" % (vDUMMY, 128 * k))
    a("v_add_u32 v106, %d, v105\ns_mov_b64 exec, 0xf" % (k * 64 * 2688))
    a.vm("global_load_dword %s, v106, s[36:37]" % vDUMMY)
    a("s_mov_b64 exec, -1")
vmq0 = list(a.vmq)
a("s_cmp_ge_u32 %s, 7\ns_cbranch_scc1 L_h_N" % sJ)
def Xh(g): return vr(144 + 4 * g, 4)
def acc2(ct): return 64 + 16 * ct
def Wh(g, ct, e=None):
    b = 32 + 8 * (g & 3) + 4 * ct
    return vr(b, 4) if e is None else vr(b + 2 * e, 2)
def helper_p1(T):
    a.vmq = list(vmq0); a.lgq = []
    tmp = ["v10", "v11", "v12", "v13"]
    xpf(AHEAD)
    x_addr(96, T, sMX, tmp)
    tr_addr("v13", T, "v10", "v11", "v12")
    a("v_add_u32 v108, %d, v13\nv_xor_b32 v109, 64, v108" % W2B)
    a("s_lshl_b32 s75, %s, 2\ns_add_u32 s75, s75, s3" % sRB)
    if T:
        a("s_mul_i32 s77, s75, %d\ns_add_u32 s78, %s, 14\ns_lshl_b32 s78, s78, 12\ns_add_u32 s78, s78, s77\nv_add_u32 v110, s78, %s\nv_add_u32 v111, 2048, v110" % (T_TILE, sJ, vL16))
    else:
        a("s_lshl_b32 s75, s75, 11\ns_add_u32 s77, s75, %d" % (N_OFF + 2 * N_KIND))
        for ct in range(2):
            a("s_sub_u32 s73, %s, 7\ns_lshl_b32 s73, s73, 6\ns_add_u32 s73, s73, %d\nv_and_b32 v14, 31, v1\nv_add_u32 v14, s73, v14" % (sJ, 32 * ct))
            n_addr("v%d" % (110 + ct), "s77", "v14", False, tmp)
    for s in range(7):
        a.vmwait("slab%d" % s)
        if s: a.dswait_all()
        stamp("h_s%d" % s)
        a("s_barrier")
        slot = SLOT[s]; hi, lo = slot >> 1, (slot & 1) * 32768
        for t in range(4): a.ds("ds_read_b128 %s, v%d offset:%d" % (Xh(4 * s + t), 96 + 4 * hi + t, lo))
        xpf(s + AHEAD + 1)
        if s == 0:
            for k in range(FIRST, AHEAD): dma_slab(k)
        if s + AHEAD < 7: dma_slab(s + AHEAD)
        if s == 7 - AHEAD:
            for k2 in range(4): dma_w2(k2)
        if s == 8 - AHEAD:
            for k2 in range(4, 7): dma_w2(k2)
    a.vmwait("w2")
    get_tag()
    arrive(cW2)
    spin(cW2, 4, 0)
    stamp("h_r2_start")
    def reads(g):
        for ct in range(2):
            for e in range(2):
                a.ds("ds_read_b64_tr_b16 %s, v%d offset:%d" % (Wh(g, ct, e), 108 + ct, (g >> 2) * 8192 + (g & 3) * 2048 + e * 512), g)
    reads(0); reads(1)
    a("s_mul_i32 s75, s3, %d\ns_mul_i32 s76, s3, %d" % (14 * 1024, 14 * 8 * 896))
    for g in range(28):
        a.dswait(g)
        for ct in range(2):
            if T: mfma(vr(acc2(ct), 16), Wh(g, ct), Xh(g), "0" if g == 0 else None)
            else: mfma(vr(acc2(ct), 16), Xh(g), Wh(g, ct), "0" if g == 0 else None)
            if ct == 0 and g < 26: reads(g + 2)
            if WBEARLY and ct == 1 and WBG0 <= g < WBG0 + 14:
                i = g - WBG0
                a("s_add_u32 m0, s75, %d\ns_add_u32 s74, s76, %d" % (i * 1024, i * 8 * 896))
                a.vm("buffer_load_dwordx4 v26, %s, s74 offen lds" % WOB, "wo")
            if ct == 0 and g == 27: arrive(cH2)
    stamp("h_r2_end")
helper_p1(True)
a("s_branch L_h_phi")
a.label("L_h_N")
helper_p1(False)
a.label("L_h_phi")
a.vmq = []; a.lgq = []
a("s_mov_b32 s84, 0x%x\ns_mov_b32 s85, s84\ns_mov_b32 s94, 0x%x\ns_mov_b32 s95, s94" % (f32(LOG2E), f32(1e-6)))
a.nop(8)
def wa_piece(i):
    a("s_add_u32 m0, s75, %d\ns_add_u32 s74, s76, %d" % (57344 + i * 1024, i * 8 * 896))
    a("buffer_load_dwordx4 v26, %s, s74 offen lds" % WOA)
if WAEARLY:
    spin(cH2, 8, 0)
    a("s_mul_i32 s75, s3, %d\ns_mul_i32 s76, s3, %d" % (12 * 1024, 12 * 8 * 896))
for ct in range(2):
    b = acc2(ct)
    for q in range(8): a("v_pk_mul_f32 %s, %s, %s" % (vr(112 + 2 * q, 2), vr(b + 2 * q, 2), sSCL))
    for q in range(16):
        a("v_exp_f32_e64 v%d, v%d clamp" % (112 + q, 112 + q))
        if WAEARLY and q % 4 == 3: wa_piece(6 * ct + q // 4)
    for q in range(16):
        a("v_max_f32 v%d, 0, v%d" % (b + q, b + q))
        if WAEARLY and q % 8 == 7: wa_piece(6 * ct + 4 + q // 8)
    for q in range(8): a("v_pk_add_f32 %s, %s, %s" % (vr(b + 2 * q, 2), vr(b + 2 * q, 2), vr(112 + 2 * q, 2)))
    for q in range(8): a("v_pk_add_f32 %s, %s, s[94:95]" % (vr(b + 2 * q, 2), vr(b + 2 * q, 2)))
    for q in range(8): a("v_cvt_pk_bf16_f32 v%d, v%d, v%d" % (32 + 8 * ct + q, b + 2 * q, b + 2 * q + 1))
stamp("h_phi")
a("s_branch L_h_join")
a.label("L_h_gate")
other_setup()
a("v_mov_b32 v110, %d\nv_mov_b32 v111, %d" % (OOB, OOB))
get_tag()
a("s_barrier")
arrive(cH2)
if opt("hwd", 16): a("s_sleep %d" % opt("hwd", 16))
prefetch_wo(1)
if WBEARLY:
    a("s_mul_i32 s75, s3, %d\ns_mul_i32 s76, s3, %d" % (14 * 1024, 14 * 8 * 896))
    for i in range(14):
        a("s_add_u32 m0, s75, %d\ns_add_u32 s74, s76, %d" % (i * 1024, i * 8 * 896))
        a("buffer_load_dwordx4 v26, %s, s74 offen lds" % WOB)
if WAEARLY:
    a("s_mul_i32 s75, s3, %d\ns_mul_i32 s76, s3, %d" % (12 * 1024, 12 * 8 * 896))
    for i in range(12): wa_piece(i)
a.label("L_h_join")
a.vmq = []; a.lgq = []
vB1a, vB1b, vSL, vPQ, vGh, vO, vOUT, vWB, vWA = "v25", "v24", "v23", "v22", "v18", "v15", "v14", 10, 12
def dma_wo(half, reg, first, per, paced=True):
    a("s_mul_i32 s75, s3, %d\ns_mul_i32 s76, s3, %d" % (per * 1024, per * 8 * 896))
    if paced: lo()
    for i in range(per):
        a("s_add_u32 m0, s75, %d\ns_add_u32 s74, s76, %d" % (half * 57344 + (first + i) * 1024, (first + i) * 8 * 896))
        a.vm("buffer_load_dwordx4 v26, %s, s74 offen lds" % reg, "wo")
        if paced and opt("wogap", 1): a("s_sleep %d" % opt("wogap", 1))
    if paced: hi()
a("s_add_u32 s73, %s, 23\ns_add_u32 s74, %s, 23\ns_add_u32 s75, %s, 16\ns_add_u32 s76, %s, 16\ns_add_u32 s77, %s, 21\ns_lshr_b32 s77, s77, 1\ns_add_u32 s78, %s, 21\ns_lshr_b32 s78, s78, 1" % (sC0, sC1, sC0, sC1, sC0, sC1))
lane_select("v2", [(0, "s73"), (1, "s74"), (2, "s75"), (3, "s76"), (4, "s77"), (5, "s78"), (6, "14"), (7, "15")], "v3")
a("s_lshl_b32 s73, %s, 7\ns_add_u32 s73, s73, %d\nv_lshlrev_b32 v2, 11, v2\nv_add_u32 %s, s73, v2" % (sQB, F1, vPOLL))
a("s_lshl_b32 s73, %s, 17\ns_lshl_b32 s74, %s, 13\ns_add_u32 s73, s73, s74\ns_add_u32 s73, s73, %d" % (sH, sQB, N_OFF + N_KIND))
a("v_lshrrev_b32 v2, 4, v1\nv_and_b32 v3, 15, v1\nv_lshlrev_b32 v3, 4, v3\nv_lshl_add_u32 v2, v2, 9, v3")
a("s_and_b32 s74, s3, 1\ns_lshl_b32 s74, s74, 8\ns_add_u32 s74, s74, s73\nv_add_u32 %s, s74, v2" % vB1b)
a("s_lshr_b32 s74, s3, 1\ns_lshl_b32 s74, s74, 8\ns_add_u32 s74, s74, s73\ns_add_u32 s74, s74, %d\nv_add_u32 %s, s74, v2" % (N_KIND, vB1a))
a("s_lshl_b32 s73, %s, 15\ns_lshl_b32 s74, s3, 13\ns_add_u32 s73, s73, s74\ns_add_u32 s73, s73, %d" % (sH, SLAB_OFF))
a("v_and_b32 v2, 15, v1\nv_lshlrev_b32 v2, 5, v2\nv_lshrrev_b32 v3, 4, v1\nv_lshl_add_u32 v4, v3, 3, v2\ns_lshl_b32 s74, %s, 9\ns_add_u32 s74, s74, s73\nv_add_u32 v141, s74, v4" % sQB)
a("v_and_b32 v4, 1, v3\nv_lshl_add_u32 v2, v4, 4, v2\nv_lshrrev_b32 v3, 1, v3\nv_lshl_add_u32 v2, v3, 9, v2\nv_add_u32 %s, s73, v2" % vSL)
a("v_and_b32 v2, 15, v1\nv_lshlrev_b32 v4, 3, v4\nv_sub_u32 v2, v2, v4\nv_and_b32 v3, 1, v2\nv_lshlrev_b32 v3, 4, v3\nv_mov_b32 v4, 0x3f80\nv_lshlrev_b32 v3, v3, v4\nv_lshrrev_b32 v2, 1, v2")
for k in range(4): a("v_cmp_eq_u32 vcc, %d, v2\ns_nop 1\nv_cndmask_b32 v%d, %s, v3, vcc" % (k, 136 + k, vZERO))
a("s_lshl_b32 s73, %s, 2\ns_add_u32 s73, s73, s3\ns_mul_i32 s73, s73, %d\ns_lshl_b32 s74, %s, 9\ns_add_u32 s73, s73, s74\ns_add_u32 s73, s73, %d\nv_add_u32 %s, s73, %s" % (sQB, T_TILE, sU0, T_OFF + 14 * 4096, vPQ, vL16))
o_addr(1)
a("s_lshl_b32 s73, %s, 2\ns_add_u32 s73, s73, s3\ns_lshl_b32 s73, s73, 11\ns_add_u32 s73, s73, %d\nv_and_b32 v2, 15, v1\nv_lshlrev_b32 v3, 7, v2\nv_add_u32 v9, s73, v3" % (sH, F3))
a("s_lshl_b32 s74, %s, 7\ns_add_u32 s73, s73, s74\nv_mov_b32 v2, %d\nv_mov_b32 v3, s73\nv_cndmask_b32 v20, v2, v3, %s" % (sQB, OOB, sMZ))
a("s_lshl_b32 s73, %s, 2\ns_add_u32 s73, s73, s3\ns_lshl_b32 s73, s73, 4\ns_add_u32 s73, s73, %s\ns_lshl_b32 s73, s73, 7\ns_add_u32 s73, s73, %d\nv_mov_b32 v3, s73\nv_cndmask_b32 v21, v2, v3, %s" % (sQB, sH, F4, sMZ))
a("s_lshl_b32 s73, %s, 1\ns_and_b32 s74, s3, 1\ns_add_u32 s73, s73, s74\ns_lshr_b32 s74, s3, 1" % sRB2)
a("s_lshl_b32 s75, s73, 1\ns_add_u32 s75, s75, s74\ns_lshl_b32 s75, s75, 10\ns_add_u32 s75, s75, %d\nv_and_b32 v2, 7, v1\nv_lshlrev_b32 v2, 7, v2\nv_add_u32 v140, s75, v2" % F5)
a("s_mul_i32 s75, s73, %d\ns_mul_i32 s76, s74, 16384\ns_add_u32 s75, s75, s76\ns_add_u32 s75, s75, %d\nv_add_u32 %s, s75, %s" % (O_TILE, O_OFF, vO, vL16))
a("s_mul_i32 s75, s73, %d\ns_lshl_b32 s76, %s, 7\ns_add_u32 s75, s75, s76\ns_lshl_b32 s76, s74, 6\ns_add_u32 s75, s75, s76" % (32 * 896, sCC))
a("v_and_b32 v2, 31, v1\nv_mul_u32_u24 v2, 896, v2\nv_lshrrev_b32 v3, 5, v1\nv_lshl_add_u32 v2, v3, 4, v2\nv_add_u32 %s, s75, v2" % vOUT)
tr_addr("v4", True, "v2", "v3", "v5")
a("v_xor_b32 v4, s76, v4\ns_mul_i32 s75, s74, 28672\nv_add_u32 v%d, s75, v4\nv_xor_b32 v%d, 64, v%d" % (vWB, vWB + 1, vWB))
a("v_add_u32 v%d, 57344, v%d\nv_add_u32 v%d, 57344, v%d" % (vWA, vWB, vWA + 1, vWB + 1))
a("v_lshrrev_b32 v2, 5, v1\nv_lshlrev_b32 v2, 9, v2")
for k in range(4): a("v_sub_u32 v%d, v%d, v2" % (132 + k, vWB + k))
a("s_lshl_b32 s73, s74, 2\ns_cmp_eq_u32 %s, 0\ns_cselect_b32 s75, 7, 0\ns_sub_u32 s75, s75, s73" % sODD)
a("v_lshrrev_b32 v2, 4, v1\nv_cmp_eq_u32 %s, s75, v2" % sMA)
a("s_lshl_b32 s73, s73, 8\ns_and_b32 s75, s3, 1\ns_lshl_b32 s75, s75, 8\ns_add_u32 s73, s73, s75\ns_add_u32 s73, s73, %d" % KVX)
a("v_and_b32 v3, 15, v1\nv_lshlrev_b32 v3, 4, v3\nv_and_b32 v4, 1, v2\nv_lshl_add_u32 v3, v4, 9, v3\nv_lshrrev_b32 v4, 1, v2\nv_lshl_add_u32 v3, v4, 3, v3\nv_add_u32 v7, s73, v3")
a("v_add_u32 v6, %d, %s" % (KVX, vL16))
if WBEARLY:
    a.vmwait_all()
    arrive(cWB)
HOLD = opt("hold", 2)
if HOLD == 2: spin(cGO, 4, LS)
elif HOLD == 1:
    spin(cM1, 4, 2)
    if opt("hd", 0): a("s_sleep %d" % opt("hd", 0))
lo()
for ct in range(2):
    for m in range(2): a.vm("buffer_store_dwordx4 %s, v%d, %s, 0 offen offset:%d sc1" % (vr(32 + 8 * ct + 4 * m, 4), 110 + ct, WS, 1024 * m)); opt("pg", 0) and a("s_sleep %d" % opt("pg", 0))
a.vmwait_all()
publish(cF2, sF12, F2, True)
stamp("h_f2sent")
if HOLD < 2: spin(cGO, 4, LS)
for k in range(4): a("v_mov_b32 v%d, -1" % (48 + k))
a("v_subrev_u32 v52, 32768, v19")
lo()
a.vm("buffer_store_dwordx2 v[48:49], v141, %s, 0 offen sc1" % WS)
for adr in ("v19", "v52"):
    for m in range(2):
        if opt("mgap", 2): a("s_sleep %d" % opt("mgap", 2))
        a.vm("buffer_store_dwordx4 v[48:51], %s, %s, 0 offen offset:%d sc1" % (adr, WS, 1024 * m))
a.vmwait_all()
hi()
arrive(cRD)
group_poll(1, opt("d2", 0))
stamp("h_f2seen"); lo()
for k in range(4):
    a("s_mov_b32 s73, %d" % (2048 * k))
    a.vm("buffer_load_dwordx4 %s, %s, %s, s73 offen sc1" % (vr(64 + 8 * k, 4), vB1a, WS)); pace() if B1PACE else gap()
    a.vm("buffer_load_dwordx4 %s, %s, %s, s73 offen sc1" % (vr(68 + 8 * k, 4), vB1b, WS)); pace() if B1PACE else gap()
a.vmwait_all()
hi()
a("v_mov_b32 %s, v9" % vPOLL)
for k in range(4):
    a("v_mfma_f32_16x16x32_bf16 v[96:99], %s, %s, %s" % (vr(64 + 8 * k, 4), vr(68 + 8 * k, 4), "v[96:99]" if k else "0"))
a.nop(8)
a("v_cvt_pk_bf16_f32 v96, v96, v97\nv_cvt_pk_bf16_f32 v97, v98, v99")
a("v_cndmask_b32 v96, v96, %s, %s\nv_cndmask_b32 v97, v97, %s, %s" % (vZERO, sMA, vZERO, sMA))
a("v_min_u32 v96, -2, v96")
a.vm("buffer_store_dwordx2 v[96:97], v141, %s, 0 offen sc1" % WS)
a.vm("buffer_store_dword %s, v20, %s, 0 offen sc1" % (vTAG, WS))
stamp("h_f3sent")
lo()
for m in range(2): gap(); a.vm("buffer_load_dwordx4 %s, %s, %s, 0 offen offset:%d sc1" % (vr(56 + 4 * m, 4), vPQ, WS, 1024 * m))
load_g(vGh)
hi()
if not WBEARLY:
    spin(cH2, 8)
    dma_wo(0, WOB, 0, 14)
    a.vmwait_all()
    arrive(cWB)
poll(opt("s3", 4))
stamp("h_f3seen")
a.label("L_b2")
lo()
for k in range(8):
    if k % 4 == 0: a("s_mov_b32 s73, %d" % (1024 * k))
    a.vm("buffer_load_dwordx4 %s, %s, %s, s73 offen offset:%d sc1" % (vr(72 + 4 * k, 4), vSL, WS, 1024 * (k % 4))); pace() if B1PACE else gap()
a.vmwait_all()
hi()
def verify(regs, again):
    ok = a.newlabel("ok")
    a("v_max_u32 v5, v%d, v%d" % (regs[0], regs[1]))
    for k in range(2, len(regs), 2): a("v_max3_u32 v5, v5, v%d, v%d" % (regs[k], regs[k + 1]))
    a("v_cmp_eq_u32 vcc, -1, v5\ns_cmp_eq_u64 vcc, 0\ns_cbranch_scc1 %s" % ok)
    bounded(again)
    a.label(ok)
verify([72 + 2 * k for k in range(16)], "L_b2")
a("v_add_u32 %s, %d, v140" % (vPOLL, F4 - F5))
for k in range(8):
    a("v_mfma_f32_16x16x32_bf16 v[64:67], v[136:139], %s, %s" % (vr(72 + 4 * k, 4), "v[64:67]" if k else "0"))
a.nop(8)
a("v_cvt_pk_bf16_f32 v4, v64, v65\nv_cvt_pk_bf16_f32 v5, v66, v67\nds_write_b64 v7, v[4:5]")
arrive(cKV, wake=True)
spin(cKV, 4, 4 if WAKE else 1)
a("ds_read_b128 v[64:67], v6\nds_read_b128 v[68:71], v6 offset:1024\ns_waitcnt lgkmcnt(0)")
mfma("v[80:95]", "v[64:67]", "v[56:59]", "0")
mfma("v[80:95]", "v[68:71]", "v[60:63]")
a("v_sub_f32 v4, 1.0, %s" % vGh)
a.nop(11)
bcast_hi("v2", "v92", "v3")
a("v_add_f32 v2, 0x%x, v2\nv_rcp_f32 v2, v2\ns_nop 0\nv_mul_f32 v2, v2, v4" % f32(1e-6))
for q in range(16): a("v_mul_f32 v%d, v2, v%d" % (80 + q, 80 + q))
for q in range(8): a("v_cvt_pk_bf16_f32 v%d, v%d, v%d" % (64 + q, 80 + 2 * q, 81 + 2 * q))
for q in (0, 4): a("v_min_u32 v%d, -2, v%d" % (64 + q, 64 + q))
store_o(64, "ob")
a.vm("buffer_store_dword %s, v21, %s, 0 offen sc1" % (vTAG, WS))
stamp("h_f4sent")
a("s_cmp_eq_u32 %s, 0\ns_cbranch_scc1 L_fin" % sP3)
spin(cH2, 8)
dma_wo(1, WOA, 0, 12)
poll(opt("s4", 4))
stamp("h_f4seen")
def Of(g): return vr(64 + 4 * g, 4)
def accB(c): return 32 + 16 * c
def accA(c): return 136 + 16 * c
def Wf(g, c, e=None):
    b = 168 + 8 * (g % 3) + 4 * c
    return vr(b, 4) if e is None else vr(b + 2 * e, 2)
NK = 16
def w_reads(base, g):
    for c in range(2):
        for e in range(2):
            b = base + c if not (g & 1 and e) else 132 + base - vWB + c
            a.ds("ds_read_b64_tr_b16 %s, v%d offset:%d" % (Wf(g, c, e), b, (28 * (g >> 1) + 16 * (g & 1) + 4 * e) * 128), (base, g))
def o_loads(half):
    for g in range(NK):
        if g % 4 == 0: a("s_mov_b32 s73, %d" % (half * 32768 + g * 1024))
        a.vm("buffer_load_dwordx4 %s, %s, %s, s73 offen offset:%d sc1" % (Of(g), vO, WS, (g % 4) * 1024), ("o", g))
        if half and opt("obgap", 0): a("s_sleep %d" % opt("obgap", 0))
a.label("L_ob")
lo()
o_loads(1)
a.vmwait_all()
hi()
verify([64 + 4 * g for g in range(NK)], "L_ob")
a("v_mov_b32 %s, v140" % vPOLL)
a("s_xor_b32 s73, s3, 2\ns_lshl_b32 s73, s73, 12\ns_add_u32 s73, s73, %d\nv_add_u32 v6, s73, %s\ns_lshl_b32 s73, s3, 12\ns_add_u32 s73, s73, %d\nv_add_u32 v7, s73, %s" % (FIN, vL16, FIN, vL16))
P3E = 0
def OAf(g): return vr(192 + 4 * g, 4)
def oa_loads():
    for g in range(NK):
        if g % 4 == 0: a("s_mov_b32 s73, %d" % (g * 1024))
        a.vm("buffer_load_dwordx4 %s, %s, %s, s73 offen offset:%d sc1" % (OAf(g), vO, WS, (g % 4) * 1024), ("a", g))
ADAPT = opt("adapt", 1)
spin(cWB, 4, 1)
spin(cDONE, 4, opt("dsl", 2))
dma_wo(1, WOA, 48, 2, False)
a("s_mov_b32 s77, 0")
if ADAPT:
    a("buffer_load_dword v4, %s, %s, 0 offen sc1" % (vPOLL, WS))
w_reads(vWB, 0); w_reads(vWB, 1)
for g in range(NK):
    a.dswait((vWB, g))
    mfma(vr(accB(0), 16), Wf(g, 0), Of(g), "0" if g == 0 else None)
    if g < NK - 2: w_reads(vWB, g + 2)
    mfma(vr(accB(1), 16), Wf(g, 1), Of(g), "0" if g == 0 else None)
    if ADAPT and g == opt("ag", 5):
        a("s_waitcnt vmcnt(0)")
        arrive(cWO)
        a("v_cmp_ne_u32 vcc, %s, v4\ns_cmp_eq_u64 vcc, 0\ns_cbranch_scc0 L_notyet\ns_mov_b32 s77, 1" % sTAG)
        oa_loads()
        a.label("L_notyet")
stamp("h_p3b_done")
a("s_cmp_lg_u32 s77, 0\ns_cbranch_scc1 L_p3a2")
poll(2)
if not ADAPT: arrive(cWO)
stamp("h_f5seen")
a.label("L_p3a")
a.vmq = []
oa_loads()
a.label("L_p3a2")
spin(cWO, 4, 0)
w_reads(vWA, 0); w_reads(vWA, 1)
a("v_mov_b32 v5, 0")
for g in range(NK):
    a.vmwait(("a", g)); a.dswait((vWA, g))
    if g == 0: stamp("h_oa0")
    mfma(vr(accA(1), 16), Wf(g, 1), OAf(g), vr(accB(1), 16) if g == 0 else None)
    if g < NK - 2: w_reads(vWA, g + 2)
    mfma(vr(accA(0), 16), Wf(g, 0), OAf(g), vr(accB(0), 16) if g == 0 else None)
    if g & 1: a("v_max3_u32 v5, v5, v%d, v%d" % (188 + 4 * g, 192 + 4 * g))
a("v_cmp_eq_u32 vcc, -1, v5\ns_cmp_eq_u64 vcc, 0\ns_cbranch_scc1 L_p3ok")
a.nop(8)
bounded("L_p3a")
a.label("L_p3ok")
a.nop(7)
for i in range(4): a.ds("ds_write_b128 v6, %s offset:%d" % (vr(accA(1) + 4 * i, 4), 1024 * i))
a.dswait_all()
a("s_barrier")
for i in range(4): a.ds("ds_read_b128 %s, v7 offset:%d" % (vr(64 + 4 * i, 4), 1024 * i), i)
for i in range(4):
    a.dswait(i)
    for q in range(2): a("v_pk_add_f32 %s, %s, %s" % (vr(accA(0) + 4 * i + 2 * q, 2), vr(accA(0) + 4 * i + 2 * q, 2), vr(64 + 4 * i + 2 * q, 2)))
    for q in range(2): a("v_cvt_pk_bf16_f32 v%d, v%d, v%d" % (80 + 2 * i + q, accA(0) + 4 * i + 2 * q, accA(0) + 4 * i + 2 * q + 1))
    if i & 1: a.vm("buffer_store_dwordx4 %s, %s, %s, 0 offen offset:%d" % (vr(80 + 2 * i - 2, 4), vOUT, OUT, 16 * (i - 1)))
a("s_or_b32 s73, s2, s3\ns_cmp_lg_u32 s73, 0\ns_cbranch_scc1 L_fin")
a("v_mov_b32 v2, %d\nv_mov_b32 v3, %d\nv_cndmask_b32 v2, v2, v3, %s" % (OOB, EPOCH_OFF, sMZ))
a.vm("buffer_store_dword %s, v2, %s, 0 offen sc1" % (vTAG, WS))
a("s_branch L_fin")

a.label("L_main")
a.vmq = []; a.lgq = []
a("s_waitcnt lgkmcnt(0)")
if MPRIO: a("s_setprio %d" % MPRIO)
epoch_load()
roles()
srd(WS, pWs, WS_SIZE)
a("v_lshlrev_b32 v2, 2, v1\nv_add_u32 v2, %d, v2\nds_write_b32 v2, %s" % (RSV, vZERO))
o_addr(0)
a("s_mov_b32 %s, 0" % sSTORED)
def Xm(buf, rtl): return vr(32 + 16 * buf + 4 * rtl, 4)
def Wm(buf, ct, e=None):
    b = 40 + 16 * buf + 4 * ct
    return vr(b, 4) if e is None else vr(b + 2 * e, 2)
def acc1(rtl, ct): return 64 + 32 * rtl + 16 * ct
def main_p1(T):
    a.vmq = []; a.lgq = []
    tmp = ["v2", "v3", "v4", "v5"]
    a("s_and_b32 s73, s3, 1\ns_lshr_b32 s74, s3, 1\ns_lshl_b32 s75, s73, 13")
    x_addr(128, T, "s75", tmp)
    tr_addr("v5", T, "v2", "v3", "v4")
    a("s_lshl_b32 s75, s74, 13\ns_add_u32 s75, s75, 16384\nv_add_u32 v140, s75, v5\nv_xor_b32 v141, 64, v140")
    for ct in range(2): a("v_add_u32 v%d, 65536, v%d" % (142 + ct, 140 + ct))
    a("s_lshl_b32 s75, %s, 2\ns_lshl_b32 s76, s73, 1\ns_add_u32 s75, s75, s76" % sRB)
    a("s_lshl_b32 s76, %s, 1\ns_add_u32 s76, s76, s74" % sJ)
    if T:
        a("s_mul_i32 s77, s75, %d\ns_lshl_b32 s78, s76, 12\ns_add_u32 s78, s78, s77\nv_add_u32 v146, s78, %s" % (T_TILE, vL16))
        a("s_cmp_lt_u32 s76, 7\ns_cselect_b32 s84, 0x%x, 1.0\ns_mov_b32 %s, %d" % (f32(QSCALE), sRTL, T_TILE))
    else:
        a("s_lshl_b32 s75, s75, 11\ns_add_u32 s75, s75, %d" % N_OFF)
        a("s_sub_u32 s76, s76, 14\ns_sub_u32 s77, s76, 7\ns_cmp_lt_u32 s76, 7\ns_cselect_b32 s76, s76, s77\ns_cselect_b32 s77, 0, %d\ns_add_u32 s77, s77, s75" % N_KIND)
        for ct in range(2):
            a("s_lshl_b32 s73, s76, 6\ns_add_u32 s73, s73, %d\nv_and_b32 v6, 31, v1\nv_add_u32 v6, s73, v6" % (32 * ct))
            n_addr("v%d" % (146 + ct), "s77", "v6", True, tmp)
        a("s_lshl_b32 s73, s76, 6\ns_add_u32 s74, s73, 27\ns_mul_i32 s74, s74, 2341\ns_lshr_b32 s74, s74, 16\ns_add_u32 s73, s73, 64")
        a("v_lshrrev_b32 v2, 4, v1\nv_add_u32 v2, s74, v2\nv_mul_u32_u24 v3, 28, v2\nv_cmp_gt_u32 vcc, s73, v3")
        a("v_lshlrev_b32 v2, 17, v2\nv_bfe_u32 v3, v1, 2, 2\nv_lshl_add_u32 v2, v3, 9, v2\nv_and_b32 v3, 3, v1\nv_lshl_add_u32 v2, v3, 4, v2")
        a("v_add_u32 v2, s77, v2\nv_add_u32 v2, %d, v2\nv_mov_b32 v4, %d\nv_cndmask_b32 v148, v4, v2, vcc" % (28 * 16, OOB))
        a("v_cmp_eq_u32 vcc, 0, v3\nv_mov_b32 v4, 0x3f803f80\ns_nop 0\nv_cndmask_b32 v152, %s, v4, vcc" % vZERO)
        a("v_mov_b32 v153, v152\nv_mov_b32 v154, v152\nv_mov_b32 v155, v152")
    early = opt("early", 12)
    def small_stores():
        if not T:
            for rtl in range(2): a.vm("buffer_store_dwordx4 v[152:155], v148, %s, 0 offen offset:%d sc1" % (WS, rtl * 2048))
    if early == 1: small_stores()
    def mm(rtl, ct, g):
        if T: mfma(vr(acc1(rtl, ct), 16), Wm(g & 1, ct), Xm(g & 1, rtl), "0" if g == 0 else None)
        else: mfma(vr(acc1(rtl, ct), 16), Xm(g & 1, rtl), Wm(g & 1, ct), "0" if g == 0 else None)
    def reads(g):
        s, t = g >> 2, g & 3; slot = SLOT[s]; hi, lo = slot >> 1, (slot & 1) * 32768
        rx = [lambda rtl=rtl: a.ds("ds_read_b128 %s, v%d offset:%d" % (Xm(g & 1, rtl), 128 + 4 * hi + t, lo + rtl * 4096), g) for rtl in range(2)]
        rw = [lambda ct=ct, e=e: a.ds("ds_read_b64_tr_b16 %s, v%d offset:%d" % (Wm(g & 1, ct, e), 140 + 2 * hi + ct, lo + t * 2048 + e * 512), g) for ct in range(2) for e in range(2)]
        return [rx[0], rw[0], rw[1], rw[2], rw[3], rx[1]]
    get_tag()
    a("s_barrier")
    stamp("m_slab0")
    for r in reads(0): r()
    def XL(t, rtl): return vr(192 + 16 * t + 4 * rtl, 4)
    def WL(t, ct, e=None):
        b = 200 + 16 * t + 4 * ct
        return vr(b, 4) if e is None else vr(b + 2 * e, 2)
    def reads_last(t):
        slot = SLOT[6]; hi, lo = slot >> 1, (slot & 1) * 32768
        rx = [lambda rtl=rtl: a.ds("ds_read_b128 %s, v%d offset:%d" % (XL(t, rtl), 128 + 4 * hi + t, lo + rtl * 4096), ("x", rtl, t)) for rtl in range(2)]
        rw = [lambda ct=ct, e=e: a.ds("ds_read_b64_tr_b16 %s, v%d offset:%d" % (WL(t, ct, e), 140 + 2 * hi + ct, lo + t * 2048 + e * 512), ("w", ct, t)) for ct in range(2) for e in range(2)]
        return rx, rw
    RL = [reads_last(t) for t in range(4)]
    lastq = sum([[RL[t][0][0], RL[t][1][0], RL[t][1][1]] for t in range(4)], []) + sum([[RL[t][1][2], RL[t][1][3]] for t in range(4)], []) + [RL[t][0][1] for t in range(4)]
    for g in range(24):
        a.dswait(g)
        mm(0, 0, g)
        if (g & 3) == 3: a("s_barrier")
        if early > 1 and g == early: small_stores()
        nxt = reads(g + 1) if g < 23 else lastq[:9]
        for r in nxt[:3]: r()
        mm(0, 1, g)
        for r in nxt[3:6]: r()
        mm(1, 0, g)
        for r in nxt[6:]: r()
        mm(1, 1, g)
    lastq = lastq[9:]
    def epi(rtl, ct):
        b = acc1(rtl, ct); o = 160 + 8 * (2 * rtl + ct); th = []
        for m in range(2):
            for q in range(4 * m, 4 * m + 4):
                if T: th += [lambda k=k: a("v_mul_f32 v%d, s84, v%d" % (k, k)) for k in (b + 2 * q, b + 2 * q + 1)]
                th.append(lambda q=q: a("v_cvt_pk_bf16_f32 v%d, v%d, v%d" % (o + q, b + 2 * q, b + 2 * q + 1)))
            if T: th.append(lambda m=m: a.vm("buffer_store_dwordx4 %s, v146, %s, %s offen offset:%d sc1" % (vr(o + 4 * m, 4), WS, sRTL if rtl else "0", ct * 2048 + m * 1024)))
            else: th.append(lambda m=m: a.vm("buffer_store_dwordx4 %s, v%d, %s, 0 offen offset:%d sc1" % (vr(o + 4 * m, 4), 146 + ct, WS, rtl * 2048 + m * 1024)))
        return th
    pend = []
    for ti, (rtl, ct) in enumerate([(0, 0), (0, 1), (1, 1), (1, 0)]):
        for t in range(4):
            a.dswait(("x", rtl, t)); a.dswait(("w", ct, t))
            if T: mfma(vr(acc1(rtl, ct), 16), WL(t, ct), XL(t, rtl))
            else: mfma(vr(acc1(rtl, ct), 16), XL(t, rtl), WL(t, ct))
            for _ in range(4):
                if lastq: lastq.pop(0)()
            if ti == 2 and t == 3: arrive(cH2)
            if ti == 1 and t == 3: a.nop(1)
            if ti >= 2 or (ti == 1 and t == 3):
                for _ in range(6 if T else 3):
                    if pend: pend.pop(0)()
        pend += epi(rtl, ct)
    stamp("m_r1")
    n0 = len(pend) - len(epi(1, 0))
    for _ in range(n0): pend.pop(0)()
    a.nop(max(0, 12 - n0))
    while pend: pend.pop(0)()
    if early == 0: small_stores()
    stamp("m_stored")
a("s_cmp_ge_u32 %s, 14\ns_cbranch_scc1 L_m_gate" % sJ)
a("s_cmp_ge_u32 %s, 7\ns_cbranch_scc1 L_m_N" % sJ)
main_p1(True)
a("s_branch L_m_join")
a.label("L_m_N")
main_p1(False)
a("s_branch L_m_join")
a.label("L_m_gate")
srd(X, pX, 2048 * 896); srd(GW, pG, 896)
a.vmq = []
a("s_lshl_b32 s75, %s, 7\ns_sub_u32 s76, %s, 14\ns_lshl_b32 s76, s76, 6\ns_add_u32 s75, s75, s76\ns_lshl_b32 s76, s3, 4\ns_add_u32 s75, s75, s76" % (sRB, sJ))
a("v_lshrrev_b32 v2, 3, v1\nv_add_u32 v2, s75, v2\nv_and_b32 v3, 7, v1\nv_lshlrev_b32 v3, 4, v3")
a("v_mul_u32_u24 v4, 896, v2\nv_add_u32 v4, v4, v3\nv_add_u32 v5, %d, v4" % (8 * 896))
for i in range(7):
    a.vm("buffer_load_dwordx4 %s, v3, %s, 0 offen offset:%d" % (vr(64 + 4 * i, 4), GW, 128 * i))
    a.vm("buffer_load_dwordx4 %s, v4, %s, 0 offen offset:%d" % (vr(96 + 4 * i, 4), X, 128 * i))
    a.vm("buffer_load_dwordx4 %s, v5, %s, 0 offen offset:%d" % (vr(128 + 4 * i, 4), X, 128 * i))
a("v_mov_b32 v6, 0\nv_mov_b32 v7, 0")
a("v_lshlrev_b32 v2, 2, v2\nv_add_u32 v2, %d, v2\nv_mov_b32 v8, %d\nv_cmp_eq_u32 vcc, 0, v3\ns_nop 1\nv_cndmask_b32 v9, v8, v2, vcc" % (G_OFF, OOB))
get_tag()
a("s_barrier")
arrive(cH2)
a.vmwait_all()
prefetch_wo(0)
for i in range(28):
    a("v_dot2_f32_bf16 v6, v%d, v%d, v6\nv_dot2_f32_bf16 v7, v%d, v%d, v7" % (64 + i, 96 + i, 64 + i, 128 + i))
a.nop(3)
for dpp in ("quad_perm:[1,0,3,2]", "quad_perm:[2,3,0,1]", "row_half_mirror"):
    a("v_add_f32_dpp v6, v6, v6 %s row_mask:0xf bank_mask:0xf\nv_add_f32_dpp v7, v7, v7 %s row_mask:0xf bank_mask:0xf" % (dpp, dpp))
    a.nop(2)
for r in (6, 7):
    a("v_mul_f32 v%d, 0x%x, v%d\nv_exp_f32 v%d, v%d\ns_nop 0\nv_add_f32 v%d, 1.0, v%d\nv_rcp_f32 v%d, v%d\ns_nop 0" % (r, f32(-LOG2E), r, r, r, r, r, r, r))
a.vm("buffer_store_dword v6, v9, %s, 0 offen sc1" % WS)
a.vm("buffer_store_dword v7, v9, %s, 0 offen offset:32 sc1" % WS)

a.label("L_m_join")
a.vmq = ["st"]; a.lgq = []
vK, vV, vQ, vG, vIDX = "v26", "v25", "v24", "v23", "v22"
def Qf(tau, m): return 32 + 8 * tau + 4 * m
def KV(b, k): return vr(192 + 16 * b + 4 * k, 4)
def Oa(tau): return 128 + 16 * tau
def Sb(tau): return 64 + 16 * tau
a("s_add_u32 s73, %s, 7\ns_lshr_b32 s73, s73, 1\ns_add_u32 s74, %s, 7\ns_lshr_b32 s74, s74, 1\ns_add_u32 s75, %s, 14\ns_lshr_b32 s75, s75, 1\ns_add_u32 s76, %s, 14\ns_lshr_b32 s76, s76, 1" % (sC0, sC1, sC0, sC1))
a("s_lshr_b32 s77, %s, 1\ns_lshr_b32 s78, %s, 1\ns_lshr_b32 s83, s3, 1\ns_add_u32 s83, s83, 14" % (sC0, sC1))
lane_select("v2", [(0, "s73"), (4, "s74"), (8, "s75"), (12, "s76"), (16, "s77"), (17, "s78"), (18, "s83")], "v3")
a("s_lshl_b32 s73, s3, 2\nv_and_b32 v3, 3, v1\nv_add_u32 v3, s73, v3\nv_mov_b32 v4, %s\nv_cmp_le_u32 vcc, 16, v1\ns_nop 1\nv_cndmask_b32 v3, v3, v4, vcc" % sQB)
a("v_lshl_add_u32 v2, v2, 4, v3\nv_lshlrev_b32 v2, 7, v2\nv_add_u32 %s, %d, v2" % (vPOLL, F1))
a("s_lshl_b32 s73, %s, 9" % sU0)
a("s_mul_i32 s74, s3, %d\ns_add_u32 s74, s74, s73\ns_add_u32 s74, s74, %d\nv_add_u32 %s, s74, %s" % (16 * T_TILE, T_OFF + 7 * 4096, vK, vL16))
a("s_lshl_b32 s74, %s, 17\ns_lshl_b32 s75, s3, 15\ns_add_u32 s74, s74, s75\ns_add_u32 s74, s74, %d\nv_add_u32 %s, s74, %s" % (sH, N_OFF, vV, vL16))
a("s_mul_i32 s74, %s, %d\ns_add_u32 s74, s74, s73\nv_add_u32 %s, s74, %s" % (sQB, 4 * T_TILE, vQ, vL16))
a("s_cmp_eq_u32 %s, 0\ns_mov_b32 s86, 0\ns_cselect_b32 s87, -1, 0\ns_cselect_b32 s88, 0, -1\ns_mov_b32 s89, 0" % sODD)
a("v_mov_b32 %s, 0xdddddddd" % vIDX)
for tau in range(3):
    a("s_add_u32 s73, s3, %d\ns_and_b32 s73, s73, 3\ns_mul_i32 s73, s73, 12288\ns_add_u32 s73, s73, %d\nv_add_u32 v%d, s73, %s" % (1 + tau, RED + tau * 4096, 12 + tau, vL16))
a("s_mul_i32 s73, s3, 12288\ns_add_u32 s73, s73, %d\nv_add_u32 v15, s73, %s" % (RED, vL16))
a("s_lshl_b32 s73, %s, 2\ns_add_u32 s73, s73, s3\ns_lshl_b32 s73, s73, 4\ns_add_u32 s73, s73, %s\ns_lshl_b32 s73, s73, 7\ns_add_u32 s73, s73, %d" % (sQB, sH, F5))
a("v_mov_b32 v2, %d\nv_mov_b32 v3, s73\nv_cndmask_b32 v11, v2, v3, %s" % (OOB, sMZ))
def zero_o():
    for i in range(64): a("v_mov_b32 v%d, 0" % (128 + i))
zero_o()
for tau in range(4):
    a("s_add_u32 s73, s3, %d\ns_and_b32 s73, s73, 3\ns_mul_i32 s%d, s73, %d" % (1 + tau, 74 + tau, T_TILE))
if MPRIO: a("s_setprio %d" % (1 if DP else 0))
a.vmwait_all()
stamp("m_drained")
publish(cM1, sF12, F1)
if PDELAY: a("s_sleep %d" % PDELAY)
if opt("pp", 2):
    top, done = a.newlabel("pp"), a.newlabel("ppd")
    a("buffer_load_dword v4, %s, %s, 0 offen sc1" % (vPOLL, WS))
    a.label(top)
    for k in range(2):
        a("s_sleep %d\nbuffer_load_dword v%d, %s, %s, 0 offen sc1\ns_waitcnt vmcnt(1)" % (opt("pp", 2), 5 - k, vPOLL, WS))
        a("v_cmp_ne_u32 vcc, %s, v%d\ns_cmp_eq_u64 vcc, 0\ns_cbranch_scc1 %s" % (sTAG, 4 + k, done))
    bounded(top)
    a.label(done)
    a.vmq = ["pp"]
else: poll(PSLEEP)
if opt("goearly", 0): arrive(cGO)
stamp("m_f1seen")
def kv_load(kt, k):
    if k < 2: a.vm("buffer_load_dwordx4 %s, %s, %s, %s offen offset:%d sc1" % (KV(kt & 3, k), vK, WS, sSK, 1024 * k), "k%d" % kt)
    else: a.vm("buffer_load_dwordx4 %s, %s, %s, %s offen offset:%d sc1" % (KV(kt & 3, k), vV, WS, sSV, 1024 * (k - 2)), "v%d" % kt)
def kv_off(kt, k): a("s_mov_b32 %s, %d" % ((sSK, kt * T_TILE) if k == 0 else (sSV, kt * 2048)))
def q_load(tau):
    for m in range(2): a.vm("buffer_load_dwordx4 %s, %s, %s, s%d offen offset:%d sc1" % (vr(Qf(tau, m), 4), vQ, WS, 74 + tau, 1024 * m), "q%d" % tau)
def q_fix(tau):
    for k in (0, 1): a("v_cndmask_b32 v%d, v%d, %s, %s" % (Qf(tau, 0) + k, Qf(tau, 0) + k, vZERO, sMB))
    for k in (2, 3): a("v_cndmask_b32 v%d, v%d, %s, %s" % (Qf(tau, 1) + k, Qf(tau, 1) + k, vZERO, sMA))
kv_off(0, 0); kv_off(0, 1)
kv_load(0, 0); kv_load(0, 1); q_load(0); q_load(1); kv_load(0, 2); kv_load(0, 3); q_load(2); q_load(3)
kv_off(1, 0); kv_off(1, 1)
for k in range(4): kv_load(1, k)
load_g(vG)
if not opt("goearly", 0): arrive(cGO, wake=True)
a("s_mov_b32 s77, 8")
def M(n, m):
    kt, tau = n >> 2, n & 3
    mfma(vr(Sb(tau), 16), KV(kt & 3, m), vr(Qf(tau, m), 4), "0" if m == 0 else None)
def P(n, m):
    kt, tau = n >> 2, n & 3
    a("v_smfmac_f32_32x32x32_bf16 %s, %s, %s, %s" % (vr(Oa(tau), 16), KV(kt & 3, 2 + m), vr(Sb(tau) + 8 * m, 8), vIDX))
def E(n, q):
    for k in range(4 * q, 4 * q + 4): a("v_exp_f32 v%d, v%d" % (Sb(n & 3) + k, Sb(n & 3) + k))
def red_write(tau, i): a.ds("ds_write_b128 v%d, %s offset:%d" % (12 + tau, vr(Oa(tau) + 4 * i, 4), 1024 * i))
a.vmwait("q0"); q_fix(0)
stamp("m_attn0"); stamp("R_attn0", True)
a.nop(1)
M(0, 0); M(0, 1)
a.vmwait("q1"); q_fix(1)
a.nop(6)
sched = {n: [] for n in range(64)}
for i, (kt, k) in enumerate([(2, 0), (2, 1), (2, 2), (2, 3), (3, 0), (3, 1), (3, 2), (3, 3)]): sched[i // 2].append((kt, k))
for kt in range(4, 16):
    for k in range(4): sched[4 * (kt - 3) + k].append((kt, k))
for n in range(64):
    ld = sched[n]
    if n < 63: M(n + 1, 0)
    for kt, k in ld:
        if k in (0, 2): kv_off(kt, k >> 1)
    E(n, 0)
    if n < 63: M(n + 1, 1)
    if n == 0: a.vmwait("v0")
    E(n, 1)
    if n > 0: P(n - 1, 1)
    if ld: kv_load(*ld[0])
    if HOIST and n >= 62: red_write(n - 62, 0); red_write(n - 62, 1)
    E(n, 2)
    P(n, 0)
    if len(ld) > 1: kv_load(*ld[1])
    if HOIST and n >= 62: red_write(n - 62, 2); red_write(n - 62, 3)
    if n < 2: a.vmwait("q%d" % (n + 2))
    elif (n & 3) == 2 and n + 2 < 64: a.vmwait("k%d" % ((n + 2) // 4))
    elif (n & 3) == 3 and n + 1 < 64: a.vmwait("v%d" % ((n + 1) // 4))
    E(n, 3)
    if n < 2: q_fix(n + 2)
a.nop(2)
P(63, 1)
if P3E: a("s_setprio 3")
stamp("m_attn_end"); stamp("R_attn_end", True)
if HOIST: a("s_branch L_red2")
a.label("L_reduce")
for tau in range(2):
    for i in range(4): red_write(tau, i)
a.label("L_red2")
for i in range(4): red_write(2, i)
arrive(cRD)
spin(cRD, "s77", 0)
for k in range(12):
    a.ds("ds_read_b128 %s, v15 offset:%d" % (vr(64 + 4 * k, 4), 1024 * (4 * (k % 3) + k // 3)), k // 3)
O3 = Oa(3)
for i in (3, 0, 1, 2):
    pass
for i in range(4):
    a.dswait(i)
    for s in range(3):
        if P3E:
            for q in range(4): a("v_add_f32 v%d, v%d, v%d" % (O3 + 4 * i + q, O3 + 4 * i + q, 64 + 12 * i + 4 * s + q))
            continue
        for q in range(2):
            a("v_pk_add_f32 %s, %s, %s" % (vr(O3 + 4 * i + 2 * q, 2), vr(O3 + 4 * i + 2 * q, 2), vr(64 + 12 * i + 4 * s + 2 * q, 2)))
bcast_hi("v4", vr(O3 + 12), "v5")
a("v_rcp_f32 v6, v4\nv_mov_b32 v8, 0\nv_mov_b32 v9, 0\nv_mul_f32 v6, v6, %s\nv_mov_b32 v7, v6" % vG)
for q in range(8):
    if P3E:
        a("v_add_f32_e64 v9, |v%d|, |v%d|\nv_mul_f32 v%d, v6, v%d\nv_fmac_f32 v8, 0, v9\nv_mul_f32 v%d, v6, v%d" % (O3 + 2 * q, O3 + 2 * q + 1, 64 + 2 * q, O3 + 2 * q, 65 + 2 * q, O3 + 2 * q + 1))
        continue
    a("v_pk_fma_f32 v[8:9], %s, 0, v[8:9] op_sel_hi:[1,0,1]" % vr(O3 + 2 * q, 2))
    a("v_pk_mul_f32 %s, %s, v[6:7]" % (vr(64 + 2 * q, 2), vr(O3 + 2 * q, 2)))
a("v_add_f32 v4, v4, v8" if P3E else "v_add_f32 v8, v8, v9\nv_add_f32 v4, v4, v8")
a("v_cmp_nle_f32 vcc, 0x%x, v4\ns_mov_b64 s[94:95], vcc\nv_cmp_nge_f32 vcc, 0x%x, v4" % (f32(2.0 ** -64), f32(2.0 ** 64)))
for q in range(8): a("v_cvt_pk_bf16_f32 v%d, v%d, v%d" % (80 + q, 64 + 2 * q, 65 + 2 * q))
for q in (0, 4): a("v_min_u32 v%d, -2, v%d" % (80 + q, 80 + q))
a("s_or_b64 vcc, vcc, s[94:95]\ns_cmp_lg_u64 vcc, 0\ns_cselect_b32 s74, 0x101, %s\ns_andn2_b32 s74, s74, %s" % ("s78" if FORCE_FB else "1", sFB))
a("s_lshr_b32 s75, s74, 8\ns_or_b32 s75, s75, %s\ns_cmp_lg_u32 s75, 0\nv_mov_b32 v3, s74\ns_cbranch_scc1 L_nostore" % sSTORED)
store_o(80, "oa")
a.vm("buffer_store_dword %s, v11, %s, 0 offen sc1" % (vTAG, WS))
a("s_mov_b32 %s, 1" % sSTORED)
a.label("L_nostore")
stamp("m_oa_stored")
arrive(cVT, False, "v3")
a("s_cmp_lg_u32 %s, 0\ns_cbranch_scc1 L_mdone" % sFB)
spin(cVT, 4, 0, 0xff)
a("s_lshr_b32 s73, s83, 8\ns_cmp_lg_u32 s73, 0\ns_cbranch_scc1 L_fallback")
a.label("L_mdone")
arrive(cDONE)
a.label("L_fin")
stamp("end")
if STAMP:
    a("v_lshlrev_b32 v2, 2, v1\ns_lshl_b32 s73, s2, 3\ns_add_u32 s73, s73, s39\ns_lshl_b32 s73, s73, 8\ns_add_u32 s73, s73, %d\ns_nop 4" % STAMP_OFF)
    a("buffer_store_dword %s, v2, %s, s73 offen" % (vSTAMP, WS))
if SPINTO or ENC >= 0:
    a("s_waitcnt vmcnt(0)")
    if ENC >= 0: a("s_sub_u32 s100, s100, s98\ns_min_u32 s100, s100, 5000\ns_add_u32 s100, s100, 4000")
    else: a("s_mov_b32 s100, %d" % SPINTO)
    a.label("L_spinto")
    a("s_sleep 8\ns_memrealtime s[74:75]\ns_waitcnt lgkmcnt(0)\ns_sub_u32 s74, s74, s98\ns_cmp_lt_u32 s74, s100\ns_cbranch_scc1 L_spinto")
a.label("L_end")
a("s_endpgm")

a.label("L_fallback")
a("s_mov_b32 %s, 0x100\ns_mov_b32 s77, 12\ns_waitcnt vmcnt(0)" % sFB)
for t in range(4): a("v_mov_b32 v%d, 0xff800000" % (6 + t))
a("s_mov_b32 %s, 0" % sSK)
a.label("L_fb1")
for m in range(2): kv_load(0, m)
a("s_waitcnt vmcnt(0)")
for t in range(4):
    M(t, 0); M(t, 1)
a.nop(12)
for t in range(4):
    for q in range(8): a("v_max3_f32 v%d, v%d, v%d, v%d" % (6 + t, Sb(t) + 2 * q, Sb(t) + 2 * q + 1, 6 + t))
a("s_add_u32 %s, %s, %d\ns_cmp_lt_u32 %s, %d\ns_cbranch_scc1 L_fb1" % (sSK, sSK, T_TILE, sSK, 16 * T_TILE))
for t in range(4):
    a("v_mov_b32 v2, v%d\nv_mov_b32 v3, v%d\ns_nop 1\nv_permlane32_swap_b32 v2, v3\nv_max_f32 v2, v2, v3" % (6 + t, 6 + t))
    a("s_add_u32 s73, s3, %d\ns_and_b32 s73, s73, 3\ns_lshl_b32 s73, s73, 10\ns_add_u32 s73, s73, %d\nv_lshlrev_b32 v4, 2, v1\nv_add_u32 v%d, s73, v4" % (1 + t, RED, 64 + t))
    a("s_lshl_b32 s73, s3, 8\nv_add_u32 v4, s73, v%d\nds_write_b32 v4, v2" % (64 + t))
arrive(cFB0)
spin(cFB0, 4)
for t in range(4):
    for k in range(4): a("ds_read_b32 v%d, v%d offset:%d" % (2 + k, 64 + t, 256 * k))
    a("s_waitcnt lgkmcnt(0)\nv_max3_f32 v2, v2, v3, v4\nv_max_f32 v%d, v2, v5" % (6 + t))
arrive(cFB1)
spin(cFB1, 4)
zero_o()
a("s_mov_b32 %s, 0\ns_mov_b32 %s, 0" % (sSK, sSV))
for t in range(4): a("v_mov_b32 v%d, v%d" % (208 + t, 6 + t))
a.label("L_fb2")
for k in range(4): kv_load(0, k)
a("s_waitcnt vmcnt(0)")
for t in range(4):
    M(t, 0); M(t, 1)
a.nop(12)
for t in range(4):
    for q in range(16): a("v_sub_f32 v%d, v%d, v%d" % (Sb(t) + q, Sb(t) + q, 208 + t))
    for q in range(16): a("v_exp_f32 v%d, v%d" % (Sb(t) + q, Sb(t) + q))
a.nop(2)
for t in range(4):
    P(t, 0); P(t, 1)
a.nop(12)
a("s_add_u32 %s, %s, %d\ns_add_u32 %s, %s, 2048\ns_cmp_lt_u32 %s, %d\ns_cbranch_scc1 L_fb2" % (sSK, sSK, T_TILE, sSV, sSV, sSV, 16 * 2048))
a("s_branch L_reduce")
a.label("L_codeend")

if FORCE_FB:
    i = a.lines.index("L_red2:")
    a.lines[i + 1:i + 1] = ["s_add_u32 s78, s3, 1", "s_and_b32 s78, s78, 2", "s_lshl_b32 s78, s78, 7", "s_or_b32 s78, s78, 1"]
probs = check(a.lines)
for p in sorted(set(probs)): print(p, file=sys.stderr)
hdr = open("cdna_kernels/%s.s.ref" % NAME).read().split("; Override launch")[0]
out = hdr + ("; stamps: %s\n; wsb: %d\n" % (" ".join(STAMPS), WSB) if STAMP else "") + """; Fused single-launch kernel: QKV projections -> softmax attention + linear attention -> gated output projection.
; @launch grid=(256,1,1) block=(512,1,1) lds=%d
.amdgcn_target "amdgcn-amd-amdhsa--gfx950"
.text
.globl %s_kernel
.p2align 8
.type %s_kernel,@function
%s_kernel:
""" % (LDS_BYTES, NAME, NAME, NAME) + a.text() + """.section .rodata,"a"
.p2align 6
.amdhsa_kernel %s_kernel
  .amdhsa_next_free_vgpr 256
  .amdhsa_next_free_sgpr 102
  .amdhsa_accum_offset 256
  .amdhsa_group_segment_fixed_size 0
  .amdhsa_kernarg_size 80
  .amdhsa_user_sgpr_count 2
  .amdhsa_user_sgpr_kernarg_segment_ptr 1
  .amdhsa_system_sgpr_workgroup_id_x 1
.end_amdhsa_kernel
""" % NAME
dst = [x for x in sys.argv[1:] if not x.startswith("--")]
open(dst[0] if dst else "cdna_kernels/%s.s" % NAME, "w").write(out)
open("stamps.txt", "w").write("\n".join(STAMPS))
print("hazards:", len(set(probs)), "lines:", len(a.lines), file=sys.stderr)
```
